```python
import torch

def _softmax(x, axis=-1):
    return torch.softmax(x, dim=axis)
def _gelu(x):
    return torch.nn.functional.gelu(x, approximate="tanh")
def _silu(x):
    return torch.nn.functional.silu(x)
def _sigmoid(x):
    return torch.sigmoid(x)
def _layernorm(x, axis=-1, eps=1e-5):
    m = x.mean(dim=axis, keepdim=True)
    v = x.var(dim=axis, keepdim=True, unbiased=False)
    return (x - m) / torch.sqrt(v + eps)
def _scatter_add(tgt, idx, src, axis=0):
    return tgt.clone().index_add_(axis, idx, src)
def _segment_sum(src, seg, n):
    out = torch.zeros((n,) + src.shape[1:], dtype=src.dtype)
    return out.index_add_(0, seg, src)
def _pad(x, pw):
    flat = tuple(v for pair in reversed(pw) for v in pair)
    return torch.nn.functional.pad(x, flat)

kernel_name = 'sequential_preLN__sliding_block_cached__mixer_token_mlp__decode'

def setup_inputs():

    _w = (lambda a: (lambda t: t.to(torch.bfloat16) if t.is_floating_point() else t)(torch.as_tensor(a)))
    def _A_setup():
        B, Sq, D = 4, 1, 512
        Hq, Hkv, Sk, Dh = 32, 8, 8192, 128
        assert Hq % Hkv == 0, (Hq, Hkv)
        return {
            "x": _w((lambda *s: torch.randn(*s, dtype=torch.bfloat16) * 0.05)(B, Sq, D)),
            "k_cache": _w((lambda *s: torch.randn(*s, dtype=torch.bfloat16) * 3.2)(B, Hkv, Sk, Dh)),
            "v_cache": _w((lambda *s: torch.randn(*s, dtype=torch.bfloat16) * 0.8)(B, Hkv, Sk, Dh)),
            "wq": _w((lambda *s: torch.randn(*s, dtype=torch.bfloat16) * 3.2)(D, Hq * Dh) * (D ** -0.5)),
            "wo": _w((lambda *s: torch.randn(*s, dtype=torch.bfloat16) * 0.8)(Hq * Dh, D) * ((Hq * Dh) ** -0.5)),
        }
    _A_in = _A_setup()

    def _B_setup():
        B, S, D, F = 4, 1, 512, 1792
        return {
            "x": _w((lambda *s: torch.randn(*s, dtype=torch.bfloat16) * 0.05)(B, S, D)),
            "w1": _w((lambda *s: torch.randn(*s, dtype=torch.bfloat16) * 1.6)(S, F) * (S ** -0.5)),
            "b1": _w((lambda *s: torch.randn(*s, dtype=torch.bfloat16) * 1.6)(F) * 0.02),
            "w2": _w((lambda *s: torch.randn(*s, dtype=torch.bfloat16) * 1.6)(F, S) * (F ** -0.5)),
            "b2": _w((lambda *s: torch.randn(*s, dtype=torch.bfloat16) * 0.8)(S) * 0.02),
        }
    _B_in = _B_setup()

    return {
        "A_x": _A_in["x"],
        "A_k_cache": _A_in["k_cache"],
        "A_v_cache": _A_in["v_cache"],
        "A_wq": _A_in["wq"],
        "A_wo": _A_in["wo"],
        "B_x": _B_in["x"],
        "B_w1": _B_in["w1"],
        "B_b1": _B_in["b1"],
        "B_w2": _B_in["w2"],
        "B_b2": _B_in["b2"],
    }

def reference(A_x, A_k_cache, A_v_cache, A_wq, A_wo, B_x, B_w1, B_b1, B_w2, B_b2):
    def _A_ref(x, k_cache, v_cache, wq, wo):
        B, Sq, D = x.shape
        Hq, Dh = 32, 128
        Hkv, Sk = k_cache.shape[1], k_cache.shape[2]
        W = min(4096, max(256, Sk // 4))
        rep = Hq // Hkv
        q = (lambda x, *d: x.permute(*d))((x @ wq).reshape(B, Sq, Hq, Dh), 0, 2, 1, 3)
        k = (lambda x, n, axis: torch.repeat_interleave(x, n, dim=axis))(k_cache[:, :, Sk - W:, :], rep, axis=1)
        v = (lambda x, n, axis: torch.repeat_interleave(x, n, dim=axis))(v_cache[:, :, Sk - W:, :], rep, axis=1)
        scores = torch.einsum("bhqd,bhkd->bhqk", q, k) * (Dh ** -0.5)
        p = _softmax(scores, axis=-1)
        o = torch.einsum("bhqk,bhkd->bhqd", p, v)
        return (lambda x, *d: x.permute(*d))(o, 0, 2, 1, 3).reshape(B, Sq, Hq * Dh) @ wo

    def _B_ref(x, w1, b1, w2, b2):
        B, S, D = x.shape
        h = _layernorm(x, axis=-1)
        u = torch.einsum("bsd,sf->bdf", h, w1) + b1
        u = _gelu(u)
        y = torch.einsum("bdf,fs->bds", u, w2) + b2
        return (lambda x, *d: x.permute(*d))(y, 0, 2, 1)

    x = A_x
    h = x + _A_ref(_layernorm(x, axis=-1), A_k_cache, A_v_cache, A_wq, A_wo)
    h2 = h + _B_ref(_layernorm(h, axis=-1), B_w1, B_b1, B_w2, B_b2)
    return h2
```

```python
import re

TRANS = ("v_exp_f32", "v_log_f32", "v_rcp_f32", "v_rsq_f32", "v_sqrt_f32", "v_sin_f32", "v_cos_f32")


def _regs(tok):
    tok = tok.strip()
    tok = tok.lstrip("-")
    m = re.fullmatch(r"abs\((.*)\)", tok)
    if m:
        tok = m.group(1)
    m = re.fullmatch(r"([vs])(\d+)", tok)
    if m:
        return {(m.group(1), int(m.group(2)))}
    m = re.fullmatch(r"([vs])\[(\d+):(\d+)\]", tok)
    if m:
        return {(m.group(1), i) for i in range(int(m.group(2)), int(m.group(3)) + 1)}
    if tok == "vcc":
        return {("s", 106), ("s", 107)}
    if tok == "exec":
        return {("s", 126), ("s", 127)}
    if tok == "m0":
        return {("s", 124)}
    return set()


class Ins:
    def __init__(self, text):
        self.text = text
        t = text.split(";")[0].strip()
        self.label = t.endswith(":")
        parts = t.split(None, 1)
        self.op = parts[0] if parts else ""
        rest = parts[1] if len(parts) > 1 else ""
        ops = [x.strip() for x in rest.split(",")]
        toks = []
        for x in ops:
            toks.append(x.split()[0] if x.split() else "")
        self.mods = rest
        op = self.op
        self.valu = op.startswith("v_") and not op.startswith("v_mfma")
        self.mfma = op.startswith("v_mfma")
        self.trans = any(op.startswith(x) for x in TRANS)
        self.dpp = ("row_" in rest) or ("quad_perm" in rest)
        self.perml = op.startswith("v_permlane")
        self.rdlane = op.startswith("v_readlane") or op.startswith("v_readfirstlane")
        self.vmem = op.startswith("buffer_") or op.startswith("global_")
        self.ds = op.startswith("ds_")
        self.salu = op.startswith("s_")
        self.lds_dma = self.vmem and re.search(r"\blds\b", rest) is not None
        self.w = set()
        self.r = set()
        self.srcc = set()
        self.srcab = set()
        self.stdata = set()
        R = [_regs(x) for x in toks]
        if self.label or not op:
            return
        if self.mfma:
            self.w = R[0]
            self.srcab = R[1] | R[2]
            self.srcc = R[3]
            self.r = R[1] | R[2] | R[3]
        elif self.perml:
            self.w = R[0] | R[1]
            self.r = R[0] | R[1]
        elif self.valu:
            self.w = set(R[0])
            srcs = R[1:]
            if op.startswith("v_add_co") or op.startswith("v_addc_co"):
                self.w |= R[1]
                srcs = R[2:]
            for x in srcs:
                self.r |= x
            if op.startswith("v_fmac") or self.dpp or op.startswith("v_writelane"):
                self.r |= R[0]
            if op.startswith("v_cndmask") and len(toks) == 3:
                self.r |= _regs("vcc")
        elif self.vmem:
            if "load" in op and not self.lds_dma:
                self.w = R[0]
                for x in R[1:]:
                    self.r |= x
            else:
                for x in R:
                    self.r |= x
                if "store" in op and ("x4" in op or "x3" in op):
                    self.stdata = R[0]
                if self.lds_dma:
                    self.r |= _regs("m0")
        elif self.ds:
            if "read" in op or "bpermute" in op or "swizzle" in op:
                self.w = R[0]
                for x in R[1:]:
                    self.r |= x
            else:
                for x in R:
                    self.r |= x
        elif self.salu:
            if op.startswith("s_cmp") or op.startswith("s_cbranch") or op in ("s_branch", "s_waitcnt", "s_barrier", "s_nop", "s_sleep", "s_setprio", "s_endpgm"):
                for x in R:
                    self.r |= x
            else:
                self.w = set(R[0])
                for x in R[1:]:
                    self.r |= x
                if "saveexec" in op:
                    self.w |= _regs("exec")

    def states(self):
        if self.label or not self.op:
            return 0
        if self.op == "s_nop":
            return int(self.text.split()[1].split(";")[0], 0) + 1
        return 1


def need(p, c):
    n = 0
    pv = {x for x in p.w if x[0] == "v"}
    ps = {x for x in p.w if x[0] == "s"}
    cv_r = {x for x in c.r if x[0] == "v"}
    cs_r = {x for x in c.r if x[0] == "s"}
    if p.valu:
        if pv & cv_r:
            if c.dpp:
                n = max(n, 2)
            if c.rdlane:
                n = max(n, 1)
            if c.perml:
                n = max(n, 2)
            if c.mfma:
                n = max(n, 2)
            if p.trans and (c.valu or c.mfma or c.vmem or c.ds):
                n = max(n, 1)
        if ps & cs_r:
            if c.rdlane or c.op.startswith("v_writelane"):
                n = max(n, 4)
            elif c.valu or c.mfma:
                n = max(n, 2)
            if c.vmem:
                n = max(n, 5)
    if p.mfma:
        passes = 8 if "32x32" in p.op else 4
        big = {4: 8, 8: 12}[passes]
        if c.mfma:
            if pv & c.srcab:
                n = max(n, big)
            if pv & c.srcc and not (c.srcc == p.w):
                n = max(n, {4: 6, 8: 10}[passes])
            if (pv & c.w) and not (c.srcc == p.w):
                n = max(n, big)
        else:
            if pv & (cv_r | c.w):
                n = max(n, big)
        if c.valu and (p.srcc & c.w):
            n = max(n, {4: 3, 8: 7}[passes])
    if p.stdata and (p.stdata & c.w):
        n = max(n, 2)
    if p.salu and (("s", 124) in p.w) and c.lds_dma:
        n = max(n, 1)
    return n


class Gen:
    def __init__(self):
        self.ins = []

    def __call__(self, text):
        for line in text.strip().split("\n"):
            line = line.strip()
            if not line:
                continue
            self.add(line)

    def add(self, line):
        if line.startswith(";") or line.startswith("."):
            i = Ins("")
            i.text = line
            self.ins.append(i)
            return
        c = Ins(line)
        if not c.label:
            dist = 0
            req = 0
            for p in reversed(self.ins):
                if p.label:
                    break
                if dist >= 14:
                    break
                if p.op:
                    k = need(p, c)
                    if k - dist > req:
                        req = k - dist
                    dist += p.states()
            if req > 0:
                self.ins.append(Ins(f"s_nop {req-1}"))
        self.ins.append(c)

    def fence(self, n=8):
        self.ins.append(Ins(f"s_nop {n-1}"))

    def text(self):
        out = []
        for i in self.ins:
            out.append(i.text if (i.label or i.text.startswith(".") or i.text.startswith(";")) else "    " + i.text)
        return "\n".join(out) + "\n"
```

```python
import sys, struct, math
from asmlib import Gen

KN = "sequential_preLN__sliding_block_cached__mixer_token_mlp__decode_kernel"

def f2u(x):
    return struct.unpack("<I", struct.pack("<f", x))[0]

WS_E = 0
WS_T = 0x1000
WS_LSE = 0x2000
WS_H2 = 0x10000
WS_O = 0x40000
WS_QS = 0x80000
WS_DBG = 0x200000
L_WQT = 0
L_OP = 0
OPW = 2304
OPH = 576
L_GP = 9216
L_HR = 11264
L_HN = 13312
L_ST2 = 15360
L_ST3 = 15424
L_WOT = 16384
L_XN = 32768
L_QL = 33792
L_PL = 34816
L_ST = 43008
L_FT = 43136
L_WT = 43200
L_FL = 43456
L_MW = 43520
L_TOTAL = 55808
F_KISS, F_Q, F_MW, F_ST, F_VISS, F_P = 0, 4, 8, 12, 16, 32

LOG2E = 1.4426950408889634
K0 = -2.0 * math.sqrt(2.0 / math.pi) * LOG2E
K1 = K0 * 0.044715
ALPHA = -((-K1) ** (1.0 / 3.0))
BETA = K0 / ALPHA
HEADER = open("sequential_preLN__sliding_block_cached__mixer_token_mlp__decode.s.ref").read().split("; Override launch")[0]

names_q = ["start", "B0", "wq in", "q pub", "Vstart", "Vissued", "PVdone", "O pub", "h2 start", "h2 done", "end"]
names_d = ["start", "Kissued", "q got", "P rdy", "B3", "h1 done", "B5", "B6", "B6b", "mlp start", "end"]


def gen(path, dbg=False, kvflags="nt", wflags="nt", maxpoll=1 << 18, lim=5, dry=True):
    g = Gen()
    uid = [0]

    def TS(k):
        if dbg:
            g(f"s_memrealtime s[{72+2*k}:{73+2*k}]")

    def srd(d, lo, nbytes):
        g(f"s_mov_b32 s{d}, s{lo}\ns_and_b32 s{d+1}, s{lo+1}, 0xffff\ns_mov_b32 s{d+2}, {nbytes:#x}\ns_mov_b32 s{d+3}, 0x20000")

    def full():
        g("s_mov_b64 exec, s[98:99]")

    def mask(m):
        g(f"s_and_b64 exec, s[98:99], {m}")

    def hook():
        if dry:
            g("s_cbranch_execz L_dry_ret")

    def skipz_begin():
        uid[0] += 1
        if dry:
            g(f"s_cbranch_execz L_sk{uid[0]}")
        return uid[0]

    def skipz_end(u):
        if dry:
            g(f"L_sk{u}:")

    def signal(off):
        g("s_mov_b64 exec, 1")
        g(f"ds_add_u32 v219, v218 offset:{off}")
        g("s_mov_b64 exec, -1")

    def spin(off, target, sl=1, vaddr="v219"):
        uid[0] += 1
        u = uid[0]
        g("s_mov_b32 s71, 0")
        g(f"L_sp{u}:")
        g(f"ds_read_b32 v217, {vaddr} offset:{off}")
        g(f"s_add_u32 s71, s71, 1\ns_cmp_ge_u32 s71, {maxpoll*4}\ns_cbranch_scc1 L_spx{u}")
        g("s_waitcnt lgkmcnt(0)")
        g("v_readfirstlane_b32 s70, v217")
        g(f"s_cmp_ge_u32 s70, {target}\ns_cbranch_scc1 L_spx{u}")
        g(f"s_sleep {sl}")
        g(f"s_branch L_sp{u}")
        g(f"L_spx{u}:")

    MWB = 132

    def mw_prep():
        g("v_lshlrev_b32 v4, 2, v1")
        for a in range(3):
            for k in range(14):
                g(f"ds_read_b32 v{MWB+28*a+2*k+1}, v4 offset:{L_MW + 4096*a + 256*k}")
        g(f"s_mov_b32 s8, {f2u(ALPHA):#x}\ns_mov_b32 s9, {f2u(ALPHA):#x}\ns_mov_b32 s10, {f2u(1.0/ALPHA):#x}\ns_mov_b32 s11, {f2u(1.0/ALPHA):#x}")
        g("s_waitcnt lgkmcnt(0)")
        for a in range(3):
            for k in range(14):
                r = MWB + 28 * a + 2 * k
                g(f"v_lshlrev_b32 v{r}, 16, v{r+1}")
                g(f"v_and_b32 v{r+1}, s42, v{r+1}")
        for a in range(3):
            for k in range(14):
                r = MWB + 28 * a + 2 * k
                g(f"v_pk_mul_f32 v[{r}:{r+1}], v[{r}:{r+1}], s[{8 if a < 2 else 10}:{9 if a < 2 else 11}]")

    def tail_setup():
        srd(56, 16, 4096)
        srd(60, 34, 2)
        g("""
        s_and_b32 s43, s2, 3
        v_and_b32 v4, 1, v3
        v_lshlrev_b32 v4, 1, v4
        v_lshrrev_b32 v5, 1, v3
        v_or_b32 v4, v4, v5
        v_lshl_add_u32 v4, v2, 2, v4
        s_lshl_b32 s8, s3, 6
        v_add_u32 v4, s8, v4
        v_lshlrev_b32 v223, 2, v4
        v_and_b32 v5, 0x1e0, v4
        v_and_b32 v6, 1, v4
        v_lshl_add_u32 v5, v6, 4, v5
        v_bfe_u32 v6, v4, 1, 4
        v_add_u32 v5, v5, v6
        v_lshlrev_b32 v5, 1, v5
        s_lshl_b32 s8, s43, 10
        v_mov_b32 v6, 0
        buffer_load_ushort v220, v5, s[56:59], s8 offen
        buffer_load_ushort v221, v6, s[60:63], 0 offen
        v_lshlrev_b32 v222, 11, v3
        v_lshl_add_u32 v222, v2, 4, v222
        """)

    g(HEADER.rstrip())
    g(f"; @launch grid=(256,1,1) block=(512,1,1) lds={L_TOTAL}")
    g('.amdgcn_target "amdgcn-amd-amdhsa--gfx950"')
    g(".text")
    g(f".globl {KN}")
    g(".p2align 8")
    g(f".type {KN},@function")
    g(f"{KN}:")
    TS(0)
    g("""
    s_cmp_ge_u32 s2, 256
    s_cbranch_scc1 L_end
    s_load_dwordx16 s[16:31], s[0:1], 0
    s_load_dwordx8 s[32:39], s[0:1], 64
    s_load_dwordx2 s[40:41], s[0:1], 96
    v_lshrrev_b32 v4, 6, v0
    v_and_b32 v1, 63, v0
    v_readfirstlane_b32 s3, v4
    v_and_b32 v2, 15, v1
    v_lshrrev_b32 v3, 4, v1
    s_and_b32 s4, s2, 7
    s_lshr_b32 s5, s2, 3
    s_lshr_b32 s6, s5, 3
    s_and_b32 s7, s5, 7
    s_mov_b32 s42, 0xffff0000
    s_mov_b64 s[98:99], -1
    """)
    g(f"v_mov_b32 v219, {L_FL}\nv_mov_b32 v218, 1")
    g("""
    s_and_b32 s15, s3, 3
    s_lshl_b32 s8, s6, 3
    s_add_u32 s8, s8, s4
    s_lshl_b32 s8, s8, 21
    s_lshl_b32 s9, s7, 16
    s_add_u32 s8, s8, s9
    s_add_u32 s8, s8, 0x180000
    s_add_u32 s9, s2, s5
    s_add_u32 s9, s9, s15
    """)
    for i in range(4):
        g(f"s_add_u32 s{64+i}, s9, {4*i}\ns_and_b32 s{64+i}, s{64+i}, 15\ns_lshl_b32 s{64+i}, s{64+i}, 12\ns_add_u32 s{64+i}, s{64+i}, s8")
    g("s_waitcnt lgkmcnt(0)")
    srd(44, 40, 0x10000000)
    g(f"s_load_dword s94, s[40:41], {WS_E}")
    g("""
    s_cmp_ge_u32 s3, 4
    s_cbranch_scc1 L_B
    s_cmp_lg_u32 s3, 0
    s_cbranch_scc1 L_A123
    """)
    srd(48, 16, 4096)
    srd(52, 22, 0x400000)
    g("""
    v_and_b32 v4, 3, v1
    v_lshlrev_b32 v5, 10, v4
    v_lshrrev_b32 v6, 2, v1
    v_lshl_add_u32 v6, v6, 6, v5
    """)
    for i in range(4):
        g(f"buffer_load_dwordx4 v[{16+4*i}:{19+4*i}], v6, s[48:51], 0 offen offset:{16*i}")
    g("""
    v_lshrrev_b32 v7, 2, v2
    v_lshl_add_u32 v5, v7, 6, v5
    v_lshl_add_u32 v5, v3, 3, v5
    s_lshl_b32 s8, s6, 8
    buffer_load_dwordx2 v[32:33], v5, s[48:51], s8 offen
    buffer_load_dwordx2 v[34:35], v5, s[48:51], s8 offen offset:32
    v_lshrrev_b32 v6, 3, v1
    v_lshlrev_b32 v6, 13, v6
    v_and_b32 v8, 7, v1
    v_lshlrev_b32 v9, 1, v3
    v_xor_b32 v8, v8, v9
    v_lshl_add_u32 v6, v8, 4, v6
    s_lshl_b32 s8, s6, 20
    s_lshl_b32 s9, s4, 10
    s_add_u32 s8, s8, s9
    s_lshl_b32 s9, s7, 7
    s_add_u32 s8, s8, s9
    """)
    for i in range(16):
        g(f"s_mov_b32 m0, {L_WQT + 1024*i}")
        g(f"buffer_load_dwordx4 v6, s[52:55], s8 offen {wflags} lds")
        if i < 15:
            g("s_add_u32 s8, s8, 0x10000")
    g("s_barrier")
    TS(1)
    g("s_branch L_Q2")

    g("L_B:")
    srd(48, 18, 0x4000000)
    g("v_lshlrev_b32 v4, 8, v2\nv_lshl_add_u32 v4, v3, 4, v4")
    g("s_barrier")
    KR, QF, SA, PR = 16, 80, 96, 112
    n = 0
    for T in range(4):
        for t in range(4):
            r = KR + 16 * T + 4 * t
            g(f"buffer_load_dwordx4 v[{r}:{r+3}], v4, s[48:51], s{64+T} offen offset:{64*t} {kvflags}")
            n += 1
            if lim and n >= lim and n < 16:
                g(f"s_waitcnt vmcnt({lim-1})")
    signal(F_KISS)
    TS(1)
    g("""
    s_lshl_b32 s8, s4, 16
    s_lshl_b32 s9, s6, 14
    s_add_u32 s8, s8, s9
    s_lshl_b32 s9, s15, 10
    s_add_u32 s8, s8, s9
    """)
    g(f"s_add_u32 s8, s8, {WS_QS:#x}\ns_add_u32 s9, s8, 0x1000\ns_add_u32 s10, s8, 0x2000\ns_add_u32 s11, s8, 0x3000")
    g("v_lshlrev_b32 v5, 4, v1")
    g("s_mul_i32 s92, s94, 0x85ebca6b\ns_add_u32 s92, s92, 0x7f4a7c15\ns_mul_i32 s93, s94, 0x9e3779b1\ns_add_u32 s93, s93, 0x1b873593")
    for ks in range(4):
        g(f"s_mov_b64 s[{52+2*ks}:{53+2*ks}], -1")
    g("s_mov_b32 s71, 0")
    g("L_qpoll:")
    for ks in range(4):
        g(f"s_mov_b64 exec, s[{52+2*ks}:{53+2*ks}]")
        g(f"s_cbranch_execz L_qs{ks}")
        g(f"buffer_load_dwordx4 v[{QF+4*ks}:{QF+4*ks+3}], v5, s[44:47], s{8+ks} offen sc1")
        g(f"L_qs{ks}:")
    g("s_mov_b64 exec, -1")
    g("s_waitcnt vmcnt(0)")
    for ks in range(4):
        r = QF + 4 * ks
        g(f"v_xor_b32 v8, v{r+2}, v{r+1}")
        g(f"v_xor_b32 v9, v{r+3}, v{r}")
        g("v_xor_b32 v8, s92, v8")
        g("v_xor_b32 v9, s93, v9")
        g("v_or_b32 v8, v8, v9")
        g(f"v_cmp_ne_u32_e64 s[{52+2*ks}:{53+2*ks}], 0, v8")
    g(f"s_add_u32 s71, s71, 1\ns_cmp_ge_u32 s71, {maxpoll}\ns_cbranch_scc1 L_qdone")
    g("s_or_b64 s[12:13], s[52:53], s[54:55]\ns_or_b64 s[68:69], s[56:57], s[58:59]\ns_or_b64 s[12:13], s[12:13], s[68:69]")
    g("s_cbranch_scc1 L_qpoll")
    g("L_qdone:")
    g(f"v_pk_add_f32 v[{QF}:{QF+1}], v[{QF}:{QF+1}], v[{QF+4}:{QF+5}]")
    g(f"v_pk_add_f32 v[{QF+8}:{QF+9}], v[{QF+8}:{QF+9}], v[{QF+12}:{QF+13}]")
    g(f"v_pk_add_f32 v[{QF}:{QF+1}], v[{QF}:{QF+1}], v[{QF+8}:{QF+9}]")
    g(f"v_cvt_pk_bf16_f32 v8, v{QF}, v{QF+1}")
    g("v_lshlrev_b32 v9, 2, v1\ns_lshl_b32 s8, s15, 8\nv_add_u32 v9, s8, v9")
    g(f"ds_write_b32 v9, v8 offset:{L_QL}")
    signal(F_Q)
    tail_setup()
    g("""
    v_and_b32 v6, 3, v2
    v_lshlrev_b32 v7, 8, v6
    v_lshl_add_u32 v7, v3, 4, v7
    v_lshlrev_b32 v12, 5, v6
    s_lshl_b32 s11, s15, 3
    v_add_u32 v13, s11, v12
    v_lshlrev_b32 v14, 4, v1
    s_lshl_b32 s11, s15, 11
    v_add_u32 v14, s11, v14
    """)
    spin(F_Q, 4)
    TS(2)
    g("L_seg0:")
    for t in range(4):
        g(f"ds_read_b128 v[{QF+4*t}:{QF+4*t+3}], v7 offset:{L_QL + 64*t}")
    SC = 128 ** -0.5
    g(f"s_mov_b32 s8, {f2u(SC):#x}\ns_mov_b32 s9, {f2u(SC):#x}\ns_mov_b32 s10, {f2u(LOG2E):#x}")
    g("s_waitcnt lgkmcnt(0)")
    for T in range(4):
        for t in range(4):
            r = KR + 16 * T + 4 * t
            c = "0" if t == 0 else f"v[{SA+4*T}:{SA+4*T+3}]"
            g(f"v_mfma_f32_16x16x32_bf16 v[{SA+4*T}:{SA+4*T+3}], v[{r}:{r+3}], v[{QF+4*t}:{QF+4*t+3}], {c}")
    TM = 120
    for p in range(8):
        a = SA + 2 * p
        g(f"v_cvt_pk_bf16_f32 v{TM+p}, v{a}, v{a+1}")
    for p in range(8):
        a = SA + 2 * p
        g(f"v_lshlrev_b32 v{a}, 16, v{TM+p}")
        g(f"v_and_b32 v{a+1}, s42, v{TM+p}")
    for p in range(8):
        a = SA + 2 * p
        g(f"v_pk_mul_f32 v[{a}:{a+1}], v[{a}:{a+1}], s[8:9]")
    for p in range(8):
        a = SA + 2 * p
        g(f"v_cvt_pk_bf16_f32 v{TM+p}, v{a}, v{a+1}")
    for p in range(8):
        a = SA + 2 * p
        g(f"v_lshlrev_b32 v{a}, 16, v{TM+p}")
        g(f"v_and_b32 v{a+1}, s42, v{TM+p}")
    g(f"v_max3_f32 v8, v{SA}, v{SA+1}, v{SA+2}")
    g(f"v_max3_f32 v9, v{SA+3}, v{SA+4}, v{SA+5}")
    g(f"v_max3_f32 v10, v{SA+6}, v{SA+7}, v{SA+8}")
    g(f"v_max3_f32 v11, v{SA+9}, v{SA+10}, v{SA+11}")
    g(f"v_max3_f32 v8, v8, v{SA+12}, v{SA+13}")
    g(f"v_max3_f32 v9, v9, v{SA+14}, v{SA+15}")
    g("v_max3_f32 v8, v8, v9, v10\nv_max_f32 v8, v8, v11")
    g("v_mov_b32 v9, v8\nv_permlane32_swap_b32 v8, v9\nv_max_f32 v8, v8, v9")
    g("v_mov_b32 v9, v8\nv_permlane16_swap_b32 v8, v9\nv_max_f32 v8, v8, v9")
    g("v_mul_f32 v10, s10, v8")
    for e in range(16):
        g(f"v_fma_f32 v{SA+e}, v{SA+e}, s10, -v10")
    for e in range(16):
        g(f"v_exp_f32 v{SA+e}, v{SA+e}")
    for p in range(8):
        g(f"v_cvt_pk_bf16_f32 v{PR+p}, v{SA+2*p}, v{SA+2*p+1}")
    g(f"ds_write_b128 v14, v[{PR}:{PR+3}] offset:{L_PL}")
    g(f"ds_write_b128 v14, v[{PR+4}:{PR+7}] offset:{L_PL+1024}")
    for p in range(4):
        g(f"v_pk_add_f32 v[{SA+2*p}:{SA+2*p+1}], v[{SA+2*p}:{SA+2*p+1}], v[{SA+8+2*p}:{SA+9+2*p}]")
    for p in range(2):
        g(f"v_pk_add_f32 v[{SA+2*p}:{SA+2*p+1}], v[{SA+2*p}:{SA+2*p+1}], v[{SA+4+2*p}:{SA+5+2*p}]")
    g(f"v_pk_add_f32 v[{SA}:{SA+1}], v[{SA}:{SA+1}], v[{SA+2}:{SA+3}]")
    g(f"v_add_f32 v9, v{SA}, v{SA+1}")
    g("v_mov_b32 v11, v9\nv_permlane32_swap_b32 v9, v11\nv_add_f32 v9, v9, v11")
    g("v_mov_b32 v11, v9\nv_permlane16_swap_b32 v9, v11\nv_add_f32 v9, v9, v11")
    mask("15")
    g(f"ds_write_b64 v13, v[8:9] offset:{L_ST}")
    full()
    hook()
    g("s_lshl_b32 s11, s15, 2\nv_add_u32 v10, s11, v219")
    g("s_mov_b64 exec, 1")
    g(f"ds_add_u32 v10, v218 offset:{F_P}")
    g(f"ds_add_u32 v219, v218 offset:{F_ST}")
    g("s_mov_b64 exec, -1")
    TS(3)
    spin(F_ST, 4)
    g("s_lshl_b32 s11, s15, 5\nv_mov_b32 v12, s11")
    g(f"ds_read_b128 v[16:19], v12 offset:{L_ST}")
    g(f"ds_read_b128 v[20:23], v12 offset:{L_ST+16}")
    g("""
    s_lshl_b32 s8, s4, 9
    s_lshl_b32 s9, s15, 7
    s_add_u32 s8, s8, s9
    s_lshl_b32 s9, s5, 2
    s_add_u32 s8, s8, s9
    """)
    g(f"s_add_u32 s8, s8, {WS_LSE:#x}")
    g("s_waitcnt lgkmcnt(0)")
    g("v_max3_f32 v24, v16, v18, v20\nv_max_f32 v24, v24, v22")
    for i in range(4):
        g(f"v_sub_f32 v{28+i}, v{16+2*i}, v24")
        g(f"v_mul_f32 v{28+i}, s10, v{28+i}")
        g(f"v_exp_f32 v{28+i}, v{28+i}")
    g("v_mul_f32 v25, v28, v17")
    for i in range(1, 4):
        g(f"v_fmac_f32 v25, v{28+i}, v{17+2*i}")
    g("v_rcp_f32 v26, v25\nv_log_f32 v25, v25")
    for i in range(4):
        g(f"v_mul_f32 v{28+i}, v{28+i}, v26")
    g("v_fma_f32 v25, v24, s10, v25\nv_min_u32 v25, -2, v25")
    g("s_lshl_b32 s11, s15, 4\nv_mov_b32 v12, s11\nv_mov_b32 v13, 0")
    g("s_mov_b64 exec, 1")
    g(f"ds_write_b128 v12, v[28:31] offset:{L_FT}")
    g("buffer_store_dword v25, v13, s[44:47], s8 offen sc1")
    g("s_mov_b64 exec, -1")
    spin(F_MW, 1)
    mw_prep()
    g("v_lshlrev_b32 v5, 3, v1")
    g(f"s_lshl_b32 s8, s15, 9\ns_add_u32 s8, s8, {WS_T:#x}")
    g("s_mov_b32 s71, 0")
    g("L_tchk:")
    g("buffer_load_dwordx2 v[16:17], v5, s[44:47], s8 offen sc1")
    g("s_waitcnt vmcnt(0)")
    g("v_xor_b32 v16, s92, v16\nv_xor_b32 v17, s93, v17\nv_or_b32 v16, v16, v17")
    g("v_cmp_ne_u32 vcc, 0, v16")
    g(f"s_add_u32 s71, s71, 1\ns_cmp_ge_u32 s71, {maxpoll}\ns_cbranch_scc1 L_tdone")
    g("s_cmp_lg_u64 vcc, 0\ns_cbranch_scc1 L_tchk")
    g("L_tdone:")
    signal(F_ST)
    srd(52, 24, 0x400000)
    g("""
    v_and_b32 v7, 1, v3
    v_lshlrev_b32 v8, 6, v7
    v_bfe_u32 v9, v1, 2, 2
    v_lshl_add_u32 v8, v9, 3, v8
    v_lshrrev_b32 v9, 5, v1
    v_add_u32 v8, v8, v9
    v_lshlrev_b32 v8, 10, v8
    v_and_b32 v9, 3, v1
    v_lshlrev_b32 v7, 1, v7
    v_xor_b32 v9, v9, v7
    v_lshl_add_u32 v8, v9, 4, v8
    s_lshl_b32 s8, s4, 19
    s_lshr_b32 s9, s5, 4
    s_lshl_b32 s9, s9, 18
    s_add_u32 s8, s8, s9
    s_and_b32 s9, s5, 15
    s_lshl_b32 s9, s9, 6
    s_add_u32 s8, s8, s9
    s_lshr_b32 s9, s15, 1
    s_lshl_b32 s9, s9, 17
    s_add_u32 s8, s8, s9
    s_and_b32 s9, s15, 1
    s_lshl_b32 s9, s9, 12
    s_add_u32 s8, s8, s9
    s_lshl_b32 s12, s15, 12
    """)
    g(f"s_add_u32 s12, s12, {L_WOT}")
    g("""
    s_lshr_b32 s9, s5, 4
    s_lshl_b32 s9, s9, 1
    s_lshr_b32 s10, s15, 1
    s_add_u32 s9, s9, s10
    s_lshl_b32 s10, s4, 15
    s_lshl_b32 s11, s9, 8
    s_add_u32 s10, s10, s11
    s_and_b32 s11, s15, 1
    s_lshl_b32 s11, s11, 7
    s_add_u32 s10, s10, s11
    """)
    g(f"s_add_u32 s68, s10, {WS_O:#x}\ns_add_u32 s69, s68, 0x1000")
    g("""
    v_lshrrev_b32 v6, 2, v2
    v_and_b32 v7, 3, v2
    v_lshlrev_b32 v224, 13, v6
    v_lshl_add_u32 v224, v7, 10, v224
    v_lshl_add_u32 v224, v3, 4, v224
    v_lshrrev_b32 v7, 2, v2
    v_lshl_add_u32 v7, v3, 2, v7
    v_lshlrev_b32 v7, 6, v7
    v_and_b32 v9, 3, v2
    v_lshl_add_u32 v7, v9, 3, v7
    v_and_b32 v9, 1, v3
    v_lshl_add_u32 v225, v9, 5, v7
    v_xor_b32 v9, 1, v9
    v_lshl_add_u32 v226, v9, 5, v7
    v_add_u32 v225, s12, v225
    v_add_u32 v226, s12, v226
    v_lshlrev_b32 v227, 5, v3
    s_lshr_b32 s10, s15, 1
    s_lshl_b32 s10, s10, 7
    v_add_u32 v227, s10, v227
    v_lshlrev_b32 v228, 3, v1
    s_lshl_b32 s10, s15, 9
    v_add_u32 v228, s10, v228
    """)
    g("s_cmp_lg_u32 s3, 4\ns_cbranch_scc1 L_nowt")
    spin(F_ST, 8)
    g("""
    s_lshl_b32 s10, s4, 9
    s_lshr_b32 s11, s5, 4
    s_lshl_b32 s11, s11, 8
    s_add_u32 s10, s10, s11
    v_lshlrev_b32 v5, 2, v1
    s_mov_b32 s71, 0
    """)
    g(f"s_add_u32 s10, s10, {WS_LSE:#x}")
    g("L_lchk:")
    g("buffer_load_dword v16, v5, s[44:47], s10 offen sc1")
    g("s_waitcnt vmcnt(0)")
    g("v_cmp_eq_u32 vcc, -1, v16")
    g(f"s_add_u32 s71, s71, 1\ns_cmp_ge_u32 s71, {maxpoll}\ns_cbranch_scc1 L_ldone")
    g("s_cmp_lg_u64 vcc, 0\ns_cbranch_scc1 L_lchk")
    g("L_ldone:")
    g("v_mov_b32 v17, v16")
    for m in ["quad_perm:[1,0,3,2]", "quad_perm:[2,3,0,1]", "row_half_mirror"]:
        g(f"v_max_f32_dpp v17, v17, v17 {m} row_mask:0xf bank_mask:0xf")
    g("v_sub_f32 v16, v16, v17\nv_exp_f32 v16, v16\nv_mov_b32 v17, v16")
    for m in ["quad_perm:[1,0,3,2]", "quad_perm:[2,3,0,1]", "row_half_mirror"]:
        g(f"v_add_f32_dpp v17, v17, v17 {m} row_mask:0xf bank_mask:0xf")
    g("v_rcp_f32 v17, v17\nv_mul_f32 v16, v16, v17")
    g(f"ds_write_b32 v5, v16 offset:{L_WT}")
    g("L_nowt:")
    spin(F_VISS, 4)
    for i in range(4):
        dI = 32 * (i & 1) + 2 * (i >> 1)
        g(f"s_add_u32 s9, s8, {dI*1024:#x}")
        g(f"s_add_u32 m0, s12, {1024*i}")
        g(f"buffer_load_dwordx4 v8, s[52:55], s9 offen {wflags} lds")
    g("s_waitcnt lgkmcnt(0)")
    g("s_barrier")
    TS(4)
    g("L_seg3:")
    PAY = 16
    u = skipz_begin()
    for hf in range(2):
        for kb in range(2):
            r = PAY + 8 * hf + 4 * kb
            g(f"buffer_load_dwordx4 v[{r}:{r+3}], v224, s[44:47], s{68+hf} offen offset:{64*kb} sc1")
    skipz_end(u)
    g(f"ds_read_b128 v[64:67], v227 offset:{L_WT}")
    g(f"ds_read_b128 v[68:71], v227 offset:{L_WT+16}")
    g("s_waitcnt vmcnt(4)")
    WF = 32
    for kb in range(2):
        for mt in range(2):
            r = WF + 8 * kb + 4 * mt
            g(f"ds_read_b64_tr_b16 v[{r}:{r+1}], v{225+mt} offset:{2048*kb}")
            g(f"ds_read_b64_tr_b16 v[{r+2}:{r+3}], v{225+mt} offset:{2048*kb+1024}")
    g("s_mov_b32 s71, 0")
    g("L_h1chk:")
    g("""
    s_waitcnt vmcnt(0)
    v_max3_u32 v8, v16, v17, v18
    v_max3_u32 v9, v24, v25, v26
    v_max3_u32 v8, v8, v19, v20
    v_max3_u32 v9, v9, v27, v28
    v_max3_u32 v8, v8, v21, v22
    v_max3_u32 v9, v9, v29, v30
    v_max_u32 v8, v8, v23
    v_max_u32 v9, v9, v31
    v_cmp_eq_u32_e64 s[52:53], -1, v8
    v_cmp_eq_u32_e64 s[54:55], -1, v9
    s_or_b64 s[56:57], s[52:53], s[54:55]
    s_cbranch_scc0 L_h1done
    """)
    g(f"s_add_u32 s71, s71, 1\ns_cmp_ge_u32 s71, {maxpoll}\ns_cbranch_scc1 L_h1done")
    for hf in range(2):
        g(f"s_mov_b64 exec, s[{52+2*hf}:{53+2*hf}]")
        g(f"s_cbranch_execz L_h1s{hf}")
        for kb in range(2):
            r = PAY + 8 * hf + 4 * kb
            g(f"buffer_load_dwordx4 v[{r}:{r+3}], v224, s[44:47], s{68+hf} offen offset:{64*kb} sc1")
        g(f"L_h1s{hf}:")
    g("s_mov_b64 exec, -1\ns_branch L_h1chk")
    g("L_h1done:")
    g("s_waitcnt lgkmcnt(0)")
    TS(5)
    DD = 48
    for kb in range(2):
        for mt in range(2):
            for hf in range(2):
                d = DD + 8 * mt + 4 * hf
                a = PAY + 8 * hf + 4 * kb
                b_ = WF + 8 * kb + 4 * mt
                c = "0" if kb == 0 else f"v[{d}:{d+3}]"
                g(f"v_mfma_f32_16x16x32_bf16 v[{d}:{d+3}], v[{a}:{a+3}], v[{b_}:{b_+3}], {c}")
    for mt in range(2):
        d = DD + 8 * mt
        g(f"v_pk_mul_f32 v[{d}:{d+1}], v[{d}:{d+1}], v[64:65]")
    for q in range(1, 4):
        for mt in range(2):
            d = DD + 8 * mt
            g(f"v_pk_fma_f32 v[{d}:{d+1}], v[{d+2*q}:{d+2*q+1}], v[{64+2*q}:{65+2*q}], v[{d}:{d+1}]")
    g(f"v_add_f32 v8, v{DD}, v{DD+1}\nv_add_f32 v9, v{DD+8}, v{DD+9}")
    g(f"ds_write_b64 v228, v[8:9] offset:{L_GP}")
    g("s_waitcnt lgkmcnt(0)")
    hook()
    g("s_branch L_B5")

    g("L_Q2:")
    g("s_waitcnt vmcnt(18)")
    g("s_mov_b32 s8, 0x3f803f80\nv_mov_b32 v10, 0\nv_mov_b32 v11, 0\nv_mov_b32 v12, 0\nv_mov_b32 v13, 0")
    for i in range(0, 16, 2):
        g(f"v_dot2_f32_bf16 v10, v{16+i}, s8, v10")
        g(f"v_dot2_f32_bf16 v11, v{16+i}, v{16+i}, v11")
        g(f"v_dot2_f32_bf16 v12, v{17+i}, s8, v12")
        g(f"v_dot2_f32_bf16 v13, v{17+i}, v{17+i}, v13")
    g("s_nop 2")
    g("v_pk_add_f32 v[10:11], v[10:11], v[12:13]")
    for m in ("row_ror:4", "row_ror:8"):
        g(f"v_add_f32_dpp v10, v10, v10 {m} row_mask:0xf bank_mask:0xf")
        g(f"v_add_f32_dpp v11, v11, v11 {m} row_mask:0xf bank_mask:0xf")
    for sw in ("v_permlane32_swap_b32", "v_permlane16_swap_b32"):
        g("v_mov_b32 v12, v10\nv_mov_b32 v13, v11")
        g(f"{sw} v10, v12\n{sw} v11, v13")
        g("v_pk_add_f32 v[10:11], v[10:11], v[12:13]")
    g(f"s_mov_b32 s8, {f2u(1.0/512):#x}\ns_mov_b32 s9, {f2u(1.0/512):#x}\ns_mov_b32 s10, {f2u(1e-5):#x}")

    def ln_scalar(m, v, t):
        g(f"v_pk_mul_f32 v[{m}:{v}], v[{m}:{v}], s[8:9]")
        g(f"v_fma_f32 v{v}, -v{m}, v{m}, v{v}")
        g(f"v_max_f32 v{v}, 0, v{v}")
        g(f"v_cvt_pk_bf16_f32 v{t}, v{m}, v{v}")
        g(f"v_and_b32 v{v}, s42, v{t}")
        g(f"v_lshlrev_b32 v{m}, 16, v{t}")
        g(f"v_add_f32 v{v}, s10, v{v}")
        g(f"v_cvt_pk_bf16_f32 v{t}, v{v}, v{v}")
        g(f"v_and_b32 v{v}, s42, v{t}")
        g(f"v_sqrt_f32 v{v}, v{v}")
        g(f"v_cvt_pk_bf16_f32 v{t}, v{v}, v{v}")
        g(f"v_and_b32 v{v}, s42, v{t}")
        g(f"v_rcp_f32 v{v}, v{v}")
    ln_scalar(10, 11, 12)
    g("s_waitcnt vmcnt(16)")
    for d in range(4):
        a = 16 + 2 * d
        g(f"v_lshlrev_b32 v{a}, 16, v{32+d}\nv_and_b32 v{a+1}, s42, v{32+d}")
    for d in range(4):
        a = 16 + 2 * d
        g(f"v_pk_add_f32 v[{a}:{a+1}], v[{a}:{a+1}], v[10:11] op_sel:[0,0] op_sel_hi:[1,0] neg_lo:[0,1] neg_hi:[0,1]")
    for d in range(4):
        a = 16 + 2 * d
        g(f"v_cvt_pk_bf16_f32 v{32+d}, v{a}, v{a+1}")
    for d in range(4):
        a = 16 + 2 * d
        g(f"v_lshlrev_b32 v{a}, 16, v{32+d}\nv_and_b32 v{a+1}, s42, v{32+d}")
    for d in range(4):
        a = 16 + 2 * d
        g(f"v_pk_mul_f32 v[{a}:{a+1}], v[{a}:{a+1}], v[10:11] op_sel:[0,1] op_sel_hi:[1,1]")
    for d in range(4):
        a = 16 + 2 * d
        g(f"v_cvt_pk_bf16_f32 v{32+d}, v{a}, v{a+1}")
    g("""
    v_lshlrev_b32 v8, 8, v4
    v_lshl_add_u32 v8, v3, 4, v8
    v_lshl_add_u32 v9, v7, 6, v8
    """)
    g(f"ds_write_b128 v9, v[32:35] offset:{L_XN}")
    for kb in range(4):
        g(f"ds_read_b128 v[{36+4*kb}:{39+4*kb}], v8 offset:{L_XN + 64*kb}")
    g("""
    v_lshrrev_b32 v9, 2, v2
    v_lshl_add_u32 v9, v3, 2, v9
    v_bfe_u32 v14, v9, 1, 2
    v_lshlrev_b32 v9, 7, v9
    v_lshl_add_u32 v9, v4, 3, v9
    """)
    for mt in range(4):
        g(f"v_xor_b32 v15, {mt}, v14")
        g(f"v_lshl_add_u32 v{10+mt}, v15, 5, v9")
    g("s_mul_i32 s92, s94, 0x85ebca6b\ns_add_u32 s92, s92, 0x7f4a7c15\ns_mul_i32 s93, s94, 0x9e3779b1\ns_add_u32 s93, s93, 0x1b873593")
    AF = 52
    for kb in range(4):
        g(f"s_waitcnt vmcnt({12-4*kb})")
        for mt in range(4):
            r = AF + 16 * kb + 4 * mt
            g(f"ds_read_b64_tr_b16 v[{r}:{r+1}], v{10+mt} offset:{L_WQT + 4096*kb}")
            g(f"ds_read_b64_tr_b16 v[{r+2}:{r+3}], v{10+mt} offset:{L_WQT + 4096*kb + 2048}")
    TS(2)
    for z in (1, 2, 3):
        g(f"v_cmp_eq_u32_e64 s[{50+2*z}:{51+2*z}], {z}, v7")
    g("""
    v_lshlrev_b32 v8, 14, v4
    v_lshl_add_u32 v8, v7, 7, v8
    v_lshl_add_u32 v8, v3, 5, v8
    s_lshl_b32 s8, s4, 16
    s_lshl_b32 s9, s6, 12
    s_add_u32 s8, s8, s9
    s_lshl_b32 s9, s7, 9
    s_add_u32 s8, s8, s9
    """)
    g(f"s_add_u32 s8, s8, {WS_QS:#x}")
    g("s_waitcnt lgkmcnt(0)")
    QD = 116
    for kb in range(4):
        for mt in range(4):
            r = AF + 16 * kb + 4 * mt
            c = "0" if kb == 0 else f"v[{QD+4*mt}:{QD+4*mt+3}]"
            g(f"v_mfma_f32_16x16x32_bf16 v[{QD+4*mt}:{QD+4*mt+3}], v[{r}:{r+3}], v[{36+4*kb}:{39+4*kb}], {c}")
    for z in (1, 2, 3):
        for i in range(4):
            g(f"v_cndmask_b32_e64 v{QD+i}, v{QD+i}, v{QD+4*z+i}, s[{50+2*z}:{51+2*z}]")
    g(f"""
    v_mov_b32 v16, v{QD}
    v_mov_b32 v17, v{QD+1}
    v_xor_b32 v18, s92, v{QD+1}
    v_xor_b32 v19, s93, v{QD}
    v_mov_b32 v20, v{QD+2}
    v_mov_b32 v21, v{QD+3}
    v_xor_b32 v22, s92, v{QD+3}
    v_xor_b32 v23, s93, v{QD+2}
    buffer_store_dwordx4 v[16:19], v8, s[44:47], s8 offen sc1
    buffer_store_dwordx4 v[20:23], v8, s[44:47], s8 offen offset:16 sc1
    """)
    TS(3)
    g("s_branch L_A")

    g("L_A123:")
    g("s_cmp_lg_u32 s3, 1\ns_cbranch_scc1 L_A23")
    g("v_lshlrev_b32 v4, 2, v2\nv_mov_b32 v5, 0")
    g(f"ds_write_b32 v4, v5 offset:{L_FL}")
    srd(48, 28, 3584)
    srd(52, 30, 3584)
    srd(56, 32, 3584)
    g("v_lshlrev_b32 v6, 4, v1")
    g("s_waitcnt lgkmcnt(0)")
    g("s_barrier")
    for a in range(3):
        g(f"s_mov_b32 m0, {L_MW + 4096*a}")
        for i in range(4):
            g(f"buffer_load_dwordx4 v6, s[{48+4*a}:{51+4*a}], 0 offen offset:{1024*i} lds")
    g("s_mov_b32 s96, 0\ns_mov_b32 s95, 2")
    g("s_branch L_dry_go")
    g("L_A23:")
    g("s_barrier")
    g("s_mov_b32 s96, 5\ns_mov_b32 s95, 7")
    g("s_cmp_lg_u32 s3, 2\ns_cbranch_scc1 L_dry_go")
    g("""
    s_lshl_b32 s11, s4, 5
    s_add_u32 s11, s11, s5
    v_mov_b32 v8, -1
    v_mov_b32 v9, -1
    v_mov_b32 v10, -1
    v_mov_b32 v11, -1
    v_lshlrev_b32 v4, 4, v1
    """)
    g(f"s_lshl_b32 s12, s11, 10\ns_add_u32 s12, s12, {WS_O:#x}")
    g("buffer_store_dwordx4 v[8:11], v4, s[44:47], s12 offen sc1")
    g("""
    v_lshlrev_b32 v5, 15, v3
    v_lshl_add_u32 v5, v2, 3, v5
    s_lshr_b32 s13, s5, 4
    s_lshl_b32 s14, s4, 1
    s_add_u32 s13, s13, s14
    s_lshl_b32 s13, s13, 11
    s_and_b32 s14, s5, 15
    s_lshl_b32 s14, s14, 7
    s_add_u32 s13, s13, s14
    """)
    g(f"s_add_u32 s13, s13, {WS_H2:#x}")
    g("buffer_store_dwordx2 v[8:9], v5, s[44:47], s13 offen sc1")
    g("v_lshlrev_b32 v5, 7, v1")
    g(f"s_lshl_b32 s14, s4, 9\ns_lshl_b32 s9, s5, 2\ns_add_u32 s14, s14, s9\ns_add_u32 s14, s14, {WS_LSE:#x}")
    g("s_mov_b64 exec, 15")
    g("buffer_store_dword v8, v5, s[44:47], s14 offen sc1")
    g("s_mov_b64 exec, -1")
    g("s_mov_b32 s96, 2\ns_mov_b32 s95, 5")
    g("L_dry_go:")
    if dry:
        g("s_mov_b64 s[98:99], 0\ns_mov_b64 exec, 0\ns_mov_b32 s97, 0")
        g("s_sub_u32 s96, s96, 1")
        g("L_dry_ret:")
        g("s_add_u32 s96, s96, 1")
        g("s_cmp_eq_u32 s96, s95\ns_cbranch_scc1 L_dry_done")
        for k in range(7):
            g(f"s_cmp_eq_u32 s96, {k}\ns_cbranch_scc1 L_seg{k}")
        g("L_dry_done:")
        g("s_mov_b64 s[98:99], -1\ns_mov_b64 exec, -1")
    g("s_waitcnt vmcnt(0) lgkmcnt(0)")
    g("s_cmp_lg_u32 s3, 1\ns_cbranch_scc1 L_A2t")
    signal(F_MW)
    g("L_A2t:")
    g("s_cmp_lg_u32 s3, 2\ns_cbranch_scc1 L_A")
    g("s_mul_i32 s92, s94, 0x85ebca6b\ns_add_u32 s92, s92, 0x7f4a7c15\ns_mul_i32 s93, s94, 0x9e3779b1\ns_add_u32 s93, s93, 0x1b873593")
    g("v_mov_b32 v8, s92\nv_mov_b32 v9, s93\nv_mov_b32 v5, 0")
    g(f"s_lshl_b32 s9, s2, 3\ns_add_u32 s9, s9, {WS_T:#x}")
    g("s_mov_b64 exec, 1")
    g("buffer_store_dwordx2 v[8:9], v5, s[44:47], s9 offen sc1")
    g("s_mov_b64 exec, -1")

    g("L_A:")
    tail_setup()
    srd(48, 20, 0x4000000)
    spin(F_MW, 1)
    mw_prep()
    g("""
    v_lshlrev_b32 v5, 4, v2
    v_lshl_add_u32 v5, v3, 10, v5
    v_lshlrev_b32 v14, 4, v1
    s_lshl_b32 s11, s15, 11
    v_add_u32 v14, s11, v14
    s_lshl_b32 s11, s15, 2
    v_add_u32 v10, s11, v219
    """)
    g(f"v_mul_u32_u24 v224, {OPH}, v2")
    g("v_lshl_add_u32 v224, v3, 4, v224")
    g(f"s_mul_i32 s11, s15, {OPW}\nv_add_u32 v224, s11, v224")
    g(f"v_lshlrev_b32 v225, 3, v1\ns_mul_i32 s11, s15, {OPH}\nv_add_u32 v225, s11, v225")
    g("s_lshl_b32 s11, s15, 4\nv_mov_b32 v226, s11")
    g("v_lshlrev_b32 v227, 2, v1")
    g(f"s_lshl_b32 s11, s4, 5\ns_add_u32 s11, s11, s5\ns_lshl_b32 s11, s11, 10\ns_lshl_b32 s12, s15, 8\ns_add_u32 s11, s11, s12\ns_add_u32 s68, s11, {WS_O:#x}")
    g("s_mov_b32 s12, 0x05040100\ns_mov_b32 s13, 0x07060302\ns_mov_b32 s52, 0x000f000f\ns_mov_b32 s53, 0x000f000f")
    g("s_waitcnt vmcnt(0)")
    spin(F_KISS, 4)
    TS(4)
    VR, AO, AT, PA = 16, 80, 112, 128
    PA = 230
    n = 0
    for T in range(4):
        for i in range(4):
            r = VR + 16 * T + 4 * i
            g(f"buffer_load_dwordx4 v[{r}:{r+3}], v5, s[48:51], s{64+T} offen offset:{256*i} {kvflags}")
            n += 1
            if lim and n >= lim and n < 16:
                g(f"s_waitcnt vmcnt({lim-1})")
    signal(F_VISS)
    TS(5)
    spin(F_P, 1, vaddr="v10")
    g("L_seg1:")
    g(f"ds_read_b128 v[{PA}:{PA+3}], v14 offset:{L_PL}")
    g(f"ds_read_b128 v[{PA+4}:{PA+7}], v14 offset:{L_PL+1024}")
    g("s_waitcnt lgkmcnt(0)")
    for u_ in range(2):
        for half in range(2):
            for q in range(4):
                T = 2 * u_ + (q >> 1)
                i0 = 2 * (q & 1)
                if half == 0:
                    done = 4 * T + i0 + 2
                    g(f"s_waitcnt vmcnt({16-done})")
                a = VR + 16 * T + 4 * i0
                b_ = a + 4
                tb = AT if half == 0 else VR + 32 * u_ + 0
                for dwl in range(2):
                    dw = 2 * half + dwl
                    if half == 0:
                        g(f"v_perm_b32 v{AT+4*(2*dwl)+q}, v{b_+dw}, v{a+dw}, s12")
                        g(f"v_perm_b32 v{AT+4*(2*dwl+1)+q}, v{b_+dw}, v{a+dw}, s13")
                    else:
                        g(f"v_perm_b32 v{238+4*(2*dwl)+q}, v{b_+dw}, v{a+dw}, s12")
                        g(f"v_perm_b32 v{238+4*(2*dwl+1)+q}, v{b_+dw}, v{a+dw}, s13")
            for jl in range(4):
                j = 4 * half + jl
                base = AT if half == 0 else 238
                c = "0" if u_ == 0 else f"v[{AO+4*j}:{AO+4*j+3}]"
                g(f"v_mfma_f32_16x16x32_bf16 v[{AO+4*j}:{AO+4*j+3}], v[{base+4*jl}:{base+4*jl+3}], v[{PA+4*u_}:{PA+4*u_+3}], {c}")
    mask("s[52:53]")
    for j in range(8):
        g(f"ds_write_b128 v224, v[{AO+4*j}:{AO+4*j+3}] offset:{L_OP + 64*j}")
    full()
    TS(6)
    g("s_waitcnt lgkmcnt(0)")
    hook()
    g("s_barrier")
    g("L_seg2:")
    g(f"ds_read_b128 v[24:27], v226 offset:{L_FT}")
    for w in range(4):
        g(f"ds_read_b64 v[{16+2*w}:{17+2*w}], v225 offset:{L_OP + OPW*w}")
    g("s_waitcnt lgkmcnt(0)")
    g("v_pk_mul_f32 v[16:17], v[16:17], v[24:25] op_sel:[0,0] op_sel_hi:[1,0]")
    g("v_pk_mul_f32 v[20:21], v[20:21], v[26:27] op_sel:[0,0] op_sel_hi:[1,0]")
    g("v_pk_fma_f32 v[16:17], v[18:19], v[24:25], v[16:17] op_sel:[0,1,0] op_sel_hi:[1,1,1]")
    g("v_pk_fma_f32 v[20:21], v[22:23], v[26:27], v[20:21] op_sel:[0,1,0] op_sel_hi:[1,1,1]")
    g("v_pk_add_f32 v[16:17], v[16:17], v[20:21]")
    g("v_cvt_pk_bf16_f32 v16, v16, v17\nv_min_u32 v16, -2, v16")
    hook()
    g("buffer_store_dword v16, v227, s[44:47], s68 offen sc1")
    TS(7)

    g("L_B5:")
    g("""
    s_lshl_b32 s8, s43, 15
    s_lshl_b32 s9, s3, 8
    s_add_u32 s8, s8, s9
    """)
    g(f"s_add_u32 s64, s8, {WS_H2:#x}\ns_add_u32 s65, s64, 0x2000\ns_add_u32 s66, s64, 0x4000\ns_add_u32 s67, s64, 0x6000")
    g("""
    s_lshr_b32 s13, s5, 4
    s_lshl_b32 s14, s4, 1
    s_add_u32 s13, s13, s14
    s_lshl_b32 s13, s13, 11
    s_and_b32 s14, s5, 15
    s_lshl_b32 s14, s14, 7
    s_add_u32 s13, s13, s14
    v_lshlrev_b32 v5, 15, v3
    v_lshl_add_u32 v5, v2, 3, v5
    v_lshlrev_b32 v6, 3, v1
    v_lshlrev_b32 v220, 16, v220
    v_lshlrev_b32 v221, 16, v221
    s_mov_b32 s97, s3
    """)
    g(f"s_add_u32 s13, s13, {WS_H2:#x}")
    g(f"s_mov_b32 s8, {f2u(1.0/512):#x}\ns_mov_b32 s9, {f2u(1.0/512):#x}\ns_mov_b32 s10, {f2u(1e-5):#x}")
    g("s_lshl_b32 s11, s3, 3\nv_lshrrev_b32 v7, 5, v1\nv_lshlrev_b32 v7, 2, v7\nv_add_u32 v7, s11, v7")
    g("s_mov_b32 s60, 0x80000000\ns_mov_b32 s61, 0x80000000")
    g("s_lshr_b32 s11, s2, 2\ns_lshl_b32 s11, s11, 3\ns_add_u32 s11, s11, s3")
    g("s_lshl_b32 s12, s11, 2\nv_mov_b32 v15, s12\nv_mov_b32 v14, 0")
    g("s_barrier")
    if dbg:
        g("s_cmp_lt_u32 s3, 4\ns_cbranch_scc1 L_ts6")
        TS(6)
        g("L_ts6:")
    g("L_seg4:")
    g("s_cmp_lg_u32 s97, 0\ns_cbranch_scc1 L_H2")
    for w in range(4):
        g(f"ds_read_b64 v[{16+2*w}:{17+2*w}], v6 offset:{L_GP + 512*w}")
    g("s_waitcnt lgkmcnt(0)")
    g("v_pk_add_f32 v[16:17], v[16:17], v[18:19]\nv_pk_add_f32 v[20:21], v[20:21], v[22:23]\nv_pk_add_f32 v[32:33], v[16:17], v[20:21]")
    g("v_min_u32 v32, -2, v32\nv_min_u32 v33, -2, v33")
    u = skipz_begin()
    g("buffer_store_dwordx2 v[32:33], v5, s[44:47], s13 offen sc1")
    skipz_end(u)
    g("L_H2:")
    if dbg:
        g("s_cmp_ge_u32 s3, 4\ns_cbranch_scc1 L_ts8")
        TS(8)
        g("L_ts8:")
    u = skipz_begin()
    for i in range(4):
        g(f"buffer_load_dwordx4 v[{16+4*i}:{19+4*i}], v222, s[44:47], s{64+i} offen sc1")
    skipz_end(u)
    g("s_mov_b32 s71, 0")
    g("L_h2chk:")
    g("s_waitcnt vmcnt(0)")
    for i in range(4):
        g(f"v_max3_u32 v{8+i}, v{16+4*i}, v{17+4*i}, v{18+4*i}")
    for i in range(4):
        g(f"v_max_u32 v{8+i}, v{8+i}, v{19+4*i}")
    g("v_max3_u32 v12, v8, v9, v10\nv_max_u32 v12, v12, v11")
    g("v_cmp_eq_u32 vcc, -1, v12")
    g("s_cmp_eq_u64 vcc, 0\ns_cbranch_scc1 L_h2done")
    g(f"s_add_u32 s71, s71, 1\ns_cmp_ge_u32 s71, {maxpoll}\ns_cbranch_scc1 L_h2done")
    for i in range(4):
        g(f"v_cmp_eq_u32_e64 s[{52+2*i}:{53+2*i}], -1, v{8+i}")
    for i in range(4):
        g(f"s_mov_b64 exec, s[{52+2*i}:{53+2*i}]")
        g(f"s_cbranch_execz L_h2s{i}")
        g(f"buffer_load_dwordx4 v[{16+4*i}:{19+4*i}], v222, s[44:47], s{64+i} offen sc1")
        g(f"L_h2s{i}:")
    g("s_mov_b64 exec, -1\ns_branch L_h2chk")
    g("L_h2done:")
    if dbg:
        g("s_cmp_ge_u32 s3, 4\ns_cbranch_scc1 L_ts9")
        TS(9)
        g("L_ts9:")
    g("""
    v_pk_add_f32 v[16:17], v[16:17], v[20:21]
    v_pk_add_f32 v[18:19], v[18:19], v[22:23]
    v_pk_add_f32 v[24:25], v[24:25], v[28:29]
    v_pk_add_f32 v[26:27], v[26:27], v[30:31]
    v_pk_add_f32 v[16:17], v[16:17], v[24:25]
    v_pk_add_f32 v[18:19], v[18:19], v[26:27]
    v_permlane32_swap_b32 v16, v17
    v_permlane32_swap_b32 v18, v19
    v_add_f32 v16, v16, v17
    v_add_f32 v18, v18, v19
    v_permlane16_swap_b32 v16, v18
    v_add_f32 v16, v16, v18
    v_cvt_pk_bf16_f32 v16, v16, v16
    v_and_b32 v16, s42, v16
    v_add_f32 v16, v16, v220
    v_cvt_pk_bf16_f32 v16, v16, v16
    v_and_b32 v16, s42, v16
    """)

    def wave_stats(x, st_off, arr_off):
        g(f"ds_write_b32 v223, v{x} offset:{arr_off}")
        g(f"v_mul_f32 v19, v{x}, v{x}\nv_mov_b32 v18, v{x}")
        g("v_permlane32_swap_b32 v18, v19\nv_add_f32 v18, v18, v19")
        for m in ["row_shr:1 row_mask:0xf bank_mask:0xf bound_ctrl:0", "row_shr:2 row_mask:0xf bank_mask:0xf bound_ctrl:0",
                  "row_shr:4 row_mask:0xf bank_mask:0xf bound_ctrl:0", "row_shr:8 row_mask:0xf bank_mask:0xf bound_ctrl:0",
                  "row_bcast:15 row_mask:0xa bank_mask:0xf"]:
            g(f"v_add_f32_dpp v18, v18, v18 {m}")
        mask("s[60:61]")
        g(f"ds_write_b32 v7, v18 offset:{st_off}")
        full()
        g("s_waitcnt lgkmcnt(0)")
        hook()
        g("s_barrier")

    def read_stats(st_off):
        for i in range(4):
            g(f"ds_read_b128 v[{20+4*i}:{23+4*i}], v14 offset:{st_off + 16*i}")

    def sum_stats():
        g("""
        v_pk_add_f32 v[20:21], v[20:21], v[22:23]
        v_pk_add_f32 v[24:25], v[24:25], v[26:27]
        v_pk_add_f32 v[28:29], v[28:29], v[30:31]
        v_pk_add_f32 v[32:33], v[32:33], v[34:35]
        v_pk_add_f32 v[20:21], v[20:21], v[24:25]
        v_pk_add_f32 v[28:29], v[28:29], v[32:33]
        v_pk_add_f32 v[20:21], v[20:21], v[28:29]
        """)

    def ln_elem(x):
        g(f"v_sub_f32 v{x}, v{x}, v20")
        g(f"v_cvt_pk_bf16_f32 v{x}, v{x}, v{x}\nv_and_b32 v{x}, s42, v{x}")
        g(f"v_mul_f32 v{x}, v{x}, v21")
        g(f"v_cvt_pk_bf16_f32 v{x}, v{x}, v{x}\nv_and_b32 v{x}, s42, v{x}")

    wave_stats(16, L_ST2, L_HR)
    if dbg:
        g("s_cmp_lt_u32 s3, 4\ns_cbranch_scc1 L_ts7")
        TS(7)
        g("L_ts7:")
    g("L_seg5:")
    read_stats(L_ST2)
    g("s_waitcnt lgkmcnt(0)")
    sum_stats()
    ln_scalar(20, 21, 22)
    ln_elem(16)
    wave_stats(16, L_ST3, L_HN)
    if dbg:
        g("s_cmp_lt_u32 s3, 4\ns_cbranch_scc1 L_ts8b")
        TS(8)
        g("L_ts8b:")
    g("L_seg6:")
    read_stats(L_ST3)
    g(f"ds_read_b32 v16, v15 offset:{L_HN}")
    g(f"ds_read_b32 v13, v15 offset:{L_HR}")
    g(f"s_mov_b32 s52, {f2u(BETA):#x}\ns_mov_b32 s53, {f2u(BETA):#x}")
    g("s_waitcnt lgkmcnt(0)")
    sum_stats()
    ln_scalar(20, 21, 22)
    ln_elem(16)
    if dbg:
        g("s_cmp_lt_u32 s3, 4\ns_cbranch_scc1 L_ts9b")
        TS(9)
        g("L_ts9b:")
    NB = 7
    for b0 in range(0, 14, NB):
        ks = list(range(b0, b0 + NB))
        S_ = lambda i: 24 + 4 * i
        Z = lambda i: 26 + 4 * i
        for i, k in enumerate(ks):
            w_ = MWB + 2 * k
            bb = MWB + 28 + 2 * k
            g(f"v_pk_fma_f32 v[{S_(i)}:{S_(i)+1}], v[{w_}:{w_+1}], v[16:17], v[{bb}:{bb+1}] op_sel:[0,0,0] op_sel_hi:[1,0,1]")
        for i, k in enumerate(ks):
            g(f"v_pk_fma_f32 v[{Z(i)}:{Z(i)+1}], v[{S_(i)}:{S_(i)+1}], v[{S_(i)}:{S_(i)+1}], s[52:53]")
        for i, k in enumerate(ks):
            g(f"v_pk_mul_f32 v[{Z(i)}:{Z(i)+1}], v[{Z(i)}:{Z(i)+1}], v[{S_(i)}:{S_(i)+1}]")
        for i, k in enumerate(ks):
            g(f"v_exp_f32 v{Z(i)}, v{Z(i)}\nv_exp_f32 v{Z(i)+1}, v{Z(i)+1}")
            vv = MWB + 56 + 2 * k
            g(f"v_pk_mul_f32 v[{S_(i)}:{S_(i)+1}], v[{S_(i)}:{S_(i)+1}], v[{vv}:{vv+1}]")
        for i, k in enumerate(ks):
            g(f"v_pk_add_f32 v[{Z(i)}:{Z(i)+1}], v[{Z(i)}:{Z(i)+1}], 1.0 op_sel_hi:[1,0]")
        for i, k in enumerate(ks):
            g(f"v_rcp_f32 v{Z(i)}, v{Z(i)}\nv_rcp_f32 v{Z(i)+1}, v{Z(i)+1}")
        for i, k in enumerate(ks):
            acc = 18 + 2 * (i & 1)
            if b0 == 0 and i < 2:
                g(f"v_pk_mul_f32 v[{acc}:{acc+1}], v[{S_(i)}:{S_(i)+1}], v[{Z(i)}:{Z(i)+1}]")
            else:
                g(f"v_pk_fma_f32 v[{acc}:{acc+1}], v[{S_(i)}:{S_(i)+1}], v[{Z(i)}:{Z(i)+1}], v[{acc}:{acc+1}]")
    g("v_pk_add_f32 v[18:19], v[18:19], v[20:21]\nv_add_f32 v18, v18, v19")
    srd(48, 36, 4096)
    g("""
    s_and_b32 s12, s11, 0x1e0
    s_and_b32 s14, s11, 1
    s_lshl_b32 s14, s14, 4
    s_add_u32 s12, s12, s14
    s_bfe_u32 s14, s11, 0x40001
    s_add_u32 s12, s12, s14
    s_lshl_b32 s14, s43, 9
    s_add_u32 s12, s12, s14
    s_lshl_b32 s12, s12, 1
    """)
    for m in ["row_shr:1 row_mask:0xf bank_mask:0xf bound_ctrl:0", "row_shr:2 row_mask:0xf bank_mask:0xf bound_ctrl:0",
              "row_shr:4 row_mask:0xf bank_mask:0xf bound_ctrl:0", "row_shr:8 row_mask:0xf bank_mask:0xf bound_ctrl:0",
              "row_bcast:15 row_mask:0xa bank_mask:0xf", "row_bcast:31 row_mask:0xc bank_mask:0xf"]:
        g(f"v_add_f32_dpp v18, v18, v18 {m}")
    g("""
    v_cvt_pk_bf16_f32 v18, v18, v18
    v_and_b32 v18, s42, v18
    v_add_f32 v18, v18, v221
    v_cvt_pk_bf16_f32 v18, v18, v18
    v_and_b32 v18, s42, v18
    v_add_f32 v18, v18, v13
    v_cvt_pk_bf16_f32 v18, v18, v18
    """)
    hook()
    g("s_mov_b32 exec_lo, 0\ns_mov_b32 exec_hi, 0x80000000")
    g("buffer_store_short v18, v14, s[48:51], s12 offen")
    g("s_or_b32 s8, s2, s3\ns_cmp_lg_u32 s8, 0\ns_cbranch_scc1 L_fin")
    g("s_add_u32 s94, s94, 1\nv_mov_b32 v4, s94")
    g(f"buffer_store_dword v4, v14, s[44:47], 0 offen offset:{WS_E}")
    g("L_fin:")
    if dbg:
        g("s_mov_b64 exec, -1")
        g("s_memrealtime s[92:93]")
        g("s_waitcnt lgkmcnt(0)")
        g(f"s_lshl_b32 s8, s2, 10\ns_lshl_b32 s9, s3, 7\ns_add_u32 s8, s8, s9\ns_add_u32 s8, s8, {WS_DBG:#x}")
        g("v_mov_b32 v4, 0")
        g("s_mov_b64 exec, 1")
        for i in range(0, 22, 2):
            g(f"v_mov_b32 v8, s{72+i}\nv_mov_b32 v9, s{73+i}")
            g(f"buffer_store_dwordx2 v[8:9], v4, s[44:47], s8 offen offset:{4*i}")
            g("s_nop 1")
    g("L_end:")
    g("s_endpgm")
    g('.section .rodata,"a"')
    g(".p2align 6")
    g(f".amdhsa_kernel {KN}")
    for d in ["next_free_vgpr 256", "next_free_sgpr 102", "accum_offset 256", "group_segment_fixed_size 0", "kernarg_size 104",
              "user_sgpr_count 2", "user_sgpr_kernarg_segment_ptr 1", "system_sgpr_workgroup_id_x 1", "float_denorm_mode_32 3"]:
        g(f".amdhsa_{d}")
    g(".end_amdhsa_kernel")
    open(path, "w").write(g.text())


if __name__ == "__main__":
    kw = eval("dict(%s)" % (sys.argv[2] if len(sys.argv) > 2 else ""))
    gen(sys.argv[1], **kw)
```

```python
import sys, struct, math
from asmlib import Gen

KN = "sequential_preLN__sliding_block_cached__mixer_token_mlp__decode_kernel"

def f2u(x):
    return struct.unpack("<I", struct.pack("<f", x))[0]

WS_E = 0
WS_T = 0x1000
WS_LSE = 0x2000
WS_H2 = 0x10000
WS_O = 0x40000
WS_QS = 0x80000
WS_DBG = 0x200000
L_WQT = 0
L_OP = 0
OPW = 2304
OPH = 576
L_GP = 9216
L_HR = 11264
L_HN = 13312
L_ST2 = 15360
L_ST3 = 15424
L_WOT = 16384
L_XN = 32768
L_QL = 33792
L_PL = 34816
L_ST = 43008
L_FT = 43136
L_WT = 43200
L_FL = 43456
L_MW = 43520
L_TOTAL = 55808
F_KISS, F_Q, F_MW, F_ST, F_VISS, F_P = 0, 4, 8, 12, 16, 32

LOG2E = 1.4426950408889634
K0 = -2.0 * math.sqrt(2.0 / math.pi) * LOG2E
K1 = K0 * 0.044715
ALPHA = -((-K1) ** (1.0 / 3.0))
BETA = K0 / ALPHA
HEADER = open("sequential_preLN__sliding_block_cached__mixer_token_mlp__decode.s.ref").read().split("; Override launch")[0]

names_q = ["start", "B0", "wq in", "q pub", "Vstart", "Vissued", "PVdone", "O pub", "h2 start", "h2 done", "end"]
names_d = ["start", "Kissued", "q got", "P rdy", "B3", "h1 done", "B5", "B6", "B6b", "mlp start", "end"]


def gen(path, dbg=False, kvflags="nt", wflags="nt", maxpoll=1 << 18, lim=5, dry=True):
    g = Gen()
    uid = [0]

    def TS(k):
        if dbg:
            g(f"s_memrealtime s[{72+2*k}:{73+2*k}]")

    def srd(d, lo, nbytes):
        g(f"s_mov_b32 s{d}, s{lo}\ns_and_b32 s{d+1}, s{lo+1}, 0xffff\ns_mov_b32 s{d+2}, {nbytes:#x}\ns_mov_b32 s{d+3}, 0x20000")

    def full():
        g("s_mov_b64 exec, s[98:99]")

    def mask(m):
        g(f"s_and_b64 exec, s[98:99], {m}")

    def hook():
        if dry:
            g("s_cbranch_execz L_dry_ret")

    def skipz_begin():
        uid[0] += 1
        if dry:
            g(f"s_cbranch_execz L_sk{uid[0]}")
        return uid[0]

    def skipz_end(u):
        if dry:
            g(f"L_sk{u}:")

    def signal(off):
        g("s_mov_b64 exec, 1")
        g(f"ds_add_u32 v219, v218 offset:{off}")
        g("s_mov_b64 exec, -1")

    def spin(off, target, sl=1, vaddr="v219"):
        uid[0] += 1
        u = uid[0]
        g("s_mov_b32 s71, 0")
        g(f"L_sp{u}:")
        g(f"ds_read_b32 v217, {vaddr} offset:{off}")
        g(f"s_add_u32 s71, s71, 1\ns_cmp_ge_u32 s71, {maxpoll*4}\ns_cbranch_scc1 L_spx{u}")
        g("s_waitcnt lgkmcnt(0)")
        g("v_readfirstlane_b32 s70, v217")
        g(f"s_cmp_ge_u32 s70, {target}\ns_cbranch_scc1 L_spx{u}")
        g(f"s_sleep {sl}")
        g(f"s_branch L_sp{u}")
        g(f"L_spx{u}:")

    MWB = 132

    def mw_prep():
        g("v_lshlrev_b32 v4, 2, v1")
        for a in range(3):
            for k in range(14):
                g(f"ds_read_b32 v{MWB+28*a+2*k+1}, v4 offset:{L_MW + 4096*a + 256*k}")
        g(f"s_mov_b32 s8, {f2u(ALPHA):#x}\ns_mov_b32 s9, {f2u(ALPHA):#x}\ns_mov_b32 s10, {f2u(1.0/ALPHA):#x}\ns_mov_b32 s11, {f2u(1.0/ALPHA):#x}")
        g("s_waitcnt lgkmcnt(0)")
        for a in range(3):
            for k in range(14):
                r = MWB + 28 * a + 2 * k
                g(f"v_lshlrev_b32 v{r}, 16, v{r+1}")
                g(f"v_and_b32 v{r+1}, s42, v{r+1}")
        for a in range(3):
            for k in range(14):
                r = MWB + 28 * a + 2 * k
                g(f"v_pk_mul_f32 v[{r}:{r+1}], v[{r}:{r+1}], s[{8 if a < 2 else 10}:{9 if a < 2 else 11}]")

    def tail_setup():
        srd(56, 16, 4096)
        srd(60, 34, 2)
        g("""
        s_and_b32 s43, s2, 3
        v_and_b32 v4, 1, v3
        v_lshlrev_b32 v4, 1, v4
        v_lshrrev_b32 v5, 1, v3
        v_or_b32 v4, v4, v5
        v_lshl_add_u32 v4, v2, 2, v4
        s_lshl_b32 s8, s3, 6
        v_add_u32 v4, s8, v4
        v_lshlrev_b32 v223, 2, v4
        v_and_b32 v5, 0x1e0, v4
        v_and_b32 v6, 1, v4
        v_lshl_add_u32 v5, v6, 4, v5
        v_bfe_u32 v6, v4, 1, 4
        v_add_u32 v5, v5, v6
        v_lshlrev_b32 v5, 1, v5
        s_lshl_b32 s8, s43, 10
        v_mov_b32 v6, 0
        buffer_load_ushort v220, v5, s[56:59], s8 offen
        buffer_load_ushort v221, v6, s[60:63], 0 offen
        v_lshlrev_b32 v222, 11, v3
        v_lshl_add_u32 v222, v2, 4, v222
        """)

    g(HEADER.rstrip())
    g(f"; @launch grid=(256,1,1) block=(512,1,1) lds={L_TOTAL}")
    g('.amdgcn_target "amdgcn-amd-amdhsa--gfx950"')
    g(".text")
    g(f".globl {KN}")
    g(".p2align 8")
    g(f".type {KN},@function")
    g(f"{KN}:")
    TS(0)
    g("""
    s_cmp_ge_u32 s2, 256
    s_cbranch_scc1 L_end
    s_load_dwordx16 s[16:31], s[0:1], 0
    s_load_dwordx8 s[32:39], s[0:1], 64
    s_load_dwordx2 s[40:41], s[0:1], 96
    v_lshrrev_b32 v4, 6, v0
    v_and_b32 v1, 63, v0
    v_readfirstlane_b32 s3, v4
    v_and_b32 v2, 15, v1
    v_lshrrev_b32 v3, 4, v1
    s_and_b32 s4, s2, 7
    s_lshr_b32 s5, s2, 3
    s_lshr_b32 s6, s5, 3
    s_and_b32 s7, s5, 7
    s_mov_b32 s42, 0xffff0000
    s_mov_b64 s[98:99], -1
    """)
    g(f"v_mov_b32 v219, {L_FL}\nv_mov_b32 v218, 1")
    g("""
    s_and_b32 s15, s3, 3
    s_lshl_b32 s8, s6, 3
    s_add_u32 s8, s8, s4
    s_lshl_b32 s8, s8, 21
    s_lshl_b32 s9, s7, 16
    s_add_u32 s8, s8, s9
    s_add_u32 s8, s8, 0x180000
    s_add_u32 s9, s2, s5
    s_add_u32 s9, s9, s15
    """)
    for i in range(4):
        g(f"s_add_u32 s{64+i}, s9, {4*i}\ns_and_b32 s{64+i}, s{64+i}, 15\ns_lshl_b32 s{64+i}, s{64+i}, 12\ns_add_u32 s{64+i}, s{64+i}, s8")
    g("s_waitcnt lgkmcnt(0)")
    srd(44, 40, 0x10000000)
    g(f"s_load_dword s94, s[40:41], {WS_E}")
    g("""
    s_cmp_ge_u32 s3, 4
    s_cbranch_scc1 L_B
    s_cmp_lg_u32 s3, 0
    s_cbranch_scc1 L_A123
    """)
    srd(48, 16, 4096)
    srd(52, 22, 0x400000)
    g("""
    v_and_b32 v4, 3, v1
    v_lshlrev_b32 v5, 10, v4
    v_lshrrev_b32 v6, 2, v1
    v_lshl_add_u32 v6, v6, 6, v5
    """)
    for i in range(4):
        g(f"buffer_load_dwordx4 v[{16+4*i}:{19+4*i}], v6, s[48:51], 0 offen offset:{16*i}")
    g("""
    v_lshrrev_b32 v7, 2, v2
    v_lshl_add_u32 v5, v7, 6, v5
    v_lshl_add_u32 v5, v3, 3, v5
    s_lshl_b32 s8, s6, 8
    buffer_load_dwordx2 v[32:33], v5, s[48:51], s8 offen
    buffer_load_dwordx2 v[34:35], v5, s[48:51], s8 offen offset:32
    v_lshrrev_b32 v6, 3, v1
    v_lshlrev_b32 v6, 13, v6
    v_and_b32 v8, 7, v1
    v_lshlrev_b32 v9, 1, v3
    v_xor_b32 v8, v8, v9
    v_lshl_add_u32 v6, v8, 4, v6
    s_lshl_b32 s8, s6, 20
    s_lshl_b32 s9, s4, 10
    s_add_u32 s8, s8, s9
    s_lshl_b32 s9, s7, 7
    s_add_u32 s8, s8, s9
    """)
    for i in range(16):
        g(f"s_mov_b32 m0, {L_WQT + 1024*i}")
        g(f"buffer_load_dwordx4 v6, s[52:55], s8 offen {wflags} lds")
        if i < 15:
            g("s_add_u32 s8, s8, 0x10000")
    g("s_barrier")
    TS(1)
    g("s_branch L_Q2")

    g("L_B:")
    srd(48, 18, 0x4000000)
    g("v_lshlrev_b32 v4, 8, v2\nv_lshl_add_u32 v4, v3, 4, v4")
    g("s_barrier")
    KR, QF, SA, PR = 16, 80, 96, 112
    n = 0
    for T in range(4):
        for t in range(4):
            r = KR + 16 * T + 4 * t
            g(f"buffer_load_dwordx4 v[{r}:{r+3}], v4, s[48:51], s{64+T} offen offset:{64*t} {kvflags}")
            n += 1
            if lim and n >= lim and n < 16:
                g(f"s_waitcnt vmcnt({lim-1})")
    signal(F_KISS)
    TS(1)
    g("""
    s_lshl_b32 s8, s4, 16
    s_lshl_b32 s9, s6, 14
    s_add_u32 s8, s8, s9
    s_lshl_b32 s9, s15, 10
    s_add_u32 s8, s8, s9
    """)
    g(f"s_add_u32 s8, s8, {WS_QS:#x}\ns_add_u32 s9, s8, 0x1000\ns_add_u32 s10, s8, 0x2000\ns_add_u32 s11, s8, 0x3000")
    g("v_lshlrev_b32 v5, 4, v1")
    g("s_waitcnt lgkmcnt(0)")
    g("s_mul_i32 s92, s94, 0x85ebca6b\ns_add_u32 s92, s92, 0x7f4a7c15\ns_mul_i32 s93, s94, 0x9e3779b1\ns_add_u32 s93, s93, 0x1b873593")
    for ks in range(4):
        g(f"s_mov_b64 s[{52+2*ks}:{53+2*ks}], -1")
    g("s_mov_b32 s71, 0")
    g("L_qpoll:")
    for ks in range(4):
        g(f"s_mov_b64 exec, s[{52+2*ks}:{53+2*ks}]")
        g(f"s_cbranch_execz L_qs{ks}")
        g(f"buffer_load_dwordx4 v[{QF+4*ks}:{QF+4*ks+3}], v5, s[44:47], s{8+ks} offen sc1")
        g(f"L_qs{ks}:")
    g("s_mov_b64 exec, -1")
    g("s_waitcnt vmcnt(0)")
    for ks in range(4):
        r = QF + 4 * ks
        g(f"v_xor_b32 v8, v{r+2}, v{r+1}")
        g(f"v_xor_b32 v9, v{r+3}, v{r}")
        g("v_xor_b32 v8, s92, v8")
        g("v_xor_b32 v9, s93, v9")
        g("v_or_b32 v8, v8, v9")
        g(f"v_cmp_ne_u32_e64 s[{52+2*ks}:{53+2*ks}], 0, v8")
    g(f"s_add_u32 s71, s71, 1\ns_cmp_ge_u32 s71, {maxpoll}\ns_cbranch_scc1 L_qdone")
    g("s_or_b64 s[12:13], s[52:53], s[54:55]\ns_or_b64 s[68:69], s[56:57], s[58:59]\ns_or_b64 s[12:13], s[12:13], s[68:69]")
    g("s_cbranch_scc1 L_qpoll")
    g("L_qdone:")
    g(f"v_pk_add_f32 v[{QF}:{QF+1}], v[{QF}:{QF+1}], v[{QF+4}:{QF+5}]")
    g(f"v_pk_add_f32 v[{QF+8}:{QF+9}], v[{QF+8}:{QF+9}], v[{QF+12}:{QF+13}]")
    g(f"v_pk_add_f32 v[{QF}:{QF+1}], v[{QF}:{QF+1}], v[{QF+8}:{QF+9}]")
    g(f"v_cvt_pk_bf16_f32 v8, v{QF}, v{QF+1}")
    g("v_lshlrev_b32 v9, 2, v1\ns_lshl_b32 s8, s15, 8\nv_add_u32 v9, s8, v9")
    g(f"ds_write_b32 v9, v8 offset:{L_QL}")
    signal(F_Q)
    tail_setup()
    g("""
    v_and_b32 v6, 3, v2
    v_lshlrev_b32 v7, 8, v6
    v_lshl_add_u32 v7, v3, 4, v7
    v_lshlrev_b32 v12, 5, v6
    s_lshl_b32 s11, s15, 3
    v_add_u32 v13, s11, v12
    v_lshlrev_b32 v14, 4, v1
    s_lshl_b32 s11, s15, 11
    v_add_u32 v14, s11, v14
    """)
    spin(F_Q, 4)
    TS(2)
    g("L_seg0:")
    for t in range(4):
        g(f"ds_read_b128 v[{QF+4*t}:{QF+4*t+3}], v7 offset:{L_QL + 64*t}")
    SC = 128 ** -0.5
    g(f"s_mov_b32 s8, {f2u(SC):#x}\ns_mov_b32 s9, {f2u(SC):#x}\ns_mov_b32 s10, {f2u(LOG2E):#x}")
    g("s_waitcnt lgkmcnt(0)")
    for T in range(4):
        for t in range(4):
            r = KR + 16 * T + 4 * t
            c = "0" if t == 0 else f"v[{SA+4*T}:{SA+4*T+3}]"
            g(f"v_mfma_f32_16x16x32_bf16 v[{SA+4*T}:{SA+4*T+3}], v[{r}:{r+3}], v[{QF+4*t}:{QF+4*t+3}], {c}")
    TM = 120
    for p in range(8):
        a = SA + 2 * p
        g(f"v_cvt_pk_bf16_f32 v{TM+p}, v{a}, v{a+1}")
    for p in range(8):
        a = SA + 2 * p
        g(f"v_lshlrev_b32 v{a}, 16, v{TM+p}")
        g(f"v_and_b32 v{a+1}, s42, v{TM+p}")
    for p in range(8):
        a = SA + 2 * p
        g(f"v_pk_mul_f32 v[{a}:{a+1}], v[{a}:{a+1}], s[8:9]")
    for p in range(8):
        a = SA + 2 * p
        g(f"v_cvt_pk_bf16_f32 v{TM+p}, v{a}, v{a+1}")
    for p in range(8):
        a = SA + 2 * p
        g(f"v_lshlrev_b32 v{a}, 16, v{TM+p}")
        g(f"v_and_b32 v{a+1}, s42, v{TM+p}")
    g(f"v_max3_f32 v8, v{SA}, v{SA+1}, v{SA+2}")
    g(f"v_max3_f32 v9, v{SA+3}, v{SA+4}, v{SA+5}")
    g(f"v_max3_f32 v10, v{SA+6}, v{SA+7}, v{SA+8}")
    g(f"v_max3_f32 v11, v{SA+9}, v{SA+10}, v{SA+11}")
    g(f"v_max3_f32 v8, v8, v{SA+12}, v{SA+13}")
    g(f"v_max3_f32 v9, v9, v{SA+14}, v{SA+15}")
    g("v_max3_f32 v8, v8, v9, v10\nv_max_f32 v8, v8, v11")
    g("v_mov_b32 v9, v8\nv_permlane32_swap_b32 v8, v9\nv_max_f32 v8, v8, v9")
    g("v_mov_b32 v9, v8\nv_permlane16_swap_b32 v8, v9\nv_max_f32 v8, v8, v9")
    g("v_mul_f32 v10, s10, v8")
    for e in range(16):
        g(f"v_fma_f32 v{SA+e}, v{SA+e}, s10, -v10")
    for e in range(16):
        g(f"v_exp_f32 v{SA+e}, v{SA+e}")
    for p in range(8):
        g(f"v_cvt_pk_bf16_f32 v{PR+p}, v{SA+2*p}, v{SA+2*p+1}")
    g(f"ds_write_b128 v14, v[{PR}:{PR+3}] offset:{L_PL}")
    g(f"ds_write_b128 v14, v[{PR+4}:{PR+7}] offset:{L_PL+1024}")
    for p in range(4):
        g(f"v_pk_add_f32 v[{SA+2*p}:{SA+2*p+1}], v[{SA+2*p}:{SA+2*p+1}], v[{SA+8+2*p}:{SA+9+2*p}]")
    for p in range(2):
        g(f"v_pk_add_f32 v[{SA+2*p}:{SA+2*p+1}], v[{SA+2*p}:{SA+2*p+1}], v[{SA+4+2*p}:{SA+5+2*p}]")
    g(f"v_pk_add_f32 v[{SA}:{SA+1}], v[{SA}:{SA+1}], v[{SA+2}:{SA+3}]")
    g(f"v_add_f32 v9, v{SA}, v{SA+1}")
    g("v_mov_b32 v11, v9\nv_permlane32_swap_b32 v9, v11\nv_add_f32 v9, v9, v11")
    g("v_mov_b32 v11, v9\nv_permlane16_swap_b32 v9, v11\nv_add_f32 v9, v9, v11")
    mask("15")
    g(f"ds_write_b64 v13, v[8:9] offset:{L_ST}")
    full()
    hook()
    g("s_lshl_b32 s11, s15, 2\nv_add_u32 v10, s11, v219")
    g("s_mov_b64 exec, 1")
    g(f"ds_add_u32 v10, v218 offset:{F_P}")
    g(f"ds_add_u32 v219, v218 offset:{F_ST}")
    g("s_mov_b64 exec, -1")
    TS(3)
    spin(F_ST, 4)
    g("s_lshl_b32 s11, s15, 5\nv_mov_b32 v12, s11")
    g(f"ds_read_b128 v[16:19], v12 offset:{L_ST}")
    g(f"ds_read_b128 v[20:23], v12 offset:{L_ST+16}")
    g("""
    s_lshl_b32 s8, s4, 9
    s_lshl_b32 s9, s15, 7
    s_add_u32 s8, s8, s9
    s_lshl_b32 s9, s5, 2
    s_add_u32 s8, s8, s9
    """)
    g(f"s_add_u32 s8, s8, {WS_LSE:#x}")
    g("s_waitcnt lgkmcnt(0)")
    g("v_max3_f32 v24, v16, v18, v20\nv_max_f32 v24, v24, v22")
    for i in range(4):
        g(f"v_sub_f32 v{28+i}, v{16+2*i}, v24")
        g(f"v_mul_f32 v{28+i}, s10, v{28+i}")
        g(f"v_exp_f32 v{28+i}, v{28+i}")
    g("v_mul_f32 v25, v28, v17")
    for i in range(1, 4):
        g(f"v_fmac_f32 v25, v{28+i}, v{17+2*i}")
    g("v_rcp_f32 v26, v25\nv_log_f32 v25, v25")
    for i in range(4):
        g(f"v_mul_f32 v{28+i}, v{28+i}, v26")
    g("v_fma_f32 v25, v24, s10, v25\nv_min_u32 v25, -2, v25")
    g("s_lshl_b32 s11, s15, 4\nv_mov_b32 v12, s11\nv_mov_b32 v13, 0")
    g("s_mov_b64 exec, 1")
    g(f"ds_write_b128 v12, v[28:31] offset:{L_FT}")
    g("buffer_store_dword v25, v13, s[44:47], s8 offen sc1")
    g("s_mov_b64 exec, -1")
    spin(F_MW, 1)
    mw_prep()
    g("v_lshlrev_b32 v5, 3, v1")
    g(f"s_lshl_b32 s8, s15, 9\ns_add_u32 s8, s8, {WS_T:#x}")
    g("s_mov_b32 s71, 0")
    g("L_tchk:")
    g("buffer_load_dwordx2 v[16:17], v5, s[44:47], s8 offen sc1")
    g("s_waitcnt vmcnt(0)")
    g("v_xor_b32 v16, s92, v16\nv_xor_b32 v17, s93, v17\nv_or_b32 v16, v16, v17")
    g("v_cmp_ne_u32 vcc, 0, v16")
    g(f"s_add_u32 s71, s71, 1\ns_cmp_ge_u32 s71, {maxpoll}\ns_cbranch_scc1 L_tdone")
    g("s_cmp_lg_u64 vcc, 0\ns_cbranch_scc1 L_tchk")
    g("L_tdone:")
    signal(F_ST)
    srd(52, 24, 0x400000)
    g("""
    v_and_b32 v7, 1, v3
    v_lshlrev_b32 v8, 6, v7
    v_bfe_u32 v9, v1, 2, 2
    v_lshl_add_u32 v8, v9, 3, v8
    v_lshrrev_b32 v9, 5, v1
    v_add_u32 v8, v8, v9
    v_lshlrev_b32 v8, 10, v8
    v_and_b32 v9, 3, v1
    v_lshlrev_b32 v7, 1, v7
    v_xor_b32 v9, v9, v7
    v_lshl_add_u32 v8, v9, 4, v8
    s_lshl_b32 s8, s4, 19
    s_lshr_b32 s9, s5, 4
    s_lshl_b32 s9, s9, 18
    s_add_u32 s8, s8, s9
    s_and_b32 s9, s5, 15
    s_lshl_b32 s9, s9, 6
    s_add_u32 s8, s8, s9
    s_lshr_b32 s9, s15, 1
    s_lshl_b32 s9, s9, 17
    s_add_u32 s8, s8, s9
    s_and_b32 s9, s15, 1
    s_lshl_b32 s9, s9, 12
    s_add_u32 s8, s8, s9
    s_lshl_b32 s12, s15, 12
    """)
    g(f"s_add_u32 s12, s12, {L_WOT}")
    g("""
    s_lshr_b32 s9, s5, 4
    s_lshl_b32 s9, s9, 1
    s_lshr_b32 s10, s15, 1
    s_add_u32 s9, s9, s10
    s_lshl_b32 s10, s4, 15
    s_lshl_b32 s11, s9, 8
    s_add_u32 s10, s10, s11
    s_and_b32 s11, s15, 1
    s_lshl_b32 s11, s11, 7
    s_add_u32 s10, s10, s11
    """)
    g(f"s_add_u32 s68, s10, {WS_O:#x}\ns_add_u32 s69, s68, 0x1000")
    g("""
    v_lshrrev_b32 v6, 2, v2
    v_and_b32 v7, 3, v2
    v_lshlrev_b32 v224, 13, v6
    v_lshl_add_u32 v224, v7, 10, v224
    v_lshl_add_u32 v224, v3, 4, v224
    v_lshrrev_b32 v7, 2, v2
    v_lshl_add_u32 v7, v3, 2, v7
    v_lshlrev_b32 v7, 6, v7
    v_and_b32 v9, 3, v2
    v_lshl_add_u32 v7, v9, 3, v7
    v_and_b32 v9, 1, v3
    v_lshl_add_u32 v225, v9, 5, v7
    v_xor_b32 v9, 1, v9
    v_lshl_add_u32 v226, v9, 5, v7
    v_add_u32 v225, s12, v225
    v_add_u32 v226, s12, v226
    v_lshlrev_b32 v227, 5, v3
    s_lshr_b32 s10, s15, 1
    s_lshl_b32 s10, s10, 7
    v_add_u32 v227, s10, v227
    v_lshlrev_b32 v228, 3, v1
    s_lshl_b32 s10, s15, 9
    v_add_u32 v228, s10, v228
    """)
    g("s_cmp_lg_u32 s3, 4\ns_cbranch_scc1 L_nowt")
    spin(F_ST, 8)
    g("""
    s_lshl_b32 s10, s4, 9
    s_lshr_b32 s11, s5, 4
    s_lshl_b32 s11, s11, 8
    s_add_u32 s10, s10, s11
    v_lshlrev_b32 v5, 2, v1
    s_mov_b32 s71, 0
    """)
    g(f"s_add_u32 s10, s10, {WS_LSE:#x}")
    g("L_lchk:")
    g("buffer_load_dword v16, v5, s[44:47], s10 offen sc1")
    g("s_waitcnt vmcnt(0)")
    g("v_cmp_eq_u32 vcc, -1, v16")
    g(f"s_add_u32 s71, s71, 1\ns_cmp_ge_u32 s71, {maxpoll}\ns_cbranch_scc1 L_ldone")
    g("s_cmp_lg_u64 vcc, 0\ns_cbranch_scc1 L_lchk")
    g("L_ldone:")
    g("v_mov_b32 v17, v16")
    for m in ["quad_perm:[1,0,3,2]", "quad_perm:[2,3,0,1]", "row_half_mirror"]:
        g(f"v_max_f32_dpp v17, v17, v17 {m} row_mask:0xf bank_mask:0xf")
    g("v_sub_f32 v16, v16, v17\nv_exp_f32 v16, v16\nv_mov_b32 v17, v16")
    for m in ["quad_perm:[1,0,3,2]", "quad_perm:[2,3,0,1]", "row_half_mirror"]:
        g(f"v_add_f32_dpp v17, v17, v17 {m} row_mask:0xf bank_mask:0xf")
    g("v_rcp_f32 v17, v17\nv_mul_f32 v16, v16, v17")
    g(f"ds_write_b32 v5, v16 offset:{L_WT}")
    g("L_nowt:")
    spin(F_VISS, 4)
    for i in range(4):
        dI = 32 * (i & 1) + 2 * (i >> 1)
        g(f"s_add_u32 s9, s8, {dI*1024:#x}")
        g(f"s_add_u32 m0, s12, {1024*i}")
        g(f"buffer_load_dwordx4 v8, s[52:55], s9 offen {wflags} lds")
    g("s_waitcnt lgkmcnt(0)")
    g("s_barrier")
    TS(4)
    g("L_seg3:")
    PAY = 16
    u = skipz_begin()
    for hf in range(2):
        for kb in range(2):
            r = PAY + 8 * hf + 4 * kb
            g(f"buffer_load_dwordx4 v[{r}:{r+3}], v224, s[44:47], s{68+hf} offen offset:{64*kb} sc1")
    skipz_end(u)
    g(f"ds_read_b128 v[64:67], v227 offset:{L_WT}")
    g(f"ds_read_b128 v[68:71], v227 offset:{L_WT+16}")
    g("s_waitcnt vmcnt(4)")
    WF = 32
    for kb in range(2):
        for mt in range(2):
            r = WF + 8 * kb + 4 * mt
            g(f"ds_read_b64_tr_b16 v[{r}:{r+1}], v{225+mt} offset:{2048*kb}")
            g(f"ds_read_b64_tr_b16 v[{r+2}:{r+3}], v{225+mt} offset:{2048*kb+1024}")
    g("s_mov_b32 s71, 0")
    g("L_h1chk:")
    g("""
    s_waitcnt vmcnt(0)
    v_max3_u32 v8, v16, v17, v18
    v_max3_u32 v9, v24, v25, v26
    v_max3_u32 v8, v8, v19, v20
    v_max3_u32 v9, v9, v27, v28
    v_max3_u32 v8, v8, v21, v22
    v_max3_u32 v9, v9, v29, v30
    v_max_u32 v8, v8, v23
    v_max_u32 v9, v9, v31
    v_cmp_eq_u32_e64 s[52:53], -1, v8
    v_cmp_eq_u32_e64 s[54:55], -1, v9
    s_or_b64 s[56:57], s[52:53], s[54:55]
    s_cbranch_scc0 L_h1done
    """)
    g(f"s_add_u32 s71, s71, 1\ns_cmp_ge_u32 s71, {maxpoll}\ns_cbranch_scc1 L_h1done")
    for hf in range(2):
        g(f"s_mov_b64 exec, s[{52+2*hf}:{53+2*hf}]")
        g(f"s_cbranch_execz L_h1s{hf}")
        for kb in range(2):
            r = PAY + 8 * hf + 4 * kb
            g(f"buffer_load_dwordx4 v[{r}:{r+3}], v224, s[44:47], s{68+hf} offen offset:{64*kb} sc1")
        g(f"L_h1s{hf}:")
    g("s_mov_b64 exec, -1\ns_branch L_h1chk")
    g("L_h1done:")
    g("s_waitcnt lgkmcnt(0)")
    TS(5)
    DD = 48
    for kb in range(2):
        for mt in range(2):
            for hf in range(2):
                d = DD + 8 * mt + 4 * hf
                a = PAY + 8 * hf + 4 * kb
                b_ = WF + 8 * kb + 4 * mt
                c = "0" if kb == 0 else f"v[{d}:{d+3}]"
                g(f"v_mfma_f32_16x16x32_bf16 v[{d}:{d+3}], v[{a}:{a+3}], v[{b_}:{b_+3}], {c}")
    for mt in range(2):
        d = DD + 8 * mt
        g(f"v_pk_mul_f32 v[{d}:{d+1}], v[{d}:{d+1}], v[64:65]")
    for q in range(1, 4):
        for mt in range(2):
            d = DD + 8 * mt
            g(f"v_pk_fma_f32 v[{d}:{d+1}], v[{d+2*q}:{d+2*q+1}], v[{64+2*q}:{65+2*q}], v[{d}:{d+1}]")
    g(f"v_add_f32 v8, v{DD}, v{DD+1}\nv_add_f32 v9, v{DD+8}, v{DD+9}")
    g(f"ds_write_b64 v228, v[8:9] offset:{L_GP}")
    g("s_waitcnt lgkmcnt(0)")
    hook()
    g("s_branch L_B5")

    g("L_Q2:")
    g("s_waitcnt vmcnt(18)")
    g("s_mov_b32 s8, 0x3f803f80\nv_mov_b32 v10, 0\nv_mov_b32 v11, 0\nv_mov_b32 v12, 0\nv_mov_b32 v13, 0")
    for i in range(0, 16, 2):
        g(f"v_dot2_f32_bf16 v10, v{16+i}, s8, v10")
        g(f"v_dot2_f32_bf16 v11, v{16+i}, v{16+i}, v11")
        g(f"v_dot2_f32_bf16 v12, v{17+i}, s8, v12")
        g(f"v_dot2_f32_bf16 v13, v{17+i}, v{17+i}, v13")
    g("s_nop 2")
    g("v_pk_add_f32 v[10:11], v[10:11], v[12:13]")
    for m in ("row_ror:4", "row_ror:8"):
        g(f"v_add_f32_dpp v10, v10, v10 {m} row_mask:0xf bank_mask:0xf")
        g(f"v_add_f32_dpp v11, v11, v11 {m} row_mask:0xf bank_mask:0xf")
    for sw in ("v_permlane32_swap_b32", "v_permlane16_swap_b32"):
        g("v_mov_b32 v12, v10\nv_mov_b32 v13, v11")
        g(f"{sw} v10, v12\n{sw} v11, v13")
        g("v_pk_add_f32 v[10:11], v[10:11], v[12:13]")
    g(f"s_mov_b32 s8, {f2u(1.0/512):#x}\ns_mov_b32 s9, {f2u(1.0/512):#x}\ns_mov_b32 s10, {f2u(1e-5):#x}")

    def ln_scalar(m, v, t):
        g(f"v_pk_mul_f32 v[{m}:{v}], v[{m}:{v}], s[8:9]")
        g(f"v_fma_f32 v{v}, -v{m}, v{m}, v{v}")
        g(f"v_max_f32 v{v}, 0, v{v}")
        g(f"v_cvt_pk_bf16_f32 v{t}, v{m}, v{v}")
        g(f"v_and_b32 v{v}, s42, v{t}")
        g(f"v_lshlrev_b32 v{m}, 16, v{t}")
        g(f"v_add_f32 v{v}, s10, v{v}")
        g(f"v_cvt_pk_bf16_f32 v{t}, v{v}, v{v}")
        g(f"v_and_b32 v{v}, s42, v{t}")
        g(f"v_sqrt_f32 v{v}, v{v}")
        g(f"v_cvt_pk_bf16_f32 v{t}, v{v}, v{v}")
        g(f"v_and_b32 v{v}, s42, v{t}")
        g(f"v_rcp_f32 v{v}, v{v}")
    ln_scalar(10, 11, 12)
    g("s_waitcnt vmcnt(16)")
    for d in range(4):
        a = 16 + 2 * d
        g(f"v_lshlrev_b32 v{a}, 16, v{32+d}\nv_and_b32 v{a+1}, s42, v{32+d}")
    for d in range(4):
        a = 16 + 2 * d
        g(f"v_pk_add_f32 v[{a}:{a+1}], v[{a}:{a+1}], v[10:11] op_sel:[0,0] op_sel_hi:[1,0] neg_lo:[0,1] neg_hi:[0,1]")
    for d in range(4):
        a = 16 + 2 * d
        g(f"v_cvt_pk_bf16_f32 v{32+d}, v{a}, v{a+1}")
    for d in range(4):
        a = 16 + 2 * d
        g(f"v_lshlrev_b32 v{a}, 16, v{32+d}\nv_and_b32 v{a+1}, s42, v{32+d}")
    for d in range(4):
        a = 16 + 2 * d
        g(f"v_pk_mul_f32 v[{a}:{a+1}], v[{a}:{a+1}], v[10:11] op_sel:[0,1] op_sel_hi:[1,1]")
    for d in range(4):
        a = 16 + 2 * d
        g(f"v_cvt_pk_bf16_f32 v{32+d}, v{a}, v{a+1}")
    g("""
    v_lshlrev_b32 v8, 8, v4
    v_lshl_add_u32 v8, v3, 4, v8
    v_lshl_add_u32 v9, v7, 6, v8
    """)
    g(f"ds_write_b128 v9, v[32:35] offset:{L_XN}")
    for kb in range(4):
        g(f"ds_read_b128 v[{36+4*kb}:{39+4*kb}], v8 offset:{L_XN + 64*kb}")
    g("""
    v_lshrrev_b32 v9, 2, v2
    v_lshl_add_u32 v9, v3, 2, v9
    v_bfe_u32 v14, v9, 1, 2
    v_lshlrev_b32 v9, 7, v9
    v_lshl_add_u32 v9, v4, 3, v9
    """)
    for mt in range(4):
        g(f"v_xor_b32 v15, {mt}, v14")
        g(f"v_lshl_add_u32 v{10+mt}, v15, 5, v9")
    g("s_waitcnt lgkmcnt(0)")
    g("s_mul_i32 s92, s94, 0x85ebca6b\ns_add_u32 s92, s92, 0x7f4a7c15\ns_mul_i32 s93, s94, 0x9e3779b1\ns_add_u32 s93, s93, 0x1b873593")
    AF = 52
    for kb in range(4):
        g(f"s_waitcnt vmcnt({12-4*kb})")
        for mt in range(4):
            r = AF + 16 * kb + 4 * mt
            g(f"ds_read_b64_tr_b16 v[{r}:{r+1}], v{10+mt} offset:{L_WQT + 4096*kb}")
            g(f"ds_read_b64_tr_b16 v[{r+2}:{r+3}], v{10+mt} offset:{L_WQT + 4096*kb + 2048}")
    TS(2)
    for z in (1, 2, 3):
        g(f"v_cmp_eq_u32_e64 s[{50+2*z}:{51+2*z}], {z}, v7")
    g("""
    v_lshlrev_b32 v8, 14, v4
    v_lshl_add_u32 v8, v7, 7, v8
    v_lshl_add_u32 v8, v3, 5, v8
    s_lshl_b32 s8, s4, 16
    s_lshl_b32 s9, s6, 12
    s_add_u32 s8, s8, s9
    s_lshl_b32 s9, s7, 9
    s_add_u32 s8, s8, s9
    """)
    g(f"s_add_u32 s8, s8, {WS_QS:#x}")
    g("s_waitcnt lgkmcnt(0)")
    QD = 116
    for kb in range(4):
        for mt in range(4):
            r = AF + 16 * kb + 4 * mt
            c = "0" if kb == 0 else f"v[{QD+4*mt}:{QD+4*mt+3}]"
            g(f"v_mfma_f32_16x16x32_bf16 v[{QD+4*mt}:{QD+4*mt+3}], v[{r}:{r+3}], v[{36+4*kb}:{39+4*kb}], {c}")
    for z in (1, 2, 3):
        for i in range(4):
            g(f"v_cndmask_b32_e64 v{QD+i}, v{QD+i}, v{QD+4*z+i}, s[{50+2*z}:{51+2*z}]")
    g(f"""
    v_mov_b32 v16, v{QD}
    v_mov_b32 v17, v{QD+1}
    v_xor_b32 v18, s92, v{QD+1}
    v_xor_b32 v19, s93, v{QD}
    v_mov_b32 v20, v{QD+2}
    v_mov_b32 v21, v{QD+3}
    v_xor_b32 v22, s92, v{QD+3}
    v_xor_b32 v23, s93, v{QD+2}
    buffer_store_dwordx4 v[16:19], v8, s[44:47], s8 offen sc1
    buffer_store_dwordx4 v[20:23], v8, s[44:47], s8 offen offset:16 sc1
    """)
    TS(3)
    g("s_branch L_A")

    g("L_A123:")
    g("s_cmp_lg_u32 s3, 1\ns_cbranch_scc1 L_A23")
    g("v_lshlrev_b32 v4, 2, v2\nv_mov_b32 v5, 0")
    g(f"ds_write_b32 v4, v5 offset:{L_FL}")
    srd(48, 28, 3584)
    srd(52, 30, 3584)
    srd(56, 32, 3584)
    g("v_lshlrev_b32 v6, 4, v1")
    g("s_waitcnt lgkmcnt(0)")
    g("s_barrier")
    for a in range(3):
        g(f"s_mov_b32 m0, {L_MW + 4096*a}")
        for i in range(4):
            g(f"buffer_load_dwordx4 v6, s[{48+4*a}:{51+4*a}], 0 offen offset:{1024*i} lds")
    g("s_mov_b32 s96, 0\ns_mov_b32 s95, 2")
    g("s_branch L_dry_go")
    g("L_A23:")
    g("s_barrier")
    g("s_mov_b32 s96, 5\ns_mov_b32 s95, 7")
    g("s_cmp_lg_u32 s3, 2\ns_cbranch_scc1 L_dry_go")
    g("""
    s_lshl_b32 s11, s4, 5
    s_add_u32 s11, s11, s5
    v_mov_b32 v8, -1
    v_mov_b32 v9, -1
    v_mov_b32 v10, -1
    v_mov_b32 v11, -1
    v_lshlrev_b32 v4, 4, v1
    """)
    g(f"s_lshl_b32 s12, s11, 10\ns_add_u32 s12, s12, {WS_O:#x}")
    g("buffer_store_dwordx4 v[8:11], v4, s[44:47], s12 offen sc1")
    g("""
    v_lshlrev_b32 v5, 15, v3
    v_lshl_add_u32 v5, v2, 3, v5
    s_lshr_b32 s13, s5, 4
    s_lshl_b32 s14, s4, 1
    s_add_u32 s13, s13, s14
    s_lshl_b32 s13, s13, 11
    s_and_b32 s14, s5, 15
    s_lshl_b32 s14, s14, 7
    s_add_u32 s13, s13, s14
    """)
    g(f"s_add_u32 s13, s13, {WS_H2:#x}")
    g("buffer_store_dwordx2 v[8:9], v5, s[44:47], s13 offen sc1")
    g("v_lshlrev_b32 v5, 7, v1")
    g(f"s_lshl_b32 s14, s4, 9\ns_lshl_b32 s9, s5, 2\ns_add_u32 s14, s14, s9\ns_add_u32 s14, s14, {WS_LSE:#x}")
    g("s_mov_b64 exec, 15")
    g("buffer_store_dword v8, v5, s[44:47], s14 offen sc1")
    g("s_mov_b64 exec, -1")
    g("s_mov_b32 s96, 2\ns_mov_b32 s95, 5")
    g("L_dry_go:")
    if dry:
        g("s_mov_b64 s[98:99], 0\ns_mov_b64 exec, 0\ns_mov_b32 s97, 0")
        g("s_sub_u32 s96, s96, 1")
        g("L_dry_ret:")
        g("s_add_u32 s96, s96, 1")
        g("s_cmp_eq_u32 s96, s95\ns_cbranch_scc1 L_dry_done")
        for k in range(7):
            g(f"s_cmp_eq_u32 s96, {k}\ns_cbranch_scc1 L_seg{k}")
        g("L_dry_done:")
        g("s_mov_b64 s[98:99], -1\ns_mov_b64 exec, -1")
    g("s_waitcnt vmcnt(0) lgkmcnt(0)")
    g("s_cmp_lg_u32 s3, 1\ns_cbranch_scc1 L_A2t")
    signal(F_MW)
    g("L_A2t:")
    g("s_cmp_lg_u32 s3, 2\ns_cbranch_scc1 L_A")
    g("s_mul_i32 s92, s94, 0x85ebca6b\ns_add_u32 s92, s92, 0x7f4a7c15\ns_mul_i32 s93, s94, 0x9e3779b1\ns_add_u32 s93, s93, 0x1b873593")
    g("v_mov_b32 v8, s92\nv_mov_b32 v9, s93\nv_mov_b32 v5, 0")
    g(f"s_lshl_b32 s9, s2, 3\ns_add_u32 s9, s9, {WS_T:#x}")
    g("s_mov_b64 exec, 1")
    g("buffer_store_dwordx2 v[8:9], v5, s[44:47], s9 offen sc1")
    g("s_mov_b64 exec, -1")

    g("L_A:")
    tail_setup()
    srd(48, 20, 0x4000000)
    spin(F_MW, 1)
    mw_prep()
    g("""
    v_lshlrev_b32 v5, 4, v2
    v_lshl_add_u32 v5, v3, 10, v5
    v_lshlrev_b32 v14, 4, v1
    s_lshl_b32 s11, s15, 11
    v_add_u32 v14, s11, v14
    s_lshl_b32 s11, s15, 2
    v_add_u32 v10, s11, v219
    """)
    g(f"v_mul_u32_u24 v224, {OPH}, v2")
    g("v_lshl_add_u32 v224, v3, 4, v224")
    g(f"s_mul_i32 s11, s15, {OPW}\nv_add_u32 v224, s11, v224")
    g(f"v_lshlrev_b32 v225, 3, v1\ns_mul_i32 s11, s15, {OPH}\nv_add_u32 v225, s11, v225")
    g("s_lshl_b32 s11, s15, 4\nv_mov_b32 v226, s11")
    g("v_lshlrev_b32 v227, 2, v1")
    g(f"s_lshl_b32 s11, s4, 5\ns_add_u32 s11, s11, s5\ns_lshl_b32 s11, s11, 10\ns_lshl_b32 s12, s15, 8\ns_add_u32 s11, s11, s12\ns_add_u32 s68, s11, {WS_O:#x}")
    g("s_mov_b32 s12, 0x05040100\ns_mov_b32 s13, 0x07060302\ns_mov_b32 s52, 0x000f000f\ns_mov_b32 s53, 0x000f000f")
    g("s_waitcnt vmcnt(0)")
    spin(F_KISS, 4)
    TS(4)
    VR, AO, AT, PA = 16, 80, 112, 128
    PA = 230
    n = 0
    for T in range(4):
        for i in range(4):
            r = VR + 16 * T + 4 * i
            g(f"buffer_load_dwordx4 v[{r}:{r+3}], v5, s[48:51], s{64+T} offen offset:{256*i} {kvflags}")
            n += 1
            if lim and n >= lim and n < 16:
                g(f"s_waitcnt vmcnt({lim-1})")
    signal(F_VISS)
    TS(5)
    spin(F_P, 1, vaddr="v10")
    g("L_seg1:")
    g(f"ds_read_b128 v[{PA}:{PA+3}], v14 offset:{L_PL}")
    g(f"ds_read_b128 v[{PA+4}:{PA+7}], v14 offset:{L_PL+1024}")
    g("s_waitcnt lgkmcnt(0)")
    tb = lambda j: (AT + 4 * j) if j < 4 else (238 + 4 * (j - 4))
    for u_ in range(2):
        for q in range(4):
            T = 2 * u_ + (q >> 1)
            i0 = 2 * (q & 1)
            done = 4 * T + i0 + 2
            g(f"s_waitcnt vmcnt({16-done})")
            a = VR + 16 * T + 4 * i0
            b_ = a + 4
            for dw in range(4):
                g(f"v_perm_b32 v{tb(2*dw)+q}, v{b_+dw}, v{a+dw}, s12")
                g(f"v_perm_b32 v{tb(2*dw+1)+q}, v{b_+dw}, v{a+dw}, s13")
        for j in range(8):
            c = "0" if u_ == 0 else f"v[{AO+4*j}:{AO+4*j+3}]"
            g(f"v_mfma_f32_16x16x32_bf16 v[{AO+4*j}:{AO+4*j+3}], v[{tb(j)}:{tb(j)+3}], v[{PA+4*u_}:{PA+4*u_+3}], {c}")
    mask("s[52:53]")
    for j in range(8):
        g(f"ds_write_b128 v224, v[{AO+4*j}:{AO+4*j+3}] offset:{L_OP + 64*j}")
    full()
    TS(6)
    g("s_waitcnt lgkmcnt(0)")
    hook()
    g("s_barrier")
    g("L_seg2:")
    g(f"ds_read_b128 v[24:27], v226 offset:{L_FT}")
    for w in range(4):
        g(f"ds_read_b64 v[{16+2*w}:{17+2*w}], v225 offset:{L_OP + OPW*w}")
    g("s_waitcnt lgkmcnt(0)")
    g("v_pk_mul_f32 v[16:17], v[16:17], v[24:25] op_sel:[0,0] op_sel_hi:[1,0]")
    g("v_pk_mul_f32 v[20:21], v[20:21], v[26:27] op_sel:[0,0] op_sel_hi:[1,0]")
    g("v_pk_fma_f32 v[16:17], v[18:19], v[24:25], v[16:17] op_sel:[0,1,0] op_sel_hi:[1,1,1]")
    g("v_pk_fma_f32 v[20:21], v[22:23], v[26:27], v[20:21] op_sel:[0,1,0] op_sel_hi:[1,1,1]")
    g("v_pk_add_f32 v[16:17], v[16:17], v[20:21]")
    g("v_cvt_pk_bf16_f32 v16, v16, v17\nv_min_u32 v16, -2, v16")
    hook()
    g("buffer_store_dword v16, v227, s[44:47], s68 offen sc1")
    TS(7)

    g("L_B5:")
    g("""
    s_lshl_b32 s8, s43, 15
    s_lshl_b32 s9, s3, 8
    s_add_u32 s8, s8, s9
    """)
    g(f"s_add_u32 s64, s8, {WS_H2:#x}\ns_add_u32 s65, s64, 0x2000\ns_add_u32 s66, s64, 0x4000\ns_add_u32 s67, s64, 0x6000")
    g("""
    s_lshr_b32 s13, s5, 4
    s_lshl_b32 s14, s4, 1
    s_add_u32 s13, s13, s14
    s_lshl_b32 s13, s13, 11
    s_and_b32 s14, s5, 15
    s_lshl_b32 s14, s14, 7
    s_add_u32 s13, s13, s14
    v_lshlrev_b32 v5, 15, v3
    v_lshl_add_u32 v5, v2, 3, v5
    v_lshlrev_b32 v6, 3, v1
    v_lshlrev_b32 v220, 16, v220
    v_lshlrev_b32 v221, 16, v221
    s_mov_b32 s97, s3
    """)
    g(f"s_add_u32 s13, s13, {WS_H2:#x}")
    g(f"s_mov_b32 s8, {f2u(1.0/512):#x}\ns_mov_b32 s9, {f2u(1.0/512):#x}\ns_mov_b32 s10, {f2u(1e-5):#x}")
    g("s_lshl_b32 s11, s3, 3\nv_lshrrev_b32 v7, 5, v1\nv_lshlrev_b32 v7, 2, v7\nv_add_u32 v7, s11, v7")
    g("s_mov_b32 s60, 0x80000000\ns_mov_b32 s61, 0x80000000")
    g("s_lshr_b32 s11, s2, 2\ns_lshl_b32 s11, s11, 3\ns_add_u32 s11, s11, s3")
    g("s_lshl_b32 s12, s11, 2\nv_mov_b32 v15, s12\nv_mov_b32 v14, 0")
    g("s_barrier")
    if dbg:
        g("s_cmp_lt_u32 s3, 4\ns_cbranch_scc1 L_ts6")
        TS(6)
        g("L_ts6:")
    g("L_seg4:")
    g("s_cmp_lg_u32 s97, 0\ns_cbranch_scc1 L_H2")
    for w in range(4):
        g(f"ds_read_b64 v[{16+2*w}:{17+2*w}], v6 offset:{L_GP + 512*w}")
    g("s_waitcnt lgkmcnt(0)")
    g("v_pk_add_f32 v[16:17], v[16:17], v[18:19]\nv_pk_add_f32 v[20:21], v[20:21], v[22:23]\nv_pk_add_f32 v[32:33], v[16:17], v[20:21]")
    g("v_min_u32 v32, -2, v32\nv_min_u32 v33, -2, v33")
    u = skipz_begin()
    g("buffer_store_dwordx2 v[32:33], v5, s[44:47], s13 offen sc1")
    skipz_end(u)
    g("L_H2:")
    if dbg:
        g("s_cmp_ge_u32 s3, 4\ns_cbranch_scc1 L_ts8")
        TS(8)
        g("L_ts8:")
    u = skipz_begin()
    for i in range(4):
        g(f"buffer_load_dwordx4 v[{16+4*i}:{19+4*i}], v222, s[44:47], s{64+i} offen sc1")
    skipz_end(u)
    g("s_mov_b32 s71, 0")
    g("L_h2chk:")
    g("s_waitcnt vmcnt(0)")
    for i in range(4):
        g(f"v_max3_u32 v{8+i}, v{16+4*i}, v{17+4*i}, v{18+4*i}")
    for i in range(4):
        g(f"v_max_u32 v{8+i}, v{8+i}, v{19+4*i}")
    g("v_max3_u32 v12, v8, v9, v10\nv_max_u32 v12, v12, v11")
    g("v_cmp_eq_u32 vcc, -1, v12")
    g("s_cmp_eq_u64 vcc, 0\ns_cbranch_scc1 L_h2done")
    g(f"s_add_u32 s71, s71, 1\ns_cmp_ge_u32 s71, {maxpoll}\ns_cbranch_scc1 L_h2done")
    for i in range(4):
        g(f"v_cmp_eq_u32_e64 s[{52+2*i}:{53+2*i}], -1, v{8+i}")
    for i in range(4):
        g(f"s_mov_b64 exec, s[{52+2*i}:{53+2*i}]")
        g(f"s_cbranch_execz L_h2s{i}")
        g(f"buffer_load_dwordx4 v[{16+4*i}:{19+4*i}], v222, s[44:47], s{64+i} offen sc1")
        g(f"L_h2s{i}:")
    g("s_mov_b64 exec, -1\ns_branch L_h2chk")
    g("L_h2done:")
    if dbg:
        g("s_cmp_ge_u32 s3, 4\ns_cbranch_scc1 L_ts9")
        TS(9)
        g("L_ts9:")
    g("""
    v_pk_add_f32 v[16:17], v[16:17], v[20:21]
    v_pk_add_f32 v[18:19], v[18:19], v[22:23]
    v_pk_add_f32 v[24:25], v[24:25], v[28:29]
    v_pk_add_f32 v[26:27], v[26:27], v[30:31]
    v_pk_add_f32 v[16:17], v[16:17], v[24:25]
    v_pk_add_f32 v[18:19], v[18:19], v[26:27]
    v_permlane32_swap_b32 v16, v17
    v_permlane32_swap_b32 v18, v19
    v_add_f32 v16, v16, v17
    v_add_f32 v18, v18, v19
    v_permlane16_swap_b32 v16, v18
    v_add_f32 v16, v16, v18
    v_cvt_pk_bf16_f32 v16, v16, v16
    v_and_b32 v16, s42, v16
    v_add_f32 v16, v16, v220
    v_cvt_pk_bf16_f32 v16, v16, v16
    v_and_b32 v16, s42, v16
    """)

    def wave_stats(x, st_off, arr_off):
        g(f"ds_write_b32 v223, v{x} offset:{arr_off}")
        g(f"v_mul_f32 v19, v{x}, v{x}\nv_mov_b32 v18, v{x}")
        g("v_permlane32_swap_b32 v18, v19\nv_add_f32 v18, v18, v19")
        for m in ["row_shr:1 row_mask:0xf bank_mask:0xf bound_ctrl:0", "row_shr:2 row_mask:0xf bank_mask:0xf bound_ctrl:0",
                  "row_shr:4 row_mask:0xf bank_mask:0xf bound_ctrl:0", "row_shr:8 row_mask:0xf bank_mask:0xf bound_ctrl:0",
                  "row_bcast:15 row_mask:0xa bank_mask:0xf"]:
            g(f"v_add_f32_dpp v18, v18, v18 {m}")
        mask("s[60:61]")
        g(f"ds_write_b32 v7, v18 offset:{st_off}")
        full()
        g("s_waitcnt lgkmcnt(0)")
        hook()
        g("s_barrier")

    def read_stats(st_off):
        for i in range(4):
            g(f"ds_read_b128 v[{20+4*i}:{23+4*i}], v14 offset:{st_off + 16*i}")

    def sum_stats():
        g("""
        v_pk_add_f32 v[20:21], v[20:21], v[22:23]
        v_pk_add_f32 v[24:25], v[24:25], v[26:27]
        v_pk_add_f32 v[28:29], v[28:29], v[30:31]
        v_pk_add_f32 v[32:33], v[32:33], v[34:35]
        v_pk_add_f32 v[20:21], v[20:21], v[24:25]
        v_pk_add_f32 v[28:29], v[28:29], v[32:33]
        v_pk_add_f32 v[20:21], v[20:21], v[28:29]
        """)

    def ln_elem(x):
        g(f"v_sub_f32 v{x}, v{x}, v20")
        g(f"v_cvt_pk_bf16_f32 v{x}, v{x}, v{x}\nv_and_b32 v{x}, s42, v{x}")
        g(f"v_mul_f32 v{x}, v{x}, v21")
        g(f"v_cvt_pk_bf16_f32 v{x}, v{x}, v{x}\nv_and_b32 v{x}, s42, v{x}")

    wave_stats(16, L_ST2, L_HR)
    if dbg:
        g("s_cmp_lt_u32 s3, 4\ns_cbranch_scc1 L_ts7")
        TS(7)
        g("L_ts7:")
    g("L_seg5:")
    read_stats(L_ST2)
    g("s_waitcnt lgkmcnt(0)")
    sum_stats()
    ln_scalar(20, 21, 22)
    ln_elem(16)
    wave_stats(16, L_ST3, L_HN)
    if dbg:
        g("s_cmp_lt_u32 s3, 4\ns_cbranch_scc1 L_ts8b")
        TS(8)
        g("L_ts8b:")
    g("L_seg6:")
    read_stats(L_ST3)
    g(f"ds_read_b32 v16, v15 offset:{L_HN}")
    g(f"ds_read_b32 v13, v15 offset:{L_HR}")
    g(f"s_mov_b32 s52, {f2u(BETA):#x}\ns_mov_b32 s53, {f2u(BETA):#x}")
    g("s_waitcnt lgkmcnt(0)")
    sum_stats()
    ln_scalar(20, 21, 22)
    ln_elem(16)
    if dbg:
        g("s_cmp_lt_u32 s3, 4\ns_cbranch_scc1 L_ts9b")
        TS(9)
        g("L_ts9b:")
    NB = 7
    for b0 in range(0, 14, NB):
        ks = list(range(b0, b0 + NB))
        S_ = lambda i: 24 + 4 * i
        Z = lambda i: 26 + 4 * i
        for i, k in enumerate(ks):
            w_ = MWB + 2 * k
            bb = MWB + 28 + 2 * k
            g(f"v_pk_fma_f32 v[{S_(i)}:{S_(i)+1}], v[{w_}:{w_+1}], v[16:17], v[{bb}:{bb+1}] op_sel:[0,0,0] op_sel_hi:[1,0,1]")
        for i, k in enumerate(ks):
            g(f"v_pk_fma_f32 v[{Z(i)}:{Z(i)+1}], v[{S_(i)}:{S_(i)+1}], v[{S_(i)}:{S_(i)+1}], s[52:53]")
        for i, k in enumerate(ks):
            g(f"v_pk_mul_f32 v[{Z(i)}:{Z(i)+1}], v[{Z(i)}:{Z(i)+1}], v[{S_(i)}:{S_(i)+1}]")
        for i, k in enumerate(ks):
            g(f"v_exp_f32 v{Z(i)}, v{Z(i)}\nv_exp_f32 v{Z(i)+1}, v{Z(i)+1}")
            vv = MWB + 56 + 2 * k
            g(f"v_pk_mul_f32 v[{S_(i)}:{S_(i)+1}], v[{S_(i)}:{S_(i)+1}], v[{vv}:{vv+1}]")
        for i, k in enumerate(ks):
            g(f"v_pk_add_f32 v[{Z(i)}:{Z(i)+1}], v[{Z(i)}:{Z(i)+1}], 1.0 op_sel_hi:[1,0]")
        for i, k in enumerate(ks):
            g(f"v_rcp_f32 v{Z(i)}, v{Z(i)}\nv_rcp_f32 v{Z(i)+1}, v{Z(i)+1}")
        for i, k in enumerate(ks):
            acc = 18 + 2 * (i & 1)
            if b0 == 0 and i < 2:
                g(f"v_pk_mul_f32 v[{acc}:{acc+1}], v[{S_(i)}:{S_(i)+1}], v[{Z(i)}:{Z(i)+1}]")
            else:
                g(f"v_pk_fma_f32 v[{acc}:{acc+1}], v[{S_(i)}:{S_(i)+1}], v[{Z(i)}:{Z(i)+1}], v[{acc}:{acc+1}]")
    g("v_pk_add_f32 v[18:19], v[18:19], v[20:21]\nv_add_f32 v18, v18, v19")
    srd(48, 36, 4096)
    g("""
    s_and_b32 s12, s11, 0x1e0
    s_and_b32 s14, s11, 1
    s_lshl_b32 s14, s14, 4
    s_add_u32 s12, s12, s14
    s_bfe_u32 s14, s11, 0x40001
    s_add_u32 s12, s12, s14
    s_lshl_b32 s14, s43, 9
    s_add_u32 s12, s12, s14
    s_lshl_b32 s12, s12, 1
    """)
    for m in ["row_shr:1 row_mask:0xf bank_mask:0xf bound_ctrl:0", "row_shr:2 row_mask:0xf bank_mask:0xf bound_ctrl:0",
              "row_shr:4 row_mask:0xf bank_mask:0xf bound_ctrl:0", "row_shr:8 row_mask:0xf bank_mask:0xf bound_ctrl:0",
              "row_bcast:15 row_mask:0xa bank_mask:0xf", "row_bcast:31 row_mask:0xc bank_mask:0xf"]:
        g(f"v_add_f32_dpp v18, v18, v18 {m}")
    g("""
    v_cvt_pk_bf16_f32 v18, v18, v18
    v_and_b32 v18, s42, v18
    v_add_f32 v18, v18, v221
    v_cvt_pk_bf16_f32 v18, v18, v18
    v_and_b32 v18, s42, v18
    v_add_f32 v18, v18, v13
    v_cvt_pk_bf16_f32 v18, v18, v18
    """)
    hook()
    g("s_mov_b32 exec_lo, 0\ns_mov_b32 exec_hi, 0x80000000")
    g("buffer_store_short v18, v14, s[48:51], s12 offen")
    g("s_or_b32 s8, s2, s3\ns_cmp_lg_u32 s8, 0\ns_cbranch_scc1 L_fin")
    g("s_add_u32 s94, s94, 1\nv_mov_b32 v4, s94")
    g(f"buffer_store_dword v4, v14, s[44:47], 0 offen offset:{WS_E}")
    g("L_fin:")
    if dbg:
        g("s_mov_b64 exec, -1")
        g("s_memrealtime s[92:93]")
        g("s_waitcnt lgkmcnt(0)")
        g(f"s_lshl_b32 s8, s2, 10\ns_lshl_b32 s9, s3, 7\ns_add_u32 s8, s8, s9\ns_add_u32 s8, s8, {WS_DBG:#x}")
        g("v_mov_b32 v4, 0")
        g("s_mov_b64 exec, 1")
        for i in range(0, 22, 2):
            g(f"v_mov_b32 v8, s{72+i}\nv_mov_b32 v9, s{73+i}")
            g(f"buffer_store_dwordx2 v[8:9], v4, s[44:47], s8 offen offset:{4*i}")
            g("s_nop 1")
    g("L_end:")
    g("s_endpgm")
    g('.section .rodata,"a"')
    g(".p2align 6")
    g(f".amdhsa_kernel {KN}")
    for d in ["next_free_vgpr 256", "next_free_sgpr 102", "accum_offset 256", "group_segment_fixed_size 0", "kernarg_size 104",
              "user_sgpr_count 2", "user_sgpr_kernarg_segment_ptr 1", "system_sgpr_workgroup_id_x 1", "float_denorm_mode_32 3"]:
        g(f".amdhsa_{d}")
    g(".end_amdhsa_kernel")
    open(path, "w").write(g.text())


if __name__ == "__main__":
    kw = eval("dict(%s)" % (sys.argv[2] if len(sys.argv) > 2 else ""))
    gen(sys.argv[1], **kw)
```

```python
import sys, struct, math
from asmlib import Gen

KN = "sequential_preLN__sliding_block_cached__mixer_token_mlp__decode_kernel"

def f2u(x):
    return struct.unpack("<I", struct.pack("<f", x))[0]

WS_E = 0
WS_T = 0x1000
WS_LSE = 0x2000
WS_H2 = 0x10000
WS_O = 0x40000
WS_QS = 0x80000
WS_DBG = 0x200000
L_WQT = 0
L_OP = 0
OPW = 2304
OPH = 576
L_GP = 9216
L_HR = 11264
L_HN = 13312
L_ST2 = 15360
L_ST3 = 15424
L_WOT = 16384
L_XN = 32768
L_QL = 33792
L_PL = 34816
L_ST = 43008
L_FT = 43136
L_WT = 43200
L_FL = 43456
L_MW = 43520
L_TOTAL = 55808
F_KISS, F_Q, F_MW, F_ST, F_VISS, F_P = 0, 4, 8, 12, 16, 32

LOG2E = 1.4426950408889634
K0 = -2.0 * math.sqrt(2.0 / math.pi) * LOG2E
K1 = K0 * 0.044715
ALPHA = -((-K1) ** (1.0 / 3.0))
BETA = K0 / ALPHA
HEADER = open("sequential_preLN__sliding_block_cached__mixer_token_mlp__decode.s.ref").read().split("; Override launch")[0]

names_q = ["start", "B0", "wq in", "q pub", "Vstart", "Vissued", "PVdone", "O pub", "h2 start", "h2 done", "end"]
names_d = ["start", "Kissued", "q got", "P rdy", "B3", "h1 done", "B5", "B6", "B6b", "mlp start", "end"]


def gen(path, dbg=False, hdbg=False, kvflags="nt", wflags="nt", maxpoll=1 << 18, lim=5, dry=True):
    g = Gen()
    uid = [0]
    if hdbg: dbg = True

    def TS(k):
        if dbg:
            g(f"s_memrealtime s[{72+2*k}:{73+2*k}]")

    def srd(d, lo, nbytes):
        g(f"s_mov_b32 s{d}, s{lo}\ns_and_b32 s{d+1}, s{lo+1}, 0xffff\ns_mov_b32 s{d+2}, {nbytes:#x}\ns_mov_b32 s{d+3}, 0x20000")

    def full():
        g("s_mov_b64 exec, s[98:99]")

    def mask(m):
        g(f"s_and_b64 exec, s[98:99], {m}")

    def hook():
        if dry:
            g("s_cbranch_execz L_dry_ret")

    def skipz_begin():
        uid[0] += 1
        if dry:
            g(f"s_cbranch_execz L_sk{uid[0]}")
        return uid[0]

    def skipz_end(u):
        if dry:
            g(f"L_sk{u}:")

    def signal(off):
        g("s_mov_b64 exec, 1")
        g(f"ds_add_u32 v219, v218 offset:{off}")
        g("s_mov_b64 exec, -1")

    def spin(off, target, sl=1, vaddr="v219"):
        uid[0] += 1
        u = uid[0]
        g("s_mov_b32 s71, 0")
        g(f"L_sp{u}:")
        g(f"ds_read_b32 v217, {vaddr} offset:{off}")
        g(f"s_add_u32 s71, s71, 1\ns_cmp_ge_u32 s71, {maxpoll*4}\ns_cbranch_scc1 L_spx{u}")
        g("s_waitcnt lgkmcnt(0)")
        g("v_readfirstlane_b32 s70, v217")
        g(f"s_cmp_ge_u32 s70, {target}\ns_cbranch_scc1 L_spx{u}")
        g(f"s_sleep {sl}")
        g(f"s_branch L_sp{u}")
        g(f"L_spx{u}:")

    MWB = 132

    def mw_prep():
        g("v_lshlrev_b32 v4, 2, v1")
        for a in range(3):
            for k in range(14):
                g(f"ds_read_b32 v{MWB+28*a+2*k+1}, v4 offset:{L_MW + 4096*a + 256*k}")
        g(f"s_mov_b32 s8, {f2u(ALPHA):#x}\ns_mov_b32 s9, {f2u(ALPHA):#x}\ns_mov_b32 s10, {f2u(1.0/ALPHA):#x}\ns_mov_b32 s11, {f2u(1.0/ALPHA):#x}")
        g("s_waitcnt lgkmcnt(0)")
        for a in range(3):
            for k in range(14):
                r = MWB + 28 * a + 2 * k
                g(f"v_lshlrev_b32 v{r}, 16, v{r+1}")
                g(f"v_and_b32 v{r+1}, s42, v{r+1}")
        for a in range(3):
            for k in range(14):
                r = MWB + 28 * a + 2 * k
                g(f"v_pk_mul_f32 v[{r}:{r+1}], v[{r}:{r+1}], s[{8 if a < 2 else 10}:{9 if a < 2 else 11}]")

    def tail_setup():
        srd(56, 16, 4096)
        srd(60, 34, 2)
        g("""
        s_and_b32 s43, s2, 3
        v_and_b32 v4, 1, v3
        v_lshlrev_b32 v4, 1, v4
        v_lshrrev_b32 v5, 1, v3
        v_or_b32 v4, v4, v5
        v_lshl_add_u32 v4, v2, 2, v4
        s_lshl_b32 s8, s3, 6
        v_add_u32 v4, s8, v4
        v_lshlrev_b32 v223, 2, v4
        v_and_b32 v5, 0x1e0, v4
        v_and_b32 v6, 1, v4
        v_lshl_add_u32 v5, v6, 4, v5
        v_bfe_u32 v6, v4, 1, 4
        v_add_u32 v5, v5, v6
        v_lshlrev_b32 v5, 1, v5
        s_lshl_b32 s8, s43, 10
        v_mov_b32 v6, 0
        buffer_load_ushort v220, v5, s[56:59], s8 offen
        buffer_load_ushort v221, v6, s[60:63], 0 offen
        v_lshlrev_b32 v222, 11, v3
        v_lshl_add_u32 v222, v2, 4, v222
        """)

    g(HEADER.rstrip())
    g(f"; @launch grid=(256,1,1) block=(512,1,1) lds={L_TOTAL}")
    g('.amdgcn_target "amdgcn-amd-amdhsa--gfx950"')
    g(".text")
    g(f".globl {KN}")
    g(".p2align 8")
    g(f".type {KN},@function")
    g(f"{KN}:")
    TS(0)
    g("""
    s_cmp_ge_u32 s2, 256
    s_cbranch_scc1 L_end
    s_load_dwordx16 s[16:31], s[0:1], 0
    s_load_dwordx8 s[32:39], s[0:1], 64
    s_load_dwordx2 s[40:41], s[0:1], 96
    v_lshrrev_b32 v4, 6, v0
    v_and_b32 v1, 63, v0
    v_readfirstlane_b32 s3, v4
    v_and_b32 v2, 15, v1
    v_lshrrev_b32 v3, 4, v1
    s_and_b32 s4, s2, 7
    s_lshr_b32 s5, s2, 3
    s_lshr_b32 s6, s5, 3
    s_and_b32 s7, s5, 7
    s_mov_b32 s42, 0xffff0000
    s_mov_b64 s[98:99], -1
    """)
    g(f"v_mov_b32 v219, {L_FL}\nv_mov_b32 v218, 1")
    g("""
    s_and_b32 s15, s3, 3
    s_lshl_b32 s8, s6, 3
    s_add_u32 s8, s8, s4
    s_lshl_b32 s8, s8, 21
    s_lshl_b32 s9, s7, 16
    s_add_u32 s8, s8, s9
    s_add_u32 s8, s8, 0x180000
    s_add_u32 s9, s2, s5
    s_add_u32 s9, s9, s15
    """)
    for i in range(4):
        g(f"s_add_u32 s{64+i}, s9, {4*i}\ns_and_b32 s{64+i}, s{64+i}, 15\ns_lshl_b32 s{64+i}, s{64+i}, 12\ns_add_u32 s{64+i}, s{64+i}, s8")
    g("s_waitcnt lgkmcnt(0)")
    srd(44, 40, 0x10000000)
    g(f"s_load_dword s94, s[40:41], {WS_E}")
    g("""
    s_cmp_ge_u32 s3, 4
    s_cbranch_scc1 L_B
    s_cmp_lg_u32 s3, 0
    s_cbranch_scc1 L_A123
    """)
    srd(48, 16, 4096)
    srd(52, 22, 0x400000)
    g("""
    v_and_b32 v4, 3, v1
    v_lshlrev_b32 v5, 10, v4
    v_lshrrev_b32 v6, 2, v1
    v_lshl_add_u32 v6, v6, 6, v5
    """)
    for i in range(4):
        g(f"buffer_load_dwordx4 v[{16+4*i}:{19+4*i}], v6, s[48:51], 0 offen offset:{16*i}")
    g("""
    v_lshrrev_b32 v7, 2, v2
    v_lshl_add_u32 v5, v7, 6, v5
    v_lshl_add_u32 v5, v3, 3, v5
    s_lshl_b32 s8, s6, 8
    buffer_load_dwordx2 v[32:33], v5, s[48:51], s8 offen
    buffer_load_dwordx2 v[34:35], v5, s[48:51], s8 offen offset:32
    v_lshrrev_b32 v6, 3, v1
    v_lshlrev_b32 v6, 13, v6
    v_and_b32 v8, 7, v1
    v_lshlrev_b32 v9, 1, v3
    v_xor_b32 v8, v8, v9
    v_lshl_add_u32 v6, v8, 4, v6
    s_lshl_b32 s8, s6, 20
    s_lshl_b32 s9, s4, 10
    s_add_u32 s8, s8, s9
    s_lshl_b32 s9, s7, 7
    s_add_u32 s8, s8, s9
    """)
    for i in range(16):
        g(f"s_mov_b32 m0, {L_WQT + 1024*i}")
        g(f"buffer_load_dwordx4 v6, s[52:55], s8 offen {wflags} lds")
        if i < 15:
            g("s_add_u32 s8, s8, 0x10000")
    g("s_barrier")
    TS(1)
    g("s_branch L_Q2")

    g("L_B:")
    srd(48, 18, 0x4000000)
    g("v_lshlrev_b32 v4, 8, v2\nv_lshl_add_u32 v4, v3, 4, v4")
    g("s_barrier")
    KR, QF, SA, PR = 16, 80, 96, 112
    n = 0
    for T in range(4):
        for t in range(4):
            r = KR + 16 * T + 4 * t
            g(f"buffer_load_dwordx4 v[{r}:{r+3}], v4, s[48:51], s{64+T} offen offset:{64*t} {kvflags}")
            n += 1
            if lim and n >= lim and n < 16:
                g(f"s_waitcnt vmcnt({lim-1})")
    signal(F_KISS)
    TS(1)
    g("""
    s_lshl_b32 s8, s4, 16
    s_lshl_b32 s9, s6, 14
    s_add_u32 s8, s8, s9
    s_lshl_b32 s9, s15, 10
    s_add_u32 s8, s8, s9
    """)
    g(f"s_add_u32 s8, s8, {WS_QS:#x}\ns_add_u32 s9, s8, 0x1000\ns_add_u32 s10, s8, 0x2000\ns_add_u32 s11, s8, 0x3000")
    g("v_lshlrev_b32 v5, 4, v1")
    g("s_waitcnt lgkmcnt(0)")
    g("s_mul_i32 s92, s94, 0x85ebca6b\ns_add_u32 s92, s92, 0x7f4a7c15\ns_mul_i32 s93, s94, 0x9e3779b1\ns_add_u32 s93, s93, 0x1b873593")
    for ks in range(4):
        g(f"s_mov_b64 s[{52+2*ks}:{53+2*ks}], -1")
    g("s_mov_b32 s71, 0")
    g("L_qpoll:")
    for ks in range(4):
        g(f"s_mov_b64 exec, s[{52+2*ks}:{53+2*ks}]")
        g(f"s_cbranch_execz L_qs{ks}")
        g(f"buffer_load_dwordx4 v[{QF+4*ks}:{QF+4*ks+3}], v5, s[44:47], s{8+ks} offen sc1")
        g(f"L_qs{ks}:")
    g("s_mov_b64 exec, -1")
    g("s_waitcnt vmcnt(0)")
    for ks in range(4):
        r = QF + 4 * ks
        g(f"v_xor_b32 v8, v{r+2}, v{r+1}")
        g(f"v_xor_b32 v9, v{r+3}, v{r}")
        g("v_xor_b32 v8, s92, v8")
        g("v_xor_b32 v9, s93, v9")
        g("v_or_b32 v8, v8, v9")
        g(f"v_cmp_ne_u32_e64 s[{52+2*ks}:{53+2*ks}], 0, v8")
    g(f"s_add_u32 s71, s71, 1\ns_cmp_ge_u32 s71, {maxpoll}\ns_cbranch_scc1 L_qdone")
    g("s_or_b64 s[12:13], s[52:53], s[54:55]\ns_or_b64 s[68:69], s[56:57], s[58:59]\ns_or_b64 s[12:13], s[12:13], s[68:69]")
    g("s_cbranch_scc1 L_qpoll")
    g("L_qdone:")
    g(f"v_pk_add_f32 v[{QF}:{QF+1}], v[{QF}:{QF+1}], v[{QF+4}:{QF+5}]")
    g(f"v_pk_add_f32 v[{QF+8}:{QF+9}], v[{QF+8}:{QF+9}], v[{QF+12}:{QF+13}]")
    g(f"v_pk_add_f32 v[{QF}:{QF+1}], v[{QF}:{QF+1}], v[{QF+8}:{QF+9}]")
    g(f"v_cvt_pk_bf16_f32 v8, v{QF}, v{QF+1}")
    g("v_lshlrev_b32 v9, 2, v1\ns_lshl_b32 s8, s15, 8\nv_add_u32 v9, s8, v9")
    g(f"ds_write_b32 v9, v8 offset:{L_QL}")
    signal(F_Q)
    tail_setup()
    g("""
    v_and_b32 v6, 3, v2
    v_lshlrev_b32 v7, 8, v6
    v_lshl_add_u32 v7, v3, 4, v7
    v_lshlrev_b32 v12, 5, v6
    s_lshl_b32 s11, s15, 3
    v_add_u32 v13, s11, v12
    v_lshlrev_b32 v14, 4, v1
    s_lshl_b32 s11, s15, 11
    v_add_u32 v14, s11, v14
    """)
    spin(F_Q, 4)
    TS(2)
    g("L_seg0:")
    for t in range(4):
        g(f"ds_read_b128 v[{QF+4*t}:{QF+4*t+3}], v7 offset:{L_QL + 64*t}")
    SC = 128 ** -0.5
    g(f"s_mov_b32 s8, {f2u(SC):#x}\ns_mov_b32 s9, {f2u(SC):#x}\ns_mov_b32 s10, {f2u(LOG2E):#x}")
    g("s_waitcnt lgkmcnt(0)")
    for T in range(4):
        for t in range(4):
            r = KR + 16 * T + 4 * t
            c = "0" if t == 0 else f"v[{SA+4*T}:{SA+4*T+3}]"
            g(f"v_mfma_f32_16x16x32_bf16 v[{SA+4*T}:{SA+4*T+3}], v[{r}:{r+3}], v[{QF+4*t}:{QF+4*t+3}], {c}")
    TM = 120
    for p in range(8):
        a = SA + 2 * p
        g(f"v_cvt_pk_bf16_f32 v{TM+p}, v{a}, v{a+1}")
    for p in range(8):
        a = SA + 2 * p
        g(f"v_lshlrev_b32 v{a}, 16, v{TM+p}")
        g(f"v_and_b32 v{a+1}, s42, v{TM+p}")
    for p in range(8):
        a = SA + 2 * p
        g(f"v_pk_mul_f32 v[{a}:{a+1}], v[{a}:{a+1}], s[8:9]")
    for p in range(8):
        a = SA + 2 * p
        g(f"v_cvt_pk_bf16_f32 v{TM+p}, v{a}, v{a+1}")
    for p in range(8):
        a = SA + 2 * p
        g(f"v_lshlrev_b32 v{a}, 16, v{TM+p}")
        g(f"v_and_b32 v{a+1}, s42, v{TM+p}")
    g(f"v_max3_f32 v8, v{SA}, v{SA+1}, v{SA+2}")
    g(f"v_max3_f32 v9, v{SA+3}, v{SA+4}, v{SA+5}")
    g(f"v_max3_f32 v10, v{SA+6}, v{SA+7}, v{SA+8}")
    g(f"v_max3_f32 v11, v{SA+9}, v{SA+10}, v{SA+11}")
    g(f"v_max3_f32 v8, v8, v{SA+12}, v{SA+13}")
    g(f"v_max3_f32 v9, v9, v{SA+14}, v{SA+15}")
    g("v_max3_f32 v8, v8, v9, v10\nv_max_f32 v8, v8, v11")
    g("v_mov_b32 v9, v8\nv_permlane32_swap_b32 v8, v9\nv_max_f32 v8, v8, v9")
    g("v_mov_b32 v9, v8\nv_permlane16_swap_b32 v8, v9\nv_max_f32 v8, v8, v9")
    g("v_mul_f32 v10, s10, v8")
    for e in range(16):
        g(f"v_fma_f32 v{SA+e}, v{SA+e}, s10, -v10")
    for e in range(16):
        g(f"v_exp_f32 v{SA+e}, v{SA+e}")
    for p in range(8):
        g(f"v_cvt_pk_bf16_f32 v{PR+p}, v{SA+2*p}, v{SA+2*p+1}")
    g(f"ds_write_b128 v14, v[{PR}:{PR+3}] offset:{L_PL}")
    g(f"ds_write_b128 v14, v[{PR+4}:{PR+7}] offset:{L_PL+1024}")
    for p in range(4):
        g(f"v_pk_add_f32 v[{SA+2*p}:{SA+2*p+1}], v[{SA+2*p}:{SA+2*p+1}], v[{SA+8+2*p}:{SA+9+2*p}]")
    for p in range(2):
        g(f"v_pk_add_f32 v[{SA+2*p}:{SA+2*p+1}], v[{SA+2*p}:{SA+2*p+1}], v[{SA+4+2*p}:{SA+5+2*p}]")
    g(f"v_pk_add_f32 v[{SA}:{SA+1}], v[{SA}:{SA+1}], v[{SA+2}:{SA+3}]")
    g(f"v_add_f32 v9, v{SA}, v{SA+1}")
    g("v_mov_b32 v11, v9\nv_permlane32_swap_b32 v9, v11\nv_add_f32 v9, v9, v11")
    g("v_mov_b32 v11, v9\nv_permlane16_swap_b32 v9, v11\nv_add_f32 v9, v9, v11")
    mask("15")
    g(f"ds_write_b64 v13, v[8:9] offset:{L_ST}")
    full()
    hook()
    g("s_lshl_b32 s11, s15, 2\nv_add_u32 v10, s11, v219")
    g("s_mov_b64 exec, 1")
    g(f"ds_add_u32 v10, v218 offset:{F_P}")
    g(f"ds_add_u32 v219, v218 offset:{F_ST}")
    g("s_mov_b64 exec, -1")
    TS(3)
    spin(F_ST, 4)
    g("s_lshl_b32 s11, s15, 5\nv_mov_b32 v12, s11")
    g(f"ds_read_b128 v[16:19], v12 offset:{L_ST}")
    g(f"ds_read_b128 v[20:23], v12 offset:{L_ST+16}")
    g("""
    s_lshl_b32 s8, s4, 9
    s_lshl_b32 s9, s15, 7
    s_add_u32 s8, s8, s9
    s_lshl_b32 s9, s5, 2
    s_add_u32 s8, s8, s9
    """)
    g(f"s_add_u32 s8, s8, {WS_LSE:#x}")
    g("s_waitcnt lgkmcnt(0)")
    g("v_max3_f32 v24, v16, v18, v20\nv_max_f32 v24, v24, v22")
    for i in range(4):
        g(f"v_sub_f32 v{28+i}, v{16+2*i}, v24")
        g(f"v_mul_f32 v{28+i}, s10, v{28+i}")
        g(f"v_exp_f32 v{28+i}, v{28+i}")
    g("v_mul_f32 v25, v28, v17")
    for i in range(1, 4):
        g(f"v_fmac_f32 v25, v{28+i}, v{17+2*i}")
    g("v_rcp_f32 v26, v25\nv_log_f32 v25, v25")
    for i in range(4):
        g(f"v_mul_f32 v{28+i}, v{28+i}, v26")
    g("v_fma_f32 v25, v24, s10, v25\nv_min_u32 v25, -2, v25")
    g("s_lshl_b32 s11, s15, 4\nv_mov_b32 v12, s11\nv_mov_b32 v13, 0")
    g("s_mov_b64 exec, 1")
    g(f"ds_write_b128 v12, v[28:31] offset:{L_FT}")
    g("buffer_store_dword v25, v13, s[44:47], s8 offen sc1")
    g("s_mov_b64 exec, -1")
    spin(F_MW, 1)
    mw_prep()
    g("v_lshlrev_b32 v5, 3, v1")
    g(f"s_lshl_b32 s8, s15, 9\ns_add_u32 s8, s8, {WS_T:#x}")
    g("s_mov_b32 s71, 0")
    g("L_tchk:")
    g("buffer_load_dwordx2 v[16:17], v5, s[44:47], s8 offen sc1")
    g("s_waitcnt vmcnt(0)")
    g("v_xor_b32 v16, s92, v16\nv_xor_b32 v17, s93, v17\nv_or_b32 v16, v16, v17")
    g("v_cmp_ne_u32 vcc, 0, v16")
    g(f"s_add_u32 s71, s71, 1\ns_cmp_ge_u32 s71, {maxpoll}\ns_cbranch_scc1 L_tdone")
    g("s_cmp_lg_u64 vcc, 0\ns_cbranch_scc1 L_tchk")
    g("L_tdone:")
    signal(F_ST)
    srd(52, 24, 0x400000)
    g("""
    v_and_b32 v7, 1, v3
    v_lshlrev_b32 v8, 6, v7
    v_bfe_u32 v9, v1, 2, 2
    v_lshl_add_u32 v8, v9, 3, v8
    v_lshrrev_b32 v9, 5, v1
    v_add_u32 v8, v8, v9
    v_lshlrev_b32 v8, 10, v8
    v_and_b32 v9, 3, v1
    v_lshlrev_b32 v7, 1, v7
    v_xor_b32 v9, v9, v7
    v_lshl_add_u32 v8, v9, 4, v8
    s_lshl_b32 s8, s4, 19
    s_lshr_b32 s9, s5, 4
    s_lshl_b32 s9, s9, 18
    s_add_u32 s8, s8, s9
    s_and_b32 s9, s5, 15
    s_lshl_b32 s9, s9, 6
    s_add_u32 s8, s8, s9
    s_lshr_b32 s9, s15, 1
    s_lshl_b32 s9, s9, 17
    s_add_u32 s8, s8, s9
    s_and_b32 s9, s15, 1
    s_lshl_b32 s9, s9, 12
    s_add_u32 s8, s8, s9
    s_lshl_b32 s12, s15, 12
    """)
    g(f"s_add_u32 s12, s12, {L_WOT}")
    g("""
    s_lshr_b32 s9, s5, 4
    s_lshl_b32 s9, s9, 1
    s_lshr_b32 s10, s15, 1
    s_add_u32 s9, s9, s10
    s_lshl_b32 s10, s4, 15
    s_lshl_b32 s11, s9, 8
    s_add_u32 s10, s10, s11
    s_and_b32 s11, s15, 1
    s_lshl_b32 s11, s11, 7
    s_add_u32 s10, s10, s11
    """)
    g(f"s_add_u32 s68, s10, {WS_O:#x}\ns_add_u32 s69, s68, 0x1000")
    g("""
    v_lshrrev_b32 v6, 2, v2
    v_and_b32 v7, 3, v2
    v_lshlrev_b32 v224, 13, v6
    v_lshl_add_u32 v224, v7, 10, v224
    v_lshl_add_u32 v224, v3, 4, v224
    v_lshrrev_b32 v7, 2, v2
    v_lshl_add_u32 v7, v3, 2, v7
    v_lshlrev_b32 v7, 6, v7
    v_and_b32 v9, 3, v2
    v_lshl_add_u32 v7, v9, 3, v7
    v_and_b32 v9, 1, v3
    v_lshl_add_u32 v225, v9, 5, v7
    v_xor_b32 v9, 1, v9
    v_lshl_add_u32 v226, v9, 5, v7
    v_add_u32 v225, s12, v225
    v_add_u32 v226, s12, v226
    v_lshlrev_b32 v227, 5, v3
    s_lshr_b32 s10, s15, 1
    s_lshl_b32 s10, s10, 7
    v_add_u32 v227, s10, v227
    v_lshlrev_b32 v228, 3, v1
    s_lshl_b32 s10, s15, 9
    v_add_u32 v228, s10, v228
    """)
    g("s_cmp_lg_u32 s3, 4\ns_cbranch_scc1 L_nowt")
    spin(F_ST, 8)
    g("""
    s_lshl_b32 s10, s4, 9
    s_lshr_b32 s11, s5, 4
    s_lshl_b32 s11, s11, 8
    s_add_u32 s10, s10, s11
    v_lshlrev_b32 v5, 2, v1
    s_mov_b32 s71, 0
    """)
    g(f"s_add_u32 s10, s10, {WS_LSE:#x}")
    g("L_lchk:")
    g("buffer_load_dword v16, v5, s[44:47], s10 offen sc1")
    g("s_waitcnt vmcnt(0)")
    g("v_cmp_eq_u32 vcc, -1, v16")
    g(f"s_add_u32 s71, s71, 1\ns_cmp_ge_u32 s71, {maxpoll}\ns_cbranch_scc1 L_ldone")
    g("s_cmp_lg_u64 vcc, 0\ns_cbranch_scc1 L_lchk")
    g("L_ldone:")
    g("v_mov_b32 v17, v16")
    for m in ["quad_perm:[1,0,3,2]", "quad_perm:[2,3,0,1]", "row_half_mirror"]:
        g(f"v_max_f32_dpp v17, v17, v17 {m} row_mask:0xf bank_mask:0xf")
    g("v_sub_f32 v16, v16, v17\nv_exp_f32 v16, v16\nv_mov_b32 v17, v16")
    for m in ["quad_perm:[1,0,3,2]", "quad_perm:[2,3,0,1]", "row_half_mirror"]:
        g(f"v_add_f32_dpp v17, v17, v17 {m} row_mask:0xf bank_mask:0xf")
    g("v_rcp_f32 v17, v17\nv_mul_f32 v16, v16, v17")
    g(f"ds_write_b32 v5, v16 offset:{L_WT}")
    g("L_nowt:")
    spin(F_VISS, 4)
    for i in range(4):
        dI = 32 * (i & 1) + 2 * (i >> 1)
        g(f"s_add_u32 s9, s8, {dI*1024:#x}")
        g(f"s_add_u32 m0, s12, {1024*i}")
        g(f"buffer_load_dwordx4 v8, s[52:55], s9 offen {wflags} lds")
    g("s_waitcnt lgkmcnt(0)")
    g("s_barrier")
    TS(4)
    g("L_seg3:")
    PAY = 16
    u = skipz_begin()
    for hf in range(2):
        for kb in range(2):
            r = PAY + 8 * hf + 4 * kb
            g(f"buffer_load_dwordx4 v[{r}:{r+3}], v224, s[44:47], s{68+hf} offen offset:{64*kb} sc1")
    skipz_end(u)
    g(f"ds_read_b128 v[64:67], v227 offset:{L_WT}")
    g(f"ds_read_b128 v[68:71], v227 offset:{L_WT+16}")
    g("s_waitcnt vmcnt(4)")
    WF = 32
    for kb in range(2):
        for mt in range(2):
            r = WF + 8 * kb + 4 * mt
            g(f"ds_read_b64_tr_b16 v[{r}:{r+1}], v{225+mt} offset:{2048*kb}")
            g(f"ds_read_b64_tr_b16 v[{r+2}:{r+3}], v{225+mt} offset:{2048*kb+1024}")
    g("s_mov_b32 s71, 0")
    g("L_h1chk:")
    g("""
    s_waitcnt vmcnt(0)
    v_max3_u32 v8, v16, v17, v18
    v_max3_u32 v9, v24, v25, v26
    v_max3_u32 v8, v8, v19, v20
    v_max3_u32 v9, v9, v27, v28
    v_max3_u32 v8, v8, v21, v22
    v_max3_u32 v9, v9, v29, v30
    v_max_u32 v8, v8, v23
    v_max_u32 v9, v9, v31
    v_cmp_eq_u32_e64 s[52:53], -1, v8
    v_cmp_eq_u32_e64 s[54:55], -1, v9
    s_or_b64 s[56:57], s[52:53], s[54:55]
    s_cbranch_scc0 L_h1done
    """)
    g(f"s_add_u32 s71, s71, 1\ns_cmp_ge_u32 s71, {maxpoll}\ns_cbranch_scc1 L_h1done")
    for hf in range(2):
        g(f"s_mov_b64 exec, s[{52+2*hf}:{53+2*hf}]")
        g(f"s_cbranch_execz L_h1s{hf}")
        for kb in range(2):
            r = PAY + 8 * hf + 4 * kb
            g(f"buffer_load_dwordx4 v[{r}:{r+3}], v224, s[44:47], s{68+hf} offen offset:{64*kb} sc1")
        g(f"L_h1s{hf}:")
    g("s_mov_b64 exec, -1\ns_branch L_h1chk")
    g("L_h1done:")
    g("s_waitcnt lgkmcnt(0)")
    TS(5)
    DD = 48
    for kb in range(2):
        for mt in range(2):
            for hf in range(2):
                d = DD + 8 * mt + 4 * hf
                a = PAY + 8 * hf + 4 * kb
                b_ = WF + 8 * kb + 4 * mt
                c = "0" if kb == 0 else f"v[{d}:{d+3}]"
                g(f"v_mfma_f32_16x16x32_bf16 v[{d}:{d+3}], v[{a}:{a+3}], v[{b_}:{b_+3}], {c}")
    for mt in range(2):
        d = DD + 8 * mt
        g(f"v_pk_mul_f32 v[{d}:{d+1}], v[{d}:{d+1}], v[64:65]")
    for q in range(1, 4):
        for mt in range(2):
            d = DD + 8 * mt
            g(f"v_pk_fma_f32 v[{d}:{d+1}], v[{d+2*q}:{d+2*q+1}], v[{64+2*q}:{65+2*q}], v[{d}:{d+1}]")
    g(f"v_add_f32 v8, v{DD}, v{DD+1}\nv_add_f32 v9, v{DD+8}, v{DD+9}")
    g(f"ds_write_b64 v228, v[8:9] offset:{L_GP}")
    g("s_waitcnt lgkmcnt(0)")
    hook()
    g("s_branch L_B5")

    g("L_Q2:")
    g("s_waitcnt vmcnt(18)")
    g("s_mov_b32 s8, 0x3f803f80\nv_mov_b32 v10, 0\nv_mov_b32 v11, 0\nv_mov_b32 v12, 0\nv_mov_b32 v13, 0")
    for i in range(0, 16, 2):
        g(f"v_dot2_f32_bf16 v10, v{16+i}, s8, v10")
        g(f"v_dot2_f32_bf16 v11, v{16+i}, v{16+i}, v11")
        g(f"v_dot2_f32_bf16 v12, v{17+i}, s8, v12")
        g(f"v_dot2_f32_bf16 v13, v{17+i}, v{17+i}, v13")
    g("s_nop 2")
    g("v_pk_add_f32 v[10:11], v[10:11], v[12:13]")
    for m in ("row_ror:4", "row_ror:8"):
        g(f"v_add_f32_dpp v10, v10, v10 {m} row_mask:0xf bank_mask:0xf")
        g(f"v_add_f32_dpp v11, v11, v11 {m} row_mask:0xf bank_mask:0xf")
    for sw in ("v_permlane32_swap_b32", "v_permlane16_swap_b32"):
        g("v_mov_b32 v12, v10\nv_mov_b32 v13, v11")
        g(f"{sw} v10, v12\n{sw} v11, v13")
        g("v_pk_add_f32 v[10:11], v[10:11], v[12:13]")
    g(f"s_mov_b32 s8, {f2u(1.0/512):#x}\ns_mov_b32 s9, {f2u(1.0/512):#x}\ns_mov_b32 s10, {f2u(1e-5):#x}")

    def ln_scalar(m, v, t):
        g(f"v_pk_mul_f32 v[{m}:{v}], v[{m}:{v}], s[8:9]")
        g(f"v_fma_f32 v{v}, -v{m}, v{m}, v{v}")
        g(f"v_max_f32 v{v}, 0, v{v}")
        g(f"v_cvt_pk_bf16_f32 v{t}, v{m}, v{v}")
        g(f"v_and_b32 v{v}, s42, v{t}")
        g(f"v_lshlrev_b32 v{m}, 16, v{t}")
        g(f"v_add_f32 v{v}, s10, v{v}")
        g(f"v_cvt_pk_bf16_f32 v{t}, v{v}, v{v}")
        g(f"v_and_b32 v{v}, s42, v{t}")
        g(f"v_sqrt_f32 v{v}, v{v}")
        g(f"v_cvt_pk_bf16_f32 v{t}, v{v}, v{v}")
        g(f"v_and_b32 v{v}, s42, v{t}")
        g(f"v_rcp_f32 v{v}, v{v}")
    ln_scalar(10, 11, 12)
    g("s_waitcnt vmcnt(16)")
    for d in range(4):
        a = 16 + 2 * d
        g(f"v_lshlrev_b32 v{a}, 16, v{32+d}\nv_and_b32 v{a+1}, s42, v{32+d}")
    for d in range(4):
        a = 16 + 2 * d
        g(f"v_pk_add_f32 v[{a}:{a+1}], v[{a}:{a+1}], v[10:11] op_sel:[0,0] op_sel_hi:[1,0] neg_lo:[0,1] neg_hi:[0,1]")
    for d in range(4):
        a = 16 + 2 * d
        g(f"v_cvt_pk_bf16_f32 v{32+d}, v{a}, v{a+1}")
    for d in range(4):
        a = 16 + 2 * d
        g(f"v_lshlrev_b32 v{a}, 16, v{32+d}\nv_and_b32 v{a+1}, s42, v{32+d}")
    for d in range(4):
        a = 16 + 2 * d
        g(f"v_pk_mul_f32 v[{a}:{a+1}], v[{a}:{a+1}], v[10:11] op_sel:[0,1] op_sel_hi:[1,1]")
    for d in range(4):
        a = 16 + 2 * d
        g(f"v_cvt_pk_bf16_f32 v{32+d}, v{a}, v{a+1}")
    g("""
    v_lshlrev_b32 v8, 8, v4
    v_lshl_add_u32 v8, v3, 4, v8
    v_lshl_add_u32 v9, v7, 6, v8
    """)
    g(f"ds_write_b128 v9, v[32:35] offset:{L_XN}")
    for kb in range(4):
        g(f"ds_read_b128 v[{36+4*kb}:{39+4*kb}], v8 offset:{L_XN + 64*kb}")
    g("""
    v_lshrrev_b32 v9, 2, v2
    v_lshl_add_u32 v9, v3, 2, v9
    v_bfe_u32 v14, v9, 1, 2
    v_lshlrev_b32 v9, 7, v9
    v_lshl_add_u32 v9, v4, 3, v9
    """)
    for mt in range(4):
        g(f"v_xor_b32 v15, {mt}, v14")
        g(f"v_lshl_add_u32 v{10+mt}, v15, 5, v9")
    g("s_waitcnt lgkmcnt(0)")
    g("s_mul_i32 s92, s94, 0x85ebca6b\ns_add_u32 s92, s92, 0x7f4a7c15\ns_mul_i32 s93, s94, 0x9e3779b1\ns_add_u32 s93, s93, 0x1b873593")
    AF = 52
    for kb in range(4):
        g(f"s_waitcnt vmcnt({12-4*kb})")
        for mt in range(4):
            r = AF + 16 * kb + 4 * mt
            g(f"ds_read_b64_tr_b16 v[{r}:{r+1}], v{10+mt} offset:{L_WQT + 4096*kb}")
            g(f"ds_read_b64_tr_b16 v[{r+2}:{r+3}], v{10+mt} offset:{L_WQT + 4096*kb + 2048}")
    TS(2)
    for z in (1, 2, 3):
        g(f"v_cmp_eq_u32_e64 s[{50+2*z}:{51+2*z}], {z}, v7")
    g("""
    v_lshlrev_b32 v8, 14, v4
    v_lshl_add_u32 v8, v7, 7, v8
    v_lshl_add_u32 v8, v3, 5, v8
    s_lshl_b32 s8, s4, 16
    s_lshl_b32 s9, s6, 12
    s_add_u32 s8, s8, s9
    s_lshl_b32 s9, s7, 9
    s_add_u32 s8, s8, s9
    """)
    g(f"s_add_u32 s8, s8, {WS_QS:#x}")
    g("s_waitcnt lgkmcnt(0)")
    QD = 116
    for kb in range(4):
        for mt in range(4):
            r = AF + 16 * kb + 4 * mt
            c = "0" if kb == 0 else f"v[{QD+4*mt}:{QD+4*mt+3}]"
            g(f"v_mfma_f32_16x16x32_bf16 v[{QD+4*mt}:{QD+4*mt+3}], v[{r}:{r+3}], v[{36+4*kb}:{39+4*kb}], {c}")
    for z in (1, 2, 3):
        for i in range(4):
            g(f"v_cndmask_b32_e64 v{QD+i}, v{QD+i}, v{QD+4*z+i}, s[{50+2*z}:{51+2*z}]")
    g(f"""
    v_mov_b32 v16, v{QD}
    v_mov_b32 v17, v{QD+1}
    v_xor_b32 v18, s92, v{QD+1}
    v_xor_b32 v19, s93, v{QD}
    v_mov_b32 v20, v{QD+2}
    v_mov_b32 v21, v{QD+3}
    v_xor_b32 v22, s92, v{QD+3}
    v_xor_b32 v23, s93, v{QD+2}
    buffer_store_dwordx4 v[16:19], v8, s[44:47], s8 offen sc1
    buffer_store_dwordx4 v[20:23], v8, s[44:47], s8 offen offset:16 sc1
    """)
    TS(3)
    g("s_branch L_A")

    g("L_A123:")
    g("s_cmp_lg_u32 s3, 1\ns_cbranch_scc1 L_A23")
    g("v_lshlrev_b32 v4, 2, v2\nv_mov_b32 v5, 0")
    g(f"ds_write_b32 v4, v5 offset:{L_FL}")
    srd(48, 28, 3584)
    srd(52, 30, 3584)
    srd(56, 32, 3584)
    g("v_lshlrev_b32 v6, 4, v1")
    g("s_waitcnt lgkmcnt(0)")
    g("s_barrier")
    for a in range(3):
        g(f"s_mov_b32 m0, {L_MW + 4096*a}")
        for i in range(4):
            g(f"buffer_load_dwordx4 v6, s[{48+4*a}:{51+4*a}], 0 offen offset:{1024*i} lds")
    g("s_mov_b32 s96, 0\ns_mov_b32 s95, 2")
    g("s_branch L_dry_go")
    g("L_A23:")
    g("s_barrier")
    g("s_mov_b32 s96, 5\ns_mov_b32 s95, 7")
    g("s_cmp_lg_u32 s3, 2\ns_cbranch_scc1 L_dry_go")
    g("""
    s_lshl_b32 s11, s4, 5
    s_add_u32 s11, s11, s5
    v_mov_b32 v8, -1
    v_mov_b32 v9, -1
    v_mov_b32 v10, -1
    v_mov_b32 v11, -1
    v_lshlrev_b32 v4, 4, v1
    """)
    g(f"s_lshl_b32 s12, s11, 10\ns_add_u32 s12, s12, {WS_O:#x}")
    g("buffer_store_dwordx4 v[8:11], v4, s[44:47], s12 offen sc1")
    g("""
    v_lshlrev_b32 v5, 15, v3
    v_lshl_add_u32 v5, v2, 3, v5
    s_lshr_b32 s13, s5, 4
    s_lshl_b32 s14, s4, 1
    s_add_u32 s13, s13, s14
    s_lshl_b32 s13, s13, 11
    s_and_b32 s14, s5, 15
    s_lshl_b32 s14, s14, 7
    s_add_u32 s13, s13, s14
    """)
    g(f"s_add_u32 s13, s13, {WS_H2:#x}")
    g("buffer_store_dwordx2 v[8:9], v5, s[44:47], s13 offen sc1")
    g("v_lshlrev_b32 v5, 7, v1")
    g(f"s_lshl_b32 s14, s4, 9\ns_lshl_b32 s9, s5, 2\ns_add_u32 s14, s14, s9\ns_add_u32 s14, s14, {WS_LSE:#x}")
    g("s_mov_b64 exec, 15")
    g("buffer_store_dword v8, v5, s[44:47], s14 offen sc1")
    g("s_mov_b64 exec, -1")
    g("s_mov_b32 s96, 2\ns_mov_b32 s95, 5")
    g("L_dry_go:")
    if dry:
        g("s_mov_b64 s[98:99], 0\ns_mov_b64 exec, 0\ns_mov_b32 s97, 0")
        g("s_sub_u32 s96, s96, 1")
        g("L_dry_ret:")
        g("s_add_u32 s96, s96, 1")
        g("s_cmp_eq_u32 s96, s95\ns_cbranch_scc1 L_dry_done")
        for k in range(7):
            g(f"s_cmp_eq_u32 s96, {k}\ns_cbranch_scc1 L_seg{k}")
        g("L_dry_done:")
        g("s_mov_b64 s[98:99], -1\ns_mov_b64 exec, -1")
    g("s_waitcnt vmcnt(0) lgkmcnt(0)")
    g("s_cmp_lg_u32 s3, 1\ns_cbranch_scc1 L_A2t")
    signal(F_MW)
    g("L_A2t:")
    g("s_cmp_lg_u32 s3, 2\ns_cbranch_scc1 L_A")
    g("s_mul_i32 s92, s94, 0x85ebca6b\ns_add_u32 s92, s92, 0x7f4a7c15\ns_mul_i32 s93, s94, 0x9e3779b1\ns_add_u32 s93, s93, 0x1b873593")
    g("v_mov_b32 v8, s92\nv_mov_b32 v9, s93\nv_mov_b32 v5, 0")
    g(f"s_lshl_b32 s9, s2, 3\ns_add_u32 s9, s9, {WS_T:#x}")
    g("s_mov_b64 exec, 1")
    g("buffer_store_dwordx2 v[8:9], v5, s[44:47], s9 offen sc1")
    g("s_mov_b64 exec, -1")

    g("L_A:")
    tail_setup()
    srd(48, 20, 0x4000000)
    spin(F_MW, 1)
    mw_prep()
    g("""
    v_lshlrev_b32 v5, 4, v2
    v_lshl_add_u32 v5, v3, 10, v5
    v_lshlrev_b32 v14, 4, v1
    s_lshl_b32 s11, s15, 11
    v_add_u32 v14, s11, v14
    s_lshl_b32 s11, s15, 2
    v_add_u32 v10, s11, v219
    """)
    g(f"v_mul_u32_u24 v224, {OPH}, v2")
    g("v_lshl_add_u32 v224, v3, 4, v224")
    g(f"s_mul_i32 s11, s15, {OPW}\nv_add_u32 v224, s11, v224")
    g(f"v_lshlrev_b32 v225, 3, v1\ns_mul_i32 s11, s15, {OPH}\nv_add_u32 v225, s11, v225")
    g("s_lshl_b32 s11, s15, 4\nv_mov_b32 v226, s11")
    g("v_lshlrev_b32 v227, 2, v1")
    g(f"s_lshl_b32 s11, s4, 5\ns_add_u32 s11, s11, s5\ns_lshl_b32 s11, s11, 10\ns_lshl_b32 s12, s15, 8\ns_add_u32 s11, s11, s12\ns_add_u32 s68, s11, {WS_O:#x}")
    g("s_mov_b32 s12, 0x05040100\ns_mov_b32 s13, 0x07060302\ns_mov_b32 s52, 0x000f000f\ns_mov_b32 s53, 0x000f000f")
    g("s_waitcnt vmcnt(0)")
    spin(F_KISS, 4)
    TS(4)
    VR, AO, AT, PA = 16, 80, 112, 128
    PA = 230
    n = 0
    for T in range(4):
        for i in range(4):
            r = VR + 16 * T + 4 * i
            g(f"buffer_load_dwordx4 v[{r}:{r+3}], v5, s[48:51], s{64+T} offen offset:{256*i} {kvflags}")
            n += 1
            if lim and n >= lim and n < 16:
                g(f"s_waitcnt vmcnt({lim-1})")
    signal(F_VISS)
    TS(5)
    spin(F_P, 1, vaddr="v10")
    g("L_seg1:")
    g(f"ds_read_b128 v[{PA}:{PA+3}], v14 offset:{L_PL}")
    g(f"ds_read_b128 v[{PA+4}:{PA+7}], v14 offset:{L_PL+1024}")
    g("s_waitcnt lgkmcnt(0)")
    tb = lambda j: (AT + 4 * j) if j < 4 else (238 + 4 * (j - 4))
    for u_ in range(2):
        for q in range(4):
            T = 2 * u_ + (q >> 1)
            i0 = 2 * (q & 1)
            done = 4 * T + i0 + 2
            g(f"s_waitcnt vmcnt({16-done})")
            a = VR + 16 * T + 4 * i0
            b_ = a + 4
            for dw in range(4):
                g(f"v_perm_b32 v{tb(2*dw)+q}, v{b_+dw}, v{a+dw}, s12")
                g(f"v_perm_b32 v{tb(2*dw+1)+q}, v{b_+dw}, v{a+dw}, s13")
        for j in range(8):
            c = "0" if u_ == 0 else f"v[{AO+4*j}:{AO+4*j+3}]"
            g(f"v_mfma_f32_16x16x32_bf16 v[{AO+4*j}:{AO+4*j+3}], v[{tb(j)}:{tb(j)+3}], v[{PA+4*u_}:{PA+4*u_+3}], {c}")
    mask("s[52:53]")
    for j in range(8):
        g(f"ds_write_b128 v224, v[{AO+4*j}:{AO+4*j+3}] offset:{L_OP + 64*j}")
    full()
    TS(6)
    g("s_waitcnt lgkmcnt(0)")
    hook()
    g("s_barrier")
    g("L_seg2:")
    g(f"ds_read_b128 v[24:27], v226 offset:{L_FT}")
    for w in range(4):
        g(f"ds_read_b64 v[{16+2*w}:{17+2*w}], v225 offset:{L_OP + OPW*w}")
    g("s_waitcnt lgkmcnt(0)")
    g("v_pk_mul_f32 v[16:17], v[16:17], v[24:25] op_sel:[0,0] op_sel_hi:[1,0]")
    g("v_pk_mul_f32 v[20:21], v[20:21], v[26:27] op_sel:[0,0] op_sel_hi:[1,0]")
    g("v_pk_fma_f32 v[16:17], v[18:19], v[24:25], v[16:17] op_sel:[0,1,0] op_sel_hi:[1,1,1]")
    g("v_pk_fma_f32 v[20:21], v[22:23], v[26:27], v[20:21] op_sel:[0,1,0] op_sel_hi:[1,1,1]")
    g("v_pk_add_f32 v[16:17], v[16:17], v[20:21]")
    g("v_cvt_pk_bf16_f32 v16, v16, v17\nv_min_u32 v16, -2, v16")
    hook()
    g("buffer_store_dword v16, v227, s[44:47], s68 offen sc1")
    TS(7)

    g("L_B5:")
    g("""
    s_lshl_b32 s8, s43, 15
    s_lshl_b32 s9, s3, 8
    s_add_u32 s8, s8, s9
    """)
    g(f"s_add_u32 s64, s8, {WS_H2:#x}\ns_add_u32 s65, s64, 0x2000\ns_add_u32 s66, s64, 0x4000\ns_add_u32 s67, s64, 0x6000")
    g("""
    s_lshr_b32 s13, s5, 4
    s_lshl_b32 s14, s4, 1
    s_add_u32 s13, s13, s14
    s_lshl_b32 s13, s13, 11
    s_and_b32 s14, s5, 15
    s_lshl_b32 s14, s14, 7
    s_add_u32 s13, s13, s14
    v_lshlrev_b32 v5, 15, v3
    v_lshl_add_u32 v5, v2, 3, v5
    v_lshlrev_b32 v6, 3, v1
    v_lshlrev_b32 v220, 16, v220
    v_lshlrev_b32 v221, 16, v221
    s_mov_b32 s97, s3
    """)
    g(f"s_add_u32 s13, s13, {WS_H2:#x}")
    g(f"s_mov_b32 s8, {f2u(1.0/512):#x}\ns_mov_b32 s9, {f2u(1.0/512):#x}\ns_mov_b32 s10, {f2u(1e-5):#x}")
    g("s_lshl_b32 s11, s3, 3\nv_lshrrev_b32 v7, 5, v1\nv_lshlrev_b32 v7, 2, v7\nv_add_u32 v7, s11, v7")
    g("s_mov_b32 s60, 0x80000000\ns_mov_b32 s61, 0x80000000")
    g("s_lshr_b32 s11, s2, 2\ns_lshl_b32 s11, s11, 3\ns_add_u32 s11, s11, s3")
    g("s_lshl_b32 s12, s11, 2\nv_mov_b32 v15, s12\nv_mov_b32 v14, 0")
    g("s_barrier")
    if dbg:
        g("s_cmp_lt_u32 s3, 4\ns_cbranch_scc1 L_ts6")
        TS(6)
        g("L_ts6:")
    g("L_seg4:")
    g("s_cmp_lg_u32 s97, 0\ns_cbranch_scc1 L_H2")
    for w in range(4):
        g(f"ds_read_b64 v[{16+2*w}:{17+2*w}], v6 offset:{L_GP + 512*w}")
    g("s_waitcnt lgkmcnt(0)")
    g("v_pk_add_f32 v[16:17], v[16:17], v[18:19]\nv_pk_add_f32 v[20:21], v[20:21], v[22:23]\nv_pk_add_f32 v[32:33], v[16:17], v[20:21]")
    g("v_min_u32 v32, -2, v32\nv_min_u32 v33, -2, v33")
    u = skipz_begin()
    g("buffer_store_dwordx2 v[32:33], v5, s[44:47], s13 offen sc1")
    skipz_end(u)
    g("L_H2:")
    if dbg:
        g("s_cmp_ge_u32 s3, 4\ns_cbranch_scc1 L_ts8")
        TS(8)
        g("L_ts8:")
    u = skipz_begin()
    for i in range(4):
        g(f"buffer_load_dwordx4 v[{16+4*i}:{19+4*i}], v222, s[44:47], s{64+i} offen sc1")
    skipz_end(u)
    g("s_mov_b32 s71, 0")
    g("L_h2chk:")
    g("s_waitcnt vmcnt(0)")
    for i in range(4):
        g(f"v_max3_u32 v{8+i}, v{16+4*i}, v{17+4*i}, v{18+4*i}")
    for i in range(4):
        g(f"v_max_u32 v{8+i}, v{8+i}, v{19+4*i}")
    g("v_max3_u32 v12, v8, v9, v10\nv_max_u32 v12, v12, v11")
    g("v_cmp_eq_u32 vcc, -1, v12")
    g("s_cmp_eq_u64 vcc, 0\ns_cbranch_scc1 L_h2done")
    g(f"s_add_u32 s71, s71, 1\ns_cmp_ge_u32 s71, {maxpoll}\ns_cbranch_scc1 L_h2done")
    for i in range(4):
        g(f"v_cmp_eq_u32_e64 s[{52+2*i}:{53+2*i}], -1, v{8+i}")
    for i in range(4):
        g(f"s_mov_b64 exec, s[{52+2*i}:{53+2*i}]")
        g(f"s_cbranch_execz L_h2s{i}")
        g(f"buffer_load_dwordx4 v[{16+4*i}:{19+4*i}], v222, s[44:47], s{64+i} offen sc1")
        g(f"L_h2s{i}:")
    g("s_mov_b64 exec, -1\ns_branch L_h2chk")
    g("L_h2done:")
    if dbg:
        g("s_cmp_ge_u32 s3, 4\ns_cbranch_scc1 L_ts9")
        TS(9)
        g("L_ts9:")
    g("""
    v_pk_add_f32 v[16:17], v[16:17], v[20:21]
    v_pk_add_f32 v[18:19], v[18:19], v[22:23]
    v_pk_add_f32 v[24:25], v[24:25], v[28:29]
    v_pk_add_f32 v[26:27], v[26:27], v[30:31]
    v_pk_add_f32 v[16:17], v[16:17], v[24:25]
    v_pk_add_f32 v[18:19], v[18:19], v[26:27]
    v_permlane32_swap_b32 v16, v17
    v_permlane32_swap_b32 v18, v19
    v_add_f32 v16, v16, v17
    v_add_f32 v18, v18, v19
    v_permlane16_swap_b32 v16, v18
    v_add_f32 v16, v16, v18
    v_cvt_pk_bf16_f32 v16, v16, v16
    v_and_b32 v16, s42, v16
    v_add_f32 v16, v16, v220
    v_cvt_pk_bf16_f32 v16, v16, v16
    v_and_b32 v16, s42, v16
    """)

    def wave_stats(x, st_off, arr_off):
        g(f"ds_write_b32 v223, v{x} offset:{arr_off}")
        g(f"v_mul_f32 v19, v{x}, v{x}\nv_mov_b32 v18, v{x}")
        g("v_permlane32_swap_b32 v18, v19\nv_add_f32 v18, v18, v19")
        for m in ["row_shr:1 row_mask:0xf bank_mask:0xf bound_ctrl:0", "row_shr:2 row_mask:0xf bank_mask:0xf bound_ctrl:0",
                  "row_shr:4 row_mask:0xf bank_mask:0xf bound_ctrl:0", "row_shr:8 row_mask:0xf bank_mask:0xf bound_ctrl:0",
                  "row_bcast:15 row_mask:0xa bank_mask:0xf"]:
            g(f"v_add_f32_dpp v18, v18, v18 {m}")
        mask("s[60:61]")
        g(f"ds_write_b32 v7, v18 offset:{st_off}")
        full()
        g("s_waitcnt lgkmcnt(0)")
        hook()
        g("s_barrier")

    def read_stats(st_off):
        for i in range(4):
            g(f"ds_read_b128 v[{20+4*i}:{23+4*i}], v14 offset:{st_off + 16*i}")

    def sum_stats():
        g("""
        v_pk_add_f32 v[20:21], v[20:21], v[22:23]
        v_pk_add_f32 v[24:25], v[24:25], v[26:27]
        v_pk_add_f32 v[28:29], v[28:29], v[30:31]
        v_pk_add_f32 v[32:33], v[32:33], v[34:35]
        v_pk_add_f32 v[20:21], v[20:21], v[24:25]
        v_pk_add_f32 v[28:29], v[28:29], v[32:33]
        v_pk_add_f32 v[20:21], v[20:21], v[28:29]
        """)

    def ln_elem(x):
        g(f"v_sub_f32 v{x}, v{x}, v20")
        g(f"v_cvt_pk_bf16_f32 v{x}, v{x}, v{x}\nv_and_b32 v{x}, s42, v{x}")
        g(f"v_mul_f32 v{x}, v{x}, v21")
        g(f"v_cvt_pk_bf16_f32 v{x}, v{x}, v{x}\nv_and_b32 v{x}, s42, v{x}")

    wave_stats(16, L_ST2, L_HR)
    if dbg:
        g("s_cmp_lt_u32 s3, 4\ns_cbranch_scc1 L_ts7")
        TS(7)
        g("L_ts7:")
    g("L_seg5:")
    read_stats(L_ST2)
    g("s_waitcnt lgkmcnt(0)")
    sum_stats()
    ln_scalar(20, 21, 22)
    ln_elem(16)
    wave_stats(16, L_ST3, L_HN)
    if dbg:
        g("s_cmp_lt_u32 s3, 4\ns_cbranch_scc1 L_ts8b")
        TS(8)
        g("L_ts8b:")
    g("L_seg6:")
    read_stats(L_ST3)
    g(f"ds_read_b32 v16, v15 offset:{L_HN}")
    g(f"ds_read_b32 v13, v15 offset:{L_HR}")
    g(f"s_mov_b32 s52, {f2u(BETA):#x}\ns_mov_b32 s53, {f2u(BETA):#x}")
    g("s_waitcnt lgkmcnt(0)")
    sum_stats()
    ln_scalar(20, 21, 22)
    ln_elem(16)
    if dbg:
        g("s_cmp_lt_u32 s3, 4\ns_cbranch_scc1 L_ts9b")
        TS(9)
        g("L_ts9b:")
    NB = 7
    for b0 in range(0, 14, NB):
        ks = list(range(b0, b0 + NB))
        S_ = lambda i: 24 + 4 * i
        Z = lambda i: 26 + 4 * i
        for i, k in enumerate(ks):
            w_ = MWB + 2 * k
            bb = MWB + 28 + 2 * k
            g(f"v_pk_fma_f32 v[{S_(i)}:{S_(i)+1}], v[{w_}:{w_+1}], v[16:17], v[{bb}:{bb+1}] op_sel:[0,0,0] op_sel_hi:[1,0,1]")
        for i, k in enumerate(ks):
            g(f"v_pk_fma_f32 v[{Z(i)}:{Z(i)+1}], v[{S_(i)}:{S_(i)+1}], v[{S_(i)}:{S_(i)+1}], s[52:53]")
        for i, k in enumerate(ks):
            g(f"v_pk_mul_f32 v[{Z(i)}:{Z(i)+1}], v[{Z(i)}:{Z(i)+1}], v[{S_(i)}:{S_(i)+1}]")
        for i, k in enumerate(ks):
            g(f"v_exp_f32 v{Z(i)}, v{Z(i)}\nv_exp_f32 v{Z(i)+1}, v{Z(i)+1}")
            vv = MWB + 56 + 2 * k
            g(f"v_pk_mul_f32 v[{S_(i)}:{S_(i)+1}], v[{S_(i)}:{S_(i)+1}], v[{vv}:{vv+1}]")
        for i, k in enumerate(ks):
            g(f"v_pk_add_f32 v[{Z(i)}:{Z(i)+1}], v[{Z(i)}:{Z(i)+1}], 1.0 op_sel_hi:[1,0]")
        for i, k in enumerate(ks):
            g(f"v_rcp_f32 v{Z(i)}, v{Z(i)}\nv_rcp_f32 v{Z(i)+1}, v{Z(i)+1}")
        for i, k in enumerate(ks):
            acc = 18 + 2 * (i & 1)
            if b0 == 0 and i < 2:
                g(f"v_pk_mul_f32 v[{acc}:{acc+1}], v[{S_(i)}:{S_(i)+1}], v[{Z(i)}:{Z(i)+1}]")
            else:
                g(f"v_pk_fma_f32 v[{acc}:{acc+1}], v[{S_(i)}:{S_(i)+1}], v[{Z(i)}:{Z(i)+1}], v[{acc}:{acc+1}]")
    g("v_pk_add_f32 v[18:19], v[18:19], v[20:21]\nv_add_f32 v18, v18, v19")
    srd(48, 36, 4096)
    g("""
    s_and_b32 s12, s11, 0x1e0
    s_and_b32 s14, s11, 1
    s_lshl_b32 s14, s14, 4
    s_add_u32 s12, s12, s14
    s_bfe_u32 s14, s11, 0x40001
    s_add_u32 s12, s12, s14
    s_lshl_b32 s14, s43, 9
    s_add_u32 s12, s12, s14
    s_lshl_b32 s12, s12, 1
    """)
    for m in ["row_shr:1 row_mask:0xf bank_mask:0xf bound_ctrl:0", "row_shr:2 row_mask:0xf bank_mask:0xf bound_ctrl:0",
              "row_shr:4 row_mask:0xf bank_mask:0xf bound_ctrl:0", "row_shr:8 row_mask:0xf bank_mask:0xf bound_ctrl:0",
              "row_bcast:15 row_mask:0xa bank_mask:0xf", "row_bcast:31 row_mask:0xc bank_mask:0xf"]:
        g(f"v_add_f32_dpp v18, v18, v18 {m}")
    g("""
    v_cvt_pk_bf16_f32 v18, v18, v18
    v_and_b32 v18, s42, v18
    v_add_f32 v18, v18, v221
    v_cvt_pk_bf16_f32 v18, v18, v18
    v_and_b32 v18, s42, v18
    v_add_f32 v18, v18, v13
    v_cvt_pk_bf16_f32 v18, v18, v18
    """)
    hook()
    g("s_mov_b32 exec_lo, 0\ns_mov_b32 exec_hi, 0x80000000")
    g("buffer_store_short v18, v14, s[48:51], s12 offen")
    g("s_or_b32 s8, s2, s3\ns_cmp_lg_u32 s8, 0\ns_cbranch_scc1 L_fin")
    g("s_add_u32 s94, s94, 1\nv_mov_b32 v4, s94")
    g(f"buffer_store_dword v4, v14, s[44:47], 0 offen offset:{WS_E}")
    g("L_fin:")
    if hdbg:
        g("s_mov_b64 exec, -1")
        g("s_memrealtime s[92:93]")
        g("s_waitcnt lgkmcnt(0)")
        srd(48, 38, 256)
        g("v_mov_b32 v4, 0")
        g("s_mov_b64 exec, 1")
        g("s_not_b32 s8, s72\nv_mov_b32 v8, s8\nbuffer_atomic_umax v8, v4, s[48:51], 0 offen")
        g("v_mov_b32 v9, s72\nbuffer_atomic_umax v9, v4, s[48:51], 0 offen offset:4")
        g("v_mov_b32 v10, s92\nbuffer_atomic_umax v10, v4, s[48:51], 0 offen offset:8")
        g("s_cmp_lg_u32 s3, 0\ns_cbranch_scc1 L_hd1")
        for n_, k in enumerate([3, 5, 6, 7, 8, 9]):
            g(f"v_mov_b32 v{11+n_}, s{72+2*k}\nbuffer_atomic_umax v{11+n_}, v4, s[48:51], 0 offen offset:{12+4*n_}")
        g("L_hd1:")
        g("s_cmp_lg_u32 s3, 4\ns_cbranch_scc1 L_hd2")
        for n_, k in enumerate([1, 2, 3, 4, 5, 7, 9]):
            g(f"v_mov_b32 v{11+n_}, s{72+2*k}\nbuffer_atomic_umax v{11+n_}, v4, s[48:51], 0 offen offset:{36+4*n_}")
        g("L_hd2:")
    elif dbg:
        g("s_mov_b64 exec, -1")
        g("s_memrealtime s[92:93]")
        g("s_waitcnt lgkmcnt(0)")
        g(f"s_lshl_b32 s8, s2, 10\ns_lshl_b32 s9, s3, 7\ns_add_u32 s8, s8, s9\ns_add_u32 s8, s8, {WS_DBG:#x}")
        g("v_mov_b32 v4, 0")
        g("s_mov_b64 exec, 1")
        for i in range(0, 22, 2):
            g(f"v_mov_b32 v8, s{72+i}\nv_mov_b32 v9, s{73+i}")
            g(f"buffer_store_dwordx2 v[8:9], v4, s[44:47], s8 offen offset:{4*i}")
            g("s_nop 1")
    g("L_end:")
    g("s_endpgm")
    g('.section .rodata,"a"')
    g(".p2align 6")
    g(f".amdhsa_kernel {KN}")
    for d in ["next_free_vgpr 256", "next_free_sgpr 102", "accum_offset 256", "group_segment_fixed_size 0", "kernarg_size 104",
              "user_sgpr_count 2", "user_sgpr_kernarg_segment_ptr 1", "system_sgpr_workgroup_id_x 1", "float_denorm_mode_32 3"]:
        g(f".amdhsa_{d}")
    g(".end_amdhsa_kernel")
    open(path, "w").write(g.text())


if __name__ == "__main__":
    kw = eval("dict(%s)" % (sys.argv[2] if len(sys.argv) > 2 else ""))
    gen(sys.argv[1], **kw)
```

```python
import sys, struct, math
from asmlib import Gen

KN = "sequential_preLN__sliding_block_cached__mixer_token_mlp__decode_kernel"

def f2u(x):
    return struct.unpack("<I", struct.pack("<f", x))[0]

WS_E = 0
WS_T = 0x1000
WS_LSE = 0x2000
WS_TAB = 0x4000
WS_H2 = 0x10000
WS_O = 0x40000
OSTR = 1152
WS_QS = 0x90000
QSL = 0x80000
WS_DBG = 0x200000
L_WQT = 0
L_OP = 0
OPW = 2304
OPH = 576
L_GP = 9216
L_MISS = 11264
L_ST2 = 15360
L_ST3 = 15424
L_WOT = 16384
L_TAB = 16384
L_XN = 32768
L_QL = 33792
L_PL = 34816
L_ST = 43008
L_WT = 43200
L_FL = 43456
L_MW = 43520
L_TOTAL = 55808
F_NL, F_Q, F_MW, F_ST, F_K, F_P, F_MISS, F_CL, F_VI = 0, 4, 8, 12, 16, 32, 48, 52, 56
EXP0 = 108
NBIN = 24
NW = 12

LOG2E = 1.4426950408889634
K0 = -2.0 * math.sqrt(2.0 / math.pi) * LOG2E
K1 = K0 * 0.044715
ALPHA = -((-K1) ** (1.0 / 3.0))
BETA = K0 / ALPHA
HEADER = open("sequential_preLN__sliding_block_cached__mixer_token_mlp__decode.s.ref").read().split("; Override launch")[0]

names_c = ["start", "B0", "q pub", "mw rdy", "tabdone", "-", "-", "-", "-", "-", "end"]
names_k = ["start", "Kissued", "q got", "P rdy", "preB3", "B3", "O pub", "B5", "h2 done", "B6b", "end"]
names_v = ["start", "rounds", "-", "-", "Vstart", "Vissued", "PVdone", "h1 done", "B5", "h2 done", "end"]

DPP6 = ["row_shr:1 row_mask:0xf bank_mask:0xf bound_ctrl:0", "row_shr:2 row_mask:0xf bank_mask:0xf bound_ctrl:0",
        "row_shr:4 row_mask:0xf bank_mask:0xf bound_ctrl:0", "row_shr:8 row_mask:0xf bank_mask:0xf bound_ctrl:0",
        "row_bcast:15 row_mask:0xa bank_mask:0xf", "row_bcast:31 row_mask:0xc bank_mask:0xf"]

VZ, VT, VONE, VFL, VFW = 160, 161, 162, 163, 164
VX, VB2, VH2, VCOL, VH2S, VGP, VST = 144, 145, 146, 147, 148, 149, 150
P0 = 152


def gen(path, dbg=False, kvflags="nt", wflags="nt", maxpoll=1 << 18, lim=6, limv=8, ksig=13, gpos=11, wolast=True, nloc=8, pretouch=True, force_fb=False, local=True, mwearly=True, slp=2, notab=False, nomw=False, g1=False):
    g = Gen()
    uid = [0]

    def TS(k, cond=None):
        if dbg:
            if cond:
                uid[0] += 1
                g(f"s_cmp_{'lt' if cond == 'V' else 'ge'}_u32 s3, 8\ns_cbranch_scc1 L_ts{uid[0]}")
            g(f"s_memrealtime s[{72+2*k}:{73+2*k}]")
            if cond:
                g(f"L_ts{uid[0]}:")

    def srd(d, lo, nbytes):
        g(f"s_mov_b32 s{d}, s{lo}\ns_and_b32 s{d+1}, s{lo+1}, 0xffff\ns_mov_b32 s{d+2}, {nbytes:#x}\ns_mov_b32 s{d+3}, 0x20000")

    def signal(off, vaddr=VFL):
        g("s_mov_b64 exec, 1")
        g(f"ds_add_u32 v{vaddr}, v{VONE} offset:{off}")
        g("s_mov_b64 exec, -1")

    def spin(off, target, sl=1, vaddr=VFL):
        uid[0] += 1
        u = uid[0]
        g("s_mov_b32 s71, 0")
        g(f"L_sp{u}:")
        g(f"ds_read_b32 v{VT}, v{vaddr} offset:{off}")
        g(f"s_add_u32 s71, s71, 1\ns_cmp_ge_u32 s71, {maxpoll*4}\ns_cbranch_scc1 L_spx{u}")
        g("s_waitcnt lgkmcnt(0)")
        g(f"v_readfirstlane_b32 s70, v{VT}")
        g(f"s_cmp_ge_u32 s70, {target}\ns_cbranch_scc1 L_spx{u}")
        g(f"s_sleep {sl}")
        g(f"s_branch L_sp{u}")
        g(f"L_spx{u}:")

    def tags():
        g("s_mul_i32 s92, s94, 0x85ebca6b\ns_add_u32 s92, s92, 0x7f4a7c15\ns_mul_i32 s93, s94, 0x9e3779b1\ns_add_u32 s93, s93, 0x1b873593")

    def ln_scalar(m, v, t):
        g(f"v_pk_mul_f32 v[{m}:{v}], v[{m}:{v}], s[8:9]")
        g(f"v_fma_f32 v{v}, -v{m}, v{m}, v{v}")
        g(f"v_max_f32 v{v}, 0, v{v}")
        g(f"v_cvt_pk_bf16_f32 v{t}, v{m}, v{v}")
        g(f"v_and_b32 v{v}, s42, v{t}")
        g(f"v_lshlrev_b32 v{m}, 16, v{t}")
        g(f"v_add_f32 v{v}, s10, v{v}")
        g(f"v_cvt_pk_bf16_f32 v{t}, v{v}, v{v}")
        g(f"v_and_b32 v{v}, s42, v{t}")
        g(f"v_sqrt_f32 v{v}, v{v}")
        g(f"v_cvt_pk_bf16_f32 v{t}, v{v}, v{v}")
        g(f"v_and_b32 v{v}, s42, v{t}")
        g(f"v_rcp_f32 v{v}, v{v}")

    g(HEADER.rstrip())
    g(f"; @launch grid=(256,1,1) block=({NW*64},1,1) lds={L_TOTAL}")
    g('.amdgcn_target "amdgcn-amd-amdhsa--gfx950"')
    g(".text")
    g(f".globl {KN}")
    g(".p2align 8")
    g(f".type {KN},@function")
    g(f"{KN}:")
    TS(0)
    g("""
    s_cmp_ge_u32 s2, 256
    s_cbranch_scc1 L_end
    s_load_dwordx16 s[16:31], s[0:1], 0
    s_load_dwordx8 s[32:39], s[0:1], 64
    s_load_dwordx2 s[40:41], s[0:1], 96
    v_lshrrev_b32 v4, 6, v0
    v_and_b32 v1, 63, v0
    v_readfirstlane_b32 s3, v4
    v_and_b32 v2, 15, v1
    v_lshrrev_b32 v3, 4, v1
    s_and_b32 s4, s2, 7
    s_lshr_b32 s5, s2, 3
    s_lshr_b32 s6, s5, 3
    s_and_b32 s7, s5, 7
    s_mov_b32 s42, 0xffff0000
    """)
    g(f"v_mov_b32 v{VFL}, {L_FL}\nv_mov_b32 v{VONE}, 1\nv_mov_b32 v{VZ}, 0")
    g(f"""
    s_and_b32 s15, s3, 3
    s_lshl_b32 s8, s6, 3
    s_add_u32 s8, s8, s4
    s_lshl_b32 s8, s8, 21
    s_lshl_b32 s9, s7, 16
    s_add_u32 s8, s8, s9
    s_add_u32 s8, s8, 0x180000
    s_add_u32 s9, s2, s5
    s_add_u32 s9, s9, s15
    s_lshl_b32 s11, s15, 2
    v_add_u32 v{VFW}, s11, v{VFL}
    """)
    for i in range(4):
        g(f"s_add_u32 s{64+i}, s9, {4*i}\ns_and_b32 s{64+i}, s{64+i}, 15\ns_lshl_b32 s{64+i}, s{64+i}, 12\ns_add_u32 s{64+i}, s{64+i}, s8")
    g("s_waitcnt lgkmcnt(0)")
    srd(44, 40, 0x10000000)
    g(f"s_load_dword s94, s[40:41], {WS_E}")
    g("s_getreg_b32 s0, hwreg(HW_REG_XCC_ID)\ns_and_b32 s0, s0, 7")
    g("""
    s_cmp_ge_u32 s3, 8
    s_cbranch_scc1 L_V
    s_cmp_ge_u32 s3, 4
    s_cbranch_scc1 L_K
    """)
    srd(60, 34, 2)
    g(f"buffer_load_ushort v{VB2}, v{VZ}, s[60:63], 0 offen")
    g("s_cmp_lg_u32 s3, 0\ns_cbranch_scc1 L_C123")
    srd(48, 16, 4096)
    srd(52, 22, 0x400000)
    g("""
    v_and_b32 v4, 3, v1
    v_lshlrev_b32 v5, 10, v4
    v_lshrrev_b32 v6, 2, v1
    v_lshl_add_u32 v6, v6, 6, v5
    """)
    for i in range(4):
        g(f"buffer_load_dwordx4 v[{16+4*i}:{19+4*i}], v6, s[48:51], 0 offen offset:{16*i}")
    g("""
    v_lshrrev_b32 v7, 2, v2
    v_lshl_add_u32 v5, v7, 6, v5
    v_lshl_add_u32 v5, v3, 3, v5
    s_lshl_b32 s8, s6, 8
    buffer_load_dwordx2 v[32:33], v5, s[48:51], s8 offen
    buffer_load_dwordx2 v[34:35], v5, s[48:51], s8 offen offset:32
    v_lshrrev_b32 v6, 3, v1
    v_lshlrev_b32 v6, 13, v6
    v_and_b32 v8, 7, v1
    v_lshlrev_b32 v9, 1, v3
    v_xor_b32 v8, v8, v9
    v_lshl_add_u32 v6, v8, 4, v6
    s_lshl_b32 s8, s6, 20
    s_lshl_b32 s9, s4, 10
    s_add_u32 s8, s8, s9
    s_lshl_b32 s9, s7, 7
    s_add_u32 s8, s8, s9
    """)
    for i in range(16):
        g(f"s_mov_b32 m0, {L_WQT + 1024*i}")
        g(f"buffer_load_dwordx4 v6, s[52:55], s8 offen {wflags} lds")
        if i < 15:
            g("s_add_u32 s8, s8, 0x10000")
    g("s_barrier")
    TS(1)
    g("s_branch L_Q2")

    g("L_K:")
    srd(48, 18, 0x4000000)
    g("v_lshlrev_b32 v4, 8, v2\nv_lshl_add_u32 v4, v3, 4, v4")
    g("""
    s_lshl_b32 s8, s4, 16
    s_lshl_b32 s9, s6, 14
    s_add_u32 s8, s8, s9
    s_lshl_b32 s9, s15, 10
    s_add_u32 s8, s8, s9
    """)
    g(f"s_add_u32 s12, s8, {WS_QS:#x}\ns_add_u32 s13, s12, 0x1000\ns_add_u32 s14, s12, 0x2000\ns_add_u32 s43, s12, 0x3000")
    g(f"s_lshl_b32 s68, s15, 9\ns_add_u32 s68, s68, {WS_T:#x}")
    g(f"v_lshlrev_b32 v5, 4, v1\nv_add_u32 v5, {QSL:#x}, v5\nv_lshlrev_b32 v6, 3, v1")
    g("s_setprio 2")
    g("s_barrier")
    KR, QF, SA, PR, TM = 16, 80, 96, 112, 120
    qso = ["s12", "s13", "s14", "s43"] if not g1 else ["s12", "s12", "s12", "s12"]

    def kload(n):
        T, t = n >> 2, n & 3
        r = KR + 16 * T + 4 * t
        g(f"buffer_load_dwordx4 v[{r}:{r+3}], v4, s[48:51], s{64+T} offen offset:{64*t} {kvflags}")
    for n in range(0, 16):
        if n == gpos:
            for ks in range(4):
                g(f"buffer_load_dwordx4 v[{QF+4*ks}:{QF+4*ks+3}], v5, s[44:47], {qso[ks]} offen sc1")
        if n >= lim:
            extra = 4 if (n >= gpos and n - lim < gpos) else 0
            g(f"s_waitcnt vmcnt({lim-1+extra})")
        kload(n)
        if n == ksig:
            signal(F_K, VFW)
    if gpos >= 16:
        for ks in range(4):
            g(f"buffer_load_dwordx4 v[{QF+4*ks}:{QF+4*ks+3}], v5, s[44:47], {qso[ks]} offen sc1")
    TS(1)
    g("s_waitcnt lgkmcnt(0)")
    tags()
    g("s_mov_b32 s71, 0")
    g(f"s_waitcnt vmcnt({max(16-gpos,0)})")
    g("s_branch L_qchk")
    g("L_qpoll:")
    g(f"s_cmp_lg_u32 s71, {nloc}\ns_cbranch_scc1 L_qnl")
    g("v_lshlrev_b32 v5, 4, v1")
    g("L_qnl:")
    for ks in range(4):
        g(f"s_mov_b64 exec, s[{52+2*ks}:{53+2*ks}]")
        g(f"s_cbranch_execz L_qs{ks}")
        g(f"buffer_load_dwordx4 v[{QF+4*ks}:{QF+4*ks+3}], v5, s[44:47], {qso[ks]} offen sc1")
        g(f"L_qs{ks}:")
    g("s_mov_b64 exec, -1")
    g("s_waitcnt vmcnt(0)")
    g("L_qchk:")
    for ks in range(4):
        r = QF + 4 * ks
        g(f"v_xor_b32 v8, v{r+2}, v{r+1}")
        g(f"v_xor_b32 v9, v{r+3}, v{r}")
        g("v_xor_b32 v8, s92, v8")
        g(f"v_subrev_u32 v{128+ks}, s93, v9")
        g(f"v_lshrrev_b32 v9, 3, v{128+ks}")
        g("v_or_b32 v8, v8, v9")
        g(f"v_cmp_ne_u32_e64 s[{52+2*ks}:{53+2*ks}], 0, v8")
    g(f"s_add_u32 s71, s71, 1\ns_cmp_ge_u32 s71, {maxpoll}\ns_cbranch_scc1 L_qdone")
    g("s_or_b64 s[8:9], s[52:53], s[54:55]\ns_or_b64 s[10:11], s[56:57], s[58:59]\ns_or_b64 s[8:9], s[8:9], s[10:11]")
    g("s_cbranch_scc1 L_qpoll")
    g("L_qdone:")
    g("v_xor_b32 v128, s0, v128\nv_xor_b32 v129, s0, v129\nv_xor_b32 v130, s0, v130\nv_xor_b32 v131, s0, v131")
    g("v_or3_b32 v128, v128, v129, v130\nv_or_b32 v128, v128, v131")
    g("v_cmp_ne_u32 vcc, 0, v128")
    g("s_cmp_eq_u64 vcc, 0\ns_cbranch_scc1 L_alllocal")
    signal(F_NL)
    g("L_alllocal:")
    g(f"v_pk_add_f32 v[{QF}:{QF+1}], v[{QF}:{QF+1}], v[{QF+4}:{QF+5}]")
    g(f"v_pk_add_f32 v[{QF+8}:{QF+9}], v[{QF+8}:{QF+9}], v[{QF+12}:{QF+13}]")
    g(f"v_pk_add_f32 v[{QF}:{QF+1}], v[{QF}:{QF+1}], v[{QF+8}:{QF+9}]")
    g(f"v_cvt_pk_bf16_f32 v8, v{QF}, v{QF+1}")
    g("v_lshlrev_b32 v9, 2, v1\ns_lshl_b32 s8, s15, 8\nv_add_u32 v9, s8, v9")
    g(f"ds_write_b32 v9, v8 offset:{L_QL}")
    signal(F_Q)
    g("""
    v_and_b32 v10, 3, v2
    v_lshlrev_b32 v7, 8, v10
    v_lshl_add_u32 v7, v3, 4, v7
    v_lshlrev_b32 v12, 5, v10
    s_lshl_b32 s11, s15, 3
    v_add_u32 v13, s11, v12
    v_lshlrev_b32 v14, 4, v1
    s_lshl_b32 s11, s15, 11
    v_add_u32 v14, s11, v14
    """)
    spin(F_Q, 4)
    TS(2)
    for t in range(4):
        g(f"ds_read_b128 v[{QF+4*t}:{QF+4*t+3}], v7 offset:{L_QL + 64*t}")
    SC = 128 ** -0.5
    g(f"s_mov_b32 s8, {f2u(SC):#x}\ns_mov_b32 s9, {f2u(SC):#x}\ns_mov_b32 s10, {f2u(LOG2E):#x}")
    g("s_waitcnt lgkmcnt(0)")
    for T in range(4):
        g(f"s_waitcnt vmcnt({12-4*T})")
        for t in range(4):
            r = KR + 16 * T + 4 * t
            c = "0" if t == 0 else f"v[{SA+4*T}:{SA+4*T+3}]"
            g(f"v_mfma_f32_16x16x32_bf16 v[{SA+4*T}:{SA+4*T+3}], v[{r}:{r+3}], v[{QF+4*t}:{QF+4*t+3}], {c}")
    for rep in range(2):
        for p in range(8):
            a = SA + 2 * p
            g(f"v_cvt_pk_bf16_f32 v{TM+p}, v{a}, v{a+1}")
        for p in range(8):
            a = SA + 2 * p
            g(f"v_lshlrev_b32 v{a}, 16, v{TM+p}")
            g(f"v_and_b32 v{a+1}, s42, v{TM+p}")
        if rep == 0:
            for p in range(8):
                a = SA + 2 * p
                g(f"v_pk_mul_f32 v[{a}:{a+1}], v[{a}:{a+1}], s[8:9]")
    g(f"v_max3_f32 v8, v{SA}, v{SA+1}, v{SA+2}")
    g(f"v_max3_f32 v9, v{SA+3}, v{SA+4}, v{SA+5}")
    g(f"v_max3_f32 v10, v{SA+6}, v{SA+7}, v{SA+8}")
    g(f"v_max3_f32 v11, v{SA+9}, v{SA+10}, v{SA+11}")
    g(f"v_max3_f32 v8, v8, v{SA+12}, v{SA+13}")
    g(f"v_max3_f32 v9, v9, v{SA+14}, v{SA+15}")
    g("v_max3_f32 v8, v8, v9, v10\nv_max_f32 v8, v8, v11")
    g("v_mov_b32 v9, v8\nv_permlane32_swap_b32 v8, v9\nv_max_f32 v8, v8, v9")
    g("v_mov_b32 v9, v8\nv_permlane16_swap_b32 v8, v9\nv_max_f32 v8, v8, v9")
    g("v_mul_f32 v10, s10, v8")
    for e in range(16):
        g(f"v_fma_f32 v{SA+e}, v{SA+e}, s10, -v10")
    for e in range(16):
        g(f"v_exp_f32 v{SA+e}, v{SA+e}")
    for p in range(8):
        g(f"v_cvt_pk_bf16_f32 v{PR+p}, v{SA+2*p}, v{SA+2*p+1}")
    g(f"ds_write_b128 v14, v[{PR}:{PR+3}] offset:{L_PL}")
    g(f"ds_write_b128 v14, v[{PR+4}:{PR+7}] offset:{L_PL+1024}")
    signal(F_P, VFW)
    for p in range(4):
        g(f"v_pk_add_f32 v[{SA+2*p}:{SA+2*p+1}], v[{SA+2*p}:{SA+2*p+1}], v[{SA+8+2*p}:{SA+9+2*p}]")
    for p in range(2):
        g(f"v_pk_add_f32 v[{SA+2*p}:{SA+2*p+1}], v[{SA+2*p}:{SA+2*p+1}], v[{SA+4+2*p}:{SA+5+2*p}]")
    g(f"v_pk_add_f32 v[{SA}:{SA+1}], v[{SA}:{SA+1}], v[{SA+2}:{SA+3}]")
    g(f"v_add_f32 v9, v{SA}, v{SA+1}")
    g("v_mov_b32 v11, v9\nv_permlane32_swap_b32 v9, v11\nv_add_f32 v9, v9, v11")
    g("v_mov_b32 v11, v9\nv_permlane16_swap_b32 v9, v11\nv_add_f32 v9, v9, v11")
    g("s_mov_b64 exec, 15")
    g(f"ds_write_b64 v13, v[8:9] offset:{L_ST}")
    g("s_mov_b64 exec, -1")
    signal(F_ST)
    TS(3)
    spin(F_ST, 4)
    FA = P0
    g("s_lshl_b32 s11, s15, 5\nv_mov_b32 v12, s11")
    g(f"ds_read_b128 v[16:19], v12 offset:{L_ST}")
    g(f"ds_read_b128 v[20:23], v12 offset:{L_ST+16}")
    g(f"ds_read_b32 v27, v{VFL} offset:{F_NL}")
    g("s_waitcnt lgkmcnt(0)")
    g("v_readfirstlane_b32 s1, v27")
    g("v_max3_f32 v24, v16, v18, v20\nv_max_f32 v24, v24, v22")
    for i in range(4):
        g(f"v_sub_f32 v{FA+i}, v{16+2*i}, v24")
        g(f"v_mul_f32 v{FA+i}, s10, v{FA+i}")
        g(f"v_exp_f32 v{FA+i}, v{FA+i}")
    g(f"v_mul_f32 v25, v{FA}, v17")
    for i in range(1, 4):
        g(f"v_fmac_f32 v25, v{FA+i}, v{17+2*i}")
    g("v_rcp_f32 v26, v25\nv_log_f32 v25, v25")
    for i in range(4):
        g(f"v_mul_f32 v{FA+i}, v{FA+i}, v26")
    VOPR, VL4, VLSE = P0 + 4, P0 + 5, P0 + 6
    g(f"v_fma_f32 v25, v24, s10, v25\nv_min_u32 v{VLSE}, -2, v25")
    g(f"v_lshlrev_b32 v{VOPR}, 3, v1\ns_mul_i32 s11, s15, {OPH}\nv_add_u32 v{VOPR}, s11, v{VOPR}")
    g(f"v_lshlrev_b32 v{VL4}, 2, v1")
    g("s_cmp_ge_u32 s2, 4\ns_cbranch_scc1 L_tdone")
    g("s_mov_b32 s71, 0")
    g("L_tpoll:")
    g("buffer_load_dwordx2 v[128:129], v6, s[44:47], s68 offen sc1")
    g("s_waitcnt vmcnt(0)")
    g("v_xor_b32 v16, s92, v128\nv_xor_b32 v17, s93, v129\nv_or_b32 v16, v16, v17")
    g("v_cmp_ne_u32 vcc, 0, v16")
    g(f"s_add_u32 s71, s71, 1\ns_cmp_ge_u32 s71, {maxpoll}\ns_cbranch_scc1 L_tdone")
    g("s_cmp_lg_u64 vcc, 0\ns_cbranch_scc1 L_tpoll")
    g("L_tdone:")
    g(f"s_lshl_b32 s11, s4, 5\ns_add_u32 s11, s11, s5\ns_mul_i32 s11, s11, {OSTR}\ns_add_u32 s11, s11, {WS_O:#x}\ns_lshl_b32 s13, s15, 8\ns_add_u32 s68, s11, s13\ns_lshl_b32 s13, s15, 2\ns_add_u32 s62, s11, s13")
    g("s_call_b64 s[100:101], L_fsetup")
    g("s_mov_b64 exec, 1")
    if local:
        g("s_cmp_lg_u32 s1, 0\ns_cbranch_scc1 L_lstg")
        g(f"buffer_store_dword v{VLSE}, v{VZ}, s[44:47], s62 offen offset:1024")
        g("s_branch L_lsd")
        g("L_lstg:")
    g(f"buffer_store_dword v{VLSE}, v{VZ}, s[44:47], s62 offen offset:1024 sc1")
    g("L_lsd:")
    g("s_mov_b64 exec, -1")
    g("s_waitcnt lgkmcnt(0)")
    TS(4)
    g("s_barrier")
    TS(5)
    for w in range(4):
        g(f"ds_read_b64 v[{16+2*w}:{17+2*w}], v{VOPR} offset:{L_OP + OPW*w}")
    g("s_waitcnt lgkmcnt(0)")
    g(f"v_pk_mul_f32 v[16:17], v[16:17], v[{FA}:{FA+1}] op_sel:[0,0] op_sel_hi:[1,0]")
    g(f"v_pk_mul_f32 v[20:21], v[20:21], v[{FA+2}:{FA+3}] op_sel:[0,0] op_sel_hi:[1,0]")
    g(f"v_pk_fma_f32 v[16:17], v[18:19], v[{FA}:{FA+1}], v[16:17] op_sel:[0,1,0] op_sel_hi:[1,1,1]")
    g(f"v_pk_fma_f32 v[20:21], v[22:23], v[{FA+2}:{FA+3}], v[20:21] op_sel:[0,1,0] op_sel_hi:[1,1,1]")
    g("v_pk_add_f32 v[16:17], v[16:17], v[20:21]")
    g("v_cvt_pk_bf16_f32 v16, v16, v17\nv_min_u32 v16, -2, v16")
    if local:
        g("s_cmp_lg_u32 s1, 0\ns_cbranch_scc1 L_ostg")
        g(f"buffer_store_dword v16, v{VL4}, s[44:47], s68 offen")
        TS(6)
        g("s_branch L_B5")
        g("L_ostg:")
    g(f"buffer_store_dword v16, v{VL4}, s[44:47], s68 offen sc1")
    TS(6)
    g("s_branch L_B5")

    g("L_fsetup:")
    g(f"""
    s_sub_u32 s63, s3, 4
    s_lshr_b32 s13, s5, 4
    s_lshl_b32 s14, s4, 1
    s_add_u32 s13, s13, s14
    s_lshl_b32 s13, s13, 11
    s_and_b32 s14, s5, 15
    s_lshl_b32 s14, s14, 7
    s_add_u32 s13, s13, s14
    v_lshlrev_b32 v{VH2S}, 15, v3
    v_lshl_add_u32 v{VH2S}, v2, 3, v{VH2S}
    v_lshlrev_b32 v{VGP}, 3, v1
    """)
    g(f"s_add_u32 s69, s13, {WS_H2:#x}")
    srd(56, 16, 4096)
    g(f"""
    v_and_b32 v8, 1, v3
    v_lshlrev_b32 v8, 1, v8
    v_lshrrev_b32 v9, 1, v3
    v_or_b32 v8, v8, v9
    v_lshl_add_u32 v8, v2, 2, v8
    s_lshl_b32 s8, s63, 6
    v_add_u32 v8, s8, v8
    v_lshlrev_b32 v{VCOL}, 1, v8
    s_and_b32 s8, s2, 3
    s_lshl_b32 s43, s8, 10
    v_lshlrev_b32 v{VH2}, 11, v3
    v_lshl_add_u32 v{VH2}, v2, 4, v{VH2}
    s_lshl_b32 s11, s63, 3
    v_lshrrev_b32 v{VST}, 5, v1
    v_lshlrev_b32 v{VST}, 2, v{VST}
    v_add_u32 v{VST}, s11, v{VST}
    s_cmp_ge_u32 s2, 4
    s_cbranch_scc1 L_fs1
    buffer_load_ushort v{VX}, v{VCOL}, s[56:59], s43 offen
    L_fs1:
    s_setpc_b64 s[100:101]
    """)

    g("L_Q2:")
    g("s_setprio 1")
    g("s_waitcnt vmcnt(18)")
    g("s_mov_b32 s8, 0x3f803f80\nv_mov_b32 v10, 0\nv_mov_b32 v11, 0\nv_mov_b32 v12, 0\nv_mov_b32 v13, 0")
    for i in range(0, 16, 2):
        g(f"v_dot2_f32_bf16 v10, v{16+i}, s8, v10")
        g(f"v_dot2_f32_bf16 v11, v{16+i}, v{16+i}, v11")
        g(f"v_dot2_f32_bf16 v12, v{17+i}, s8, v12")
        g(f"v_dot2_f32_bf16 v13, v{17+i}, v{17+i}, v13")
    g("s_nop 2")
    g("v_pk_add_f32 v[10:11], v[10:11], v[12:13]")
    for m in ("row_ror:4", "row_ror:8"):
        g(f"v_add_f32_dpp v10, v10, v10 {m} row_mask:0xf bank_mask:0xf")
        g(f"v_add_f32_dpp v11, v11, v11 {m} row_mask:0xf bank_mask:0xf")
    for sw in ("v_permlane32_swap_b32", "v_permlane16_swap_b32"):
        g("v_mov_b32 v12, v10\nv_mov_b32 v13, v11")
        g(f"{sw} v10, v12\n{sw} v11, v13")
        g("v_pk_add_f32 v[10:11], v[10:11], v[12:13]")
    g(f"s_mov_b32 s8, {f2u(1.0/512):#x}\ns_mov_b32 s9, {f2u(1.0/512):#x}\ns_mov_b32 s10, {f2u(1e-5):#x}")
    ln_scalar(10, 11, 12)
    g("s_waitcnt vmcnt(16)")
    for d in range(4):
        a = 16 + 2 * d
        g(f"v_lshlrev_b32 v{a}, 16, v{32+d}\nv_and_b32 v{a+1}, s42, v{32+d}")
    for d in range(4):
        a = 16 + 2 * d
        g(f"v_pk_add_f32 v[{a}:{a+1}], v[{a}:{a+1}], v[10:11] op_sel:[0,0] op_sel_hi:[1,0] neg_lo:[0,1] neg_hi:[0,1]")
    for d in range(4):
        a = 16 + 2 * d
        g(f"v_cvt_pk_bf16_f32 v{32+d}, v{a}, v{a+1}")
    for d in range(4):
        a = 16 + 2 * d
        g(f"v_lshlrev_b32 v{a}, 16, v{32+d}\nv_and_b32 v{a+1}, s42, v{32+d}")
    for d in range(4):
        a = 16 + 2 * d
        g(f"v_pk_mul_f32 v[{a}:{a+1}], v[{a}:{a+1}], v[10:11] op_sel:[0,1] op_sel_hi:[1,1]")
    for d in range(4):
        a = 16 + 2 * d
        g(f"v_cvt_pk_bf16_f32 v{32+d}, v{a}, v{a+1}")
    g("""
    v_lshlrev_b32 v8, 8, v4
    v_lshl_add_u32 v8, v3, 4, v8
    v_lshl_add_u32 v9, v7, 6, v8
    """)
    g(f"ds_write_b128 v9, v[32:35] offset:{L_XN}")
    for kb in range(4):
        g(f"ds_read_b128 v[{36+4*kb}:{39+4*kb}], v8 offset:{L_XN + 64*kb}")
    g("""
    v_lshrrev_b32 v9, 2, v2
    v_lshl_add_u32 v9, v3, 2, v9
    v_bfe_u32 v14, v9, 1, 2
    v_lshlrev_b32 v9, 7, v9
    v_lshl_add_u32 v9, v4, 3, v9
    """)
    for mt in range(4):
        g(f"v_xor_b32 v15, {mt}, v14")
        g(f"v_lshl_add_u32 v{10+mt}, v15, 5, v9")
    g("s_waitcnt lgkmcnt(0)")
    tags()
    AF = 52
    for kb in range(4):
        g(f"s_waitcnt vmcnt({12-4*kb})")
        for mt in range(4):
            r = AF + 16 * kb + 4 * mt
            g(f"ds_read_b64_tr_b16 v[{r}:{r+1}], v{10+mt} offset:{L_WQT + 4096*kb}")
            g(f"ds_read_b64_tr_b16 v[{r+2}:{r+3}], v{10+mt} offset:{L_WQT + 4096*kb + 2048}")
    for z in (1, 2, 3):
        g(f"v_cmp_eq_u32_e64 s[{50+2*z}:{51+2*z}], {z}, v7")
    g("""
    v_lshlrev_b32 v8, 14, v4
    v_lshl_add_u32 v8, v7, 7, v8
    v_lshl_add_u32 v8, v3, 5, v8
    s_lshl_b32 s8, s4, 16
    s_lshl_b32 s9, s6, 12
    s_add_u32 s8, s8, s9
    s_lshl_b32 s9, s7, 9
    s_add_u32 s8, s8, s9
    """)
    g(f"s_add_u32 s8, s8, {WS_QS:#x}")
    g("s_add_u32 s93, s93, s0")
    g("s_waitcnt lgkmcnt(0)")
    QD = 116
    for kb in range(4):
        for mt in range(4):
            r = AF + 16 * kb + 4 * mt
            c = "0" if kb == 0 else f"v[{QD+4*mt}:{QD+4*mt+3}]"
            g(f"v_mfma_f32_16x16x32_bf16 v[{QD+4*mt}:{QD+4*mt+3}], v[{r}:{r+3}], v[{36+4*kb}:{39+4*kb}], {c}")
    for z in (1, 2, 3):
        for i in range(4):
            g(f"v_cndmask_b32_e64 v{QD+i}, v{QD+i}, v{QD+4*z+i}, s[{50+2*z}:{51+2*z}]")
    spin(F_CL, 1)
    g(f"""
    v_mov_b32 v136, v{QD}
    v_mov_b32 v137, v{QD+1}
    v_xor_b32 v138, s92, v{QD+1}
    v_xor_b32 v139, s93, v{QD}
    v_mov_b32 v140, v{QD+2}
    v_mov_b32 v141, v{QD+3}
    v_xor_b32 v142, s92, v{QD+3}
    v_xor_b32 v143, s93, v{QD+2}
    s_add_u32 s9, s8, {QSL:#x}
    s_setprio 3
    buffer_store_dwordx4 v[136:139], v8, s[44:47], s9 offen
    buffer_store_dwordx4 v[140:143], v8, s[44:47], s9 offen offset:16
    buffer_store_dwordx4 v[136:139], v8, s[44:47], s8 offen sc1
    buffer_store_dwordx4 v[140:143], v8, s[44:47], s8 offen offset:16 sc1
    s_setprio 0
    """)
    TS(2)
    g("s_branch L_C")

    g("L_C123:")
    g("s_cmp_lg_u32 s3, 1\ns_cbranch_scc1 L_C23")
    g("v_lshlrev_b32 v4, 2, v2")
    g(f"ds_write_b32 v4, v{VZ} offset:{L_FL}")
    srd(48, 28, 3584)
    srd(52, 30, 3584)
    srd(56, 32, 3584)
    g("v_lshlrev_b32 v6, 4, v1")
    g("s_waitcnt lgkmcnt(0)")
    if not mwearly: g("s_barrier")
    for a in range(3):
        g(f"s_mov_b32 m0, {L_MW + 4096*a}")
        for i in range(4):
            if not nomw: g(f"buffer_load_dwordx4 v6, s[{48+4*a}:{51+4*a}], 0 offen offset:{1024*i} lds")
    if mwearly: g("s_barrier")
    g("s_waitcnt vmcnt(0)")
    signal(F_MW)
    g("s_branch L_C")
    g("L_C23:")
    g("s_cmp_eq_u32 s3, 2\ns_cbranch_scc1 L_C2")
    g("s_barrier")
    g("s_waitcnt vmcnt(0)")
    g("s_branch L_C")
    g("L_C2:")
    g("""
    s_lshl_b32 s11, s4, 5
    s_add_u32 s11, s11, s5
    v_mov_b32 v8, -1
    v_mov_b32 v9, -1
    v_mov_b32 v10, -1
    v_mov_b32 v11, -1
    v_lshlrev_b32 v4, 4, v1
    """)
    g(f"s_mul_i32 s12, s11, {OSTR}\ns_add_u32 s12, s12, {WS_O:#x}")
    g("buffer_store_dwordx4 v[8:11], v4, s[44:47], s12 offen sc1")
    g("""
    v_lshlrev_b32 v5, 15, v3
    v_lshl_add_u32 v5, v2, 3, v5
    s_lshr_b32 s13, s5, 4
    s_lshl_b32 s14, s4, 1
    s_add_u32 s13, s13, s14
    s_lshl_b32 s13, s13, 11
    s_and_b32 s14, s5, 15
    s_lshl_b32 s14, s14, 7
    s_add_u32 s13, s13, s14
    """)
    g(f"s_add_u32 s13, s13, {WS_H2:#x}")
    g("buffer_store_dwordx2 v[8:9], v5, s[44:47], s13 offen sc1")
    g("s_mov_b64 exec, 1")
    g("buffer_store_dwordx4 v[8:11], v4, s[44:47], s12 offen offset:1024 sc1")
    g(f"s_mul_i32 s14, s2, 48\ns_add_u32 s14, s14, {WS_TAB:#x}")
    g("s_mov_b64 exec, 7")
    g("buffer_store_dwordx4 v[8:11], v4, s[44:47], s14 offen sc1")
    g("s_mov_b64 exec, -1")
    g("s_barrier")
    g("s_waitcnt vmcnt(0) lgkmcnt(0)")
    tags()
    signal(F_CL)
    if pretouch:
        g("s_setprio 3")
        g("buffer_load_dwordx4 v[152:155], v4, s[44:47], s12 offen sc1")
        g(f"buffer_load_dword v156, v{VZ}, s[44:47], s12 offen offset:1024 sc1")
    g("v_mov_b32 v8, s92\nv_mov_b32 v9, s93")
    g(f"s_lshl_b32 s9, s2, 3\ns_add_u32 s9, s9, {WS_T:#x}")
    g("s_mov_b64 exec, 1")
    g(f"buffer_store_dwordx2 v[8:9], v{VZ}, s[44:47], s9 offen sc1")
    g("s_mov_b64 exec, -1")
    g("s_setprio 0")
    signal(F_MW)

    MWB, EH, EA, ES = 16, 100, 102, 108
    g("L_C:")
    spin(F_MW, 2)
    TS(3)
    if dbg: g("s_memtime s[82:83]")
    g(f"v_lshlrev_b32 v4, 2, v1")
    for a in range(3):
        for k in range(14):
            g(f"ds_read_b32 v{MWB+28*a+2*k+1}, v4 offset:{L_MW + 4096*a + 256*k}")
    g(f"s_mov_b32 s8, {f2u(ALPHA):#x}\ns_mov_b32 s9, {f2u(ALPHA):#x}\ns_mov_b32 s10, {f2u(1.0/ALPHA):#x}\ns_mov_b32 s11, {f2u(1.0/ALPHA):#x}")
    g("s_waitcnt lgkmcnt(0)")
    for a in range(3):
        for k in range(14):
            r = MWB + 28 * a + 2 * k
            g(f"v_lshlrev_b32 v{r}, 16, v{r+1}")
            g(f"v_and_b32 v{r+1}, s42, v{r+1}")
    for a in range(3):
        for k in range(14):
            r = MWB + 28 * a + 2 * k
            g(f"v_pk_mul_f32 v[{r}:{r+1}], v[{r}:{r+1}], s[{8 if a < 2 else 10}:{9 if a < 2 else 11}]")
    g(f"s_mov_b32 s62, {f2u(BETA):#x}\ns_mov_b32 s63, {f2u(BETA):#x}")
    g("s_mul_i32 s95, s2, 24\ns_mul_i32 s96, s3, 6\ns_add_u32 s95, s95, s96\ns_add_u32 s96, s95, 6")
    g(f"v_lshlrev_b32 v{VB2}, 16, v{VB2}")
    g("L_tab1:")
    g(f"s_cmp_ge_u32 s95, {NBIN*128}\ns_cselect_b32 s97, {0x8000 - NBIN*128}, 0")
    g(f"s_add_u32 s97, s97, s95\ns_add_u32 s97, s97, {EXP0 << 7}\ns_lshl_b32 s97, s97, 16\nv_mov_b32 v{EH}, s97")
    if not notab: g("s_call_b64 s[100:101], L_eval")
    g(f"v_alignbit_b32 v136, v137, v136, 16\nv_alignbit_b32 v137, v138, v137, 16\nv_alignbit_b32 v138, v{EA}, v138, 16")
    g("s_add_u32 s95, s95, 1\ns_cmp_lt_u32 s95, s96\ns_cbranch_scc1 L_tab1")
    g(f"s_lshl_b32 s97, s96, 1\ns_add_u32 s97, s97, {WS_TAB - 12:#x}")
    g("s_mov_b32 exec_lo, 0\ns_mov_b32 exec_hi, 0x80000000")
    g("s_setprio 3")
    g(f"buffer_store_dwordx3 v[136:138], v{VZ}, s[44:47], s97 offen sc1")
    g("s_mov_b64 exec, -1")
    TS(4)
    if dbg: g("s_memtime s[84:85]")
    g("s_cmp_ge_u32 s2, 4\ns_cbranch_scc1 L_fin")
    srd(48, 36, 4096)
    g(f"v_lshlrev_b32 v4, 4, v1\ns_mul_i32 s12, s3, 3072\ns_add_u32 m0, s12, {L_TAB}\ns_add_u32 s12, s12, {WS_TAB:#x}")
    g("s_barrier\ns_barrier")
    for i in range(3):
        g(f"buffer_load_dwordx4 v4, s[44:47], s12 offen offset:{1024*i} sc1 lds")
    g("s_waitcnt vmcnt(0)")
    g("s_barrier\ns_barrier\ns_barrier")
    g(f"ds_read_b32 v4, v{VFL} offset:{F_MISS}")
    g("s_waitcnt lgkmcnt(0)")
    g("v_readfirstlane_b32 s96, v4")
    g("s_mov_b32 s95, s3")
    g("s_lshl_b32 s43, s2, 10")
    g("L_fb:")
    g("s_cmp_ge_u32 s95, s96\ns_cbranch_scc1 L_fin")
    g("s_lshl_b32 s8, s95, 3\nv_mov_b32 v4, s8")
    g(f"ds_read_b64 v[6:7], v4 offset:{L_MISS}")
    g("s_waitcnt lgkmcnt(0)")
    g(f"v_and_b32 v{EH}, s42, v6\nv_and_b32 v6, 0xffff, v6")
    g("s_call_b64 s[100:101], L_eval")
    g(f"v_and_b32 v8, s42, v{EA}\nv_add_f32 v8, v8, v7\nv_cvt_pk_bf16_f32 v8, v8, v8")
    g("s_mov_b32 exec_lo, 0\ns_mov_b32 exec_hi, 0x80000000")
    g("buffer_store_short v8, v6, s[48:51], s43 offen")
    g("s_mov_b64 exec, -1")
    g("s_add_u32 s95, s95, 4\ns_branch L_fb")

    g("L_eval:")
    NB = 7
    for b0 in range(0, 14, NB):
        ks = list(range(b0, b0 + NB))
        S_ = lambda i: ES + 4 * i
        Z = lambda i: ES + 2 + 4 * i
        for i, k in enumerate(ks):
            w_ = MWB + 2 * k
            bb = MWB + 28 + 2 * k
            g(f"v_pk_fma_f32 v[{S_(i)}:{S_(i)+1}], v[{w_}:{w_+1}], v[{EH}:{EH+1}], v[{bb}:{bb+1}] op_sel:[0,0,0] op_sel_hi:[1,0,1]")
        for i, k in enumerate(ks):
            g(f"v_pk_fma_f32 v[{Z(i)}:{Z(i)+1}], v[{S_(i)}:{S_(i)+1}], v[{S_(i)}:{S_(i)+1}], s[62:63]")
        for i, k in enumerate(ks):
            g(f"v_pk_mul_f32 v[{Z(i)}:{Z(i)+1}], v[{Z(i)}:{Z(i)+1}], v[{S_(i)}:{S_(i)+1}]")
        for i, k in enumerate(ks):
            g(f"v_exp_f32 v{Z(i)}, v{Z(i)}\nv_exp_f32 v{Z(i)+1}, v{Z(i)+1}")
            vv = MWB + 56 + 2 * k
            g(f"v_pk_mul_f32 v[{S_(i)}:{S_(i)+1}], v[{S_(i)}:{S_(i)+1}], v[{vv}:{vv+1}]")
        for i, k in enumerate(ks):
            g(f"v_pk_add_f32 v[{Z(i)}:{Z(i)+1}], v[{Z(i)}:{Z(i)+1}], 1.0 op_sel_hi:[1,0]")
        for i, k in enumerate(ks):
            g(f"v_rcp_f32 v{Z(i)}, v{Z(i)}\nv_rcp_f32 v{Z(i)+1}, v{Z(i)+1}")
        for i, k in enumerate(ks):
            acc = EA + 2 * (i & 1)
            if b0 == 0 and i < 2:
                g(f"v_pk_mul_f32 v[{acc}:{acc+1}], v[{S_(i)}:{S_(i)+1}], v[{Z(i)}:{Z(i)+1}]")
            else:
                g(f"v_pk_fma_f32 v[{acc}:{acc+1}], v[{S_(i)}:{S_(i)+1}], v[{Z(i)}:{Z(i)+1}], v[{acc}:{acc+1}]")
    g(f"v_pk_add_f32 v[{EA}:{EA+1}], v[{EA}:{EA+1}], v[{EA+2}:{EA+3}]\nv_add_f32 v{EA}, v{EA}, v{EA+1}")
    for m in DPP6:
        g(f"v_add_f32_dpp v{EA}, v{EA}, v{EA} {m}")
    g(f"""
    v_cvt_pk_bf16_f32 v{EA}, v{EA}, v{EA}
    v_and_b32 v{EA}, s42, v{EA}
    v_add_f32 v{EA}, v{EA}, v{VB2}
    v_cvt_pk_bf16_f32 v{EA}, v{EA}, v{EA}
    s_setpc_b64 s[100:101]
    """)

    g("L_V:")
    if dbg: g("s_memtime s[76:77]\ns_memrealtime s[72:73]")
    g("s_setprio 2")
    g("s_barrier")
    g("s_call_b64 s[100:101], L_fsetup")
    srd(48, 20, 0x4000000)
    srd(52, 24, 0x400000)
    VPAY, VW0, VW1, VWT, VGW = P0, P0 + 1, P0 + 2, P0 + 3, P0 + 4
    g("""
    v_lshlrev_b32 v5, 4, v2
    v_lshl_add_u32 v5, v3, 10, v5
    v_lshlrev_b32 v14, 4, v1
    s_lshl_b32 s11, s15, 11
    v_add_u32 v14, s11, v14
    """)
    g(f"v_mul_u32_u24 v15, {OPH}, v2")
    g("v_lshl_add_u32 v15, v3, 4, v15")
    g(f"s_mul_i32 s11, s15, {OPW}\nv_add_u32 v15, s11, v15")
    g("""
    v_and_b32 v7, 1, v3
    v_lshlrev_b32 v8, 6, v7
    v_bfe_u32 v9, v1, 2, 2
    v_lshl_add_u32 v8, v9, 3, v8
    v_lshrrev_b32 v9, 5, v1
    v_add_u32 v8, v8, v9
    v_lshlrev_b32 v8, 10, v8
    v_and_b32 v9, 3, v1
    v_lshlrev_b32 v7, 1, v7
    v_xor_b32 v9, v9, v7
    v_lshl_add_u32 v8, v9, 4, v8
    s_lshl_b32 s8, s4, 19
    s_lshr_b32 s9, s5, 4
    s_lshl_b32 s9, s9, 18
    s_add_u32 s8, s8, s9
    s_and_b32 s9, s5, 15
    s_lshl_b32 s9, s9, 6
    s_add_u32 s8, s8, s9
    s_lshr_b32 s9, s15, 1
    s_lshl_b32 s9, s9, 17
    s_add_u32 s8, s8, s9
    s_and_b32 s9, s15, 1
    s_lshl_b32 s9, s9, 12
    s_add_u32 s8, s8, s9
    s_lshl_b32 s14, s15, 12
    """)
    g(f"s_add_u32 s14, s14, {L_WOT}")
    g("""
    s_lshr_b32 s9, s5, 4
    s_lshl_b32 s9, s9, 1
    s_lshr_b32 s10, s15, 1
    s_add_u32 s9, s9, s10
    """)
    g(f"s_mul_i32 s10, s4, {32*OSTR}\ns_add_u32 s10, s10, {WS_O:#x}")
    g(f"s_lshl_b32 s11, s9, 2\ns_add_u32 s58, s10, s11\ns_add_u32 s59, s58, {4*OSTR}")
    g("s_lshl_b32 s11, s9, 8\ns_add_u32 s10, s10, s11\ns_and_b32 s11, s15, 1\ns_lshl_b32 s11, s11, 7\ns_add_u32 s60, s10, s11")
    g(f"s_add_u32 s61, s60, {4*OSTR}")
    g(f"""
    v_lshrrev_b32 v6, 2, v2
    v_and_b32 v7, 3, v2
    v_lshl_add_u32 v{VWT}, v6, 3, v7
    v_mul_u32_u24 v{VWT}, {OSTR}, v{VWT}
    v_lshl_add_u32 v{VPAY}, v3, 4, v{VWT}
    v_lshrrev_b32 v7, 2, v2
    v_lshl_add_u32 v7, v3, 2, v7
    v_lshlrev_b32 v7, 6, v7
    v_and_b32 v9, 3, v2
    v_lshl_add_u32 v7, v9, 3, v7
    v_and_b32 v9, 1, v3
    v_lshl_add_u32 v{VW0}, v9, 5, v7
    v_xor_b32 v9, 1, v9
    v_lshl_add_u32 v{VW1}, v9, 5, v7
    v_add_u32 v{VW0}, s14, v{VW0}
    v_add_u32 v{VW1}, s14, v{VW1}
    v_lshlrev_b32 v{VGW}, 7, v6
    v_lshl_add_u32 v{VGW}, v3, 4, v{VGW}
    s_lshl_b32 s10, s15, 9
    v_add_u32 v{VGW}, s10, v{VGW}
    s_mov_b32 s96, 0x11111111
    s_mov_b32 s97, 0x11111111
    s_mov_b32 s12, 0x05040100
    s_mov_b32 s13, 0x07060302
    s_mov_b32 s56, 0x000f000f
    s_mov_b32 s57, 0x000f000f
    """)
    spin(F_K, 1, vaddr=VFW, sl=slp)
    TS(4)
    VR, AO, AT, PA = 16, 80, 112, 6
    n = 0
    for T in range(4):
        for i in range(4):
            r = VR + 16 * T + 4 * i
            if n >= limv:
                g(f"s_waitcnt vmcnt({limv-1})")
            g(f"buffer_load_dwordx4 v[{r}:{r+3}], v5, s[48:51], s{64+T} offen offset:{256*i} {kvflags}")
            n += 1
    if wolast:
        signal(F_VI)
        spin(F_VI, 4)
    for i in range(4):
        dI = 32 * (i & 1) + 2 * (i >> 1)
        g(f"s_add_u32 s9, s8, {dI*1024:#x}")
        g(f"s_add_u32 m0, s14, {1024*i}")
        g(f"buffer_load_dwordx4 v8, s[52:55], s9 offen {wflags} lds")
    TS(5)
    spin(F_P, 1, vaddr=VFW)
    g(f"ds_read_b128 v[{PA}:{PA+3}], v14 offset:{L_PL}")
    g(f"ds_read_b128 v[{PA+4}:{PA+7}], v14 offset:{L_PL+1024}")
    g("s_waitcnt lgkmcnt(0)")
    tb = lambda j: AT + 4 * j
    for u_ in range(2):
        for q in range(4):
            T = 2 * u_ + (q >> 1)
            i0 = 2 * (q & 1)
            done = 4 * T + i0 + 2
            g(f"s_waitcnt vmcnt({20-done})")
            a = VR + 16 * T + 4 * i0
            b_ = a + 4
            for dw in range(4):
                g(f"v_perm_b32 v{tb(2*dw)+q}, v{b_+dw}, v{a+dw}, s12")
                g(f"v_perm_b32 v{tb(2*dw+1)+q}, v{b_+dw}, v{a+dw}, s13")
        for j in range(8):
            c = "0" if u_ == 0 else f"v[{AO+4*j}:{AO+4*j+3}]"
            g(f"v_mfma_f32_16x16x32_bf16 v[{AO+4*j}:{AO+4*j+3}], v[{tb(j)}:{tb(j)+3}], v[{PA+4*u_}:{PA+4*u_+3}], {c}")
    g("s_mov_b64 exec, s[56:57]")
    for j in range(8):
        g(f"ds_write_b128 v15, v[{AO+4*j}:{AO+4*j+3}] offset:{L_OP + 64*j}")
    g("s_mov_b64 exec, -1")
    TS(6)
    if dbg: g("s_memtime s[78:79]")
    g("s_waitcnt lgkmcnt(0)")
    g("s_barrier")
    PAY, WF, DD = 16, 32, 48

    def h1loads(hf):
        for kb in range(2):
            r = PAY + 8 * hf + 4 * kb
            g(f"buffer_load_dwordx4 v[{r}:{r+3}], v{VPAY}, s[44:47], s{60+hf} offen offset:{64*kb} sc1")
        g(f"buffer_load_dword v{64+hf}, v{VWT}, s[44:47], s{58+hf} offen offset:1024 sc1")
    h1loads(0)
    h1loads(1)
    g("s_waitcnt vmcnt(6)")
    for kb in range(2):
        for mt in range(2):
            r = WF + 8 * kb + 4 * mt
            g(f"ds_read_b64_tr_b16 v[{r}:{r+1}], v{VW0+mt} offset:{2048*kb}")
            g(f"ds_read_b64_tr_b16 v[{r+2}:{r+3}], v{VW0+mt} offset:{2048*kb+1024}")
    g("s_mov_b32 s71, 0")
    g("L_h1chk:")
    g("""
    s_waitcnt vmcnt(0)
    v_max3_u32 v8, v16, v17, v18
    v_max3_u32 v9, v24, v25, v26
    v_max3_u32 v8, v8, v19, v20
    v_max3_u32 v9, v9, v27, v28
    v_max3_u32 v8, v8, v21, v22
    v_max3_u32 v9, v9, v29, v30
    v_max3_u32 v8, v8, v23, v64
    v_max3_u32 v9, v9, v31, v65
    v_cmp_eq_u32_e64 s[52:53], -1, v8
    v_cmp_eq_u32_e64 s[54:55], -1, v9
    s_or_b64 s[56:57], s[52:53], s[54:55]
    s_cbranch_scc0 L_h1done
    """)
    g(f"s_add_u32 s71, s71, 1\ns_cmp_ge_u32 s71, {maxpoll}\ns_cbranch_scc1 L_h1done")
    for hf in range(2):
        g(f"s_mov_b64 exec, s[{52+2*hf}:{53+2*hf}]")
        g(f"s_cbranch_execz L_h1s{hf}")
        h1loads(hf)
        g(f"L_h1s{hf}:")
    g("s_mov_b64 exec, -1\ns_branch L_h1chk")
    g("L_h1done:")
    g("s_waitcnt lgkmcnt(0)")
    TS(7)
    if dbg:
        g("s_mov_b32 s74, s71\ns_mov_b32 s75, 0")
    wts = ["v_max_f32 v8, v64, v65",
           "v_max_f32_dpp v8, v8, v8 quad_perm:[1,0,3,2] row_mask:0xf bank_mask:0xf",
           "v_max_f32_dpp v8, v8, v8 quad_perm:[2,3,0,1] row_mask:0xf bank_mask:0xf",
           "v_sub_f32 v64, v64, v8\nv_sub_f32 v65, v65, v8",
           "v_exp_f32 v64, v64\nv_exp_f32 v65, v65",
           "v_add_f32 v8, v64, v65",
           "v_add_f32_dpp v8, v8, v8 quad_perm:[1,0,3,2] row_mask:0xf bank_mask:0xf",
           "v_add_f32_dpp v8, v8, v8 quad_perm:[2,3,0,1] row_mask:0xf bank_mask:0xf"]
    wi = 0
    for kb in range(2):
        for mt in range(2):
            for hf in range(2):
                d = DD + 8 * mt + 4 * hf
                b_ = PAY + 8 * hf + 4 * kb
                a_ = WF + 8 * kb + 4 * mt
                c = "0" if kb == 0 else f"v[{d}:{d+3}]"
                g(f"v_mfma_f32_16x16x32_bf16 v[{d}:{d+3}], v[{a_}:{a_+3}], v[{b_}:{b_+3}], {c}")
                g(wts[wi]); wi += 1
    g("v_rcp_f32 v8, v8")
    g("v_pk_mul_f32 v[64:65], v[64:65], v[8:9] op_sel:[0,0] op_sel_hi:[1,0]")
    for mt in range(2):
        for h_ in range(2):
            d = DD + 8 * mt + 2 * h_
            g(f"v_pk_mul_f32 v[{d}:{d+1}], v[{d}:{d+1}], v[64:65] op_sel:[0,0] op_sel_hi:[1,0]")
    for mt in range(2):
        for h_ in range(2):
            d = DD + 8 * mt + 2 * h_
            g(f"v_pk_fma_f32 v[{d}:{d+1}], v[{d+4}:{d+5}], v[64:65], v[{d}:{d+1}] op_sel:[0,1,0] op_sel_hi:[1,1,1]")
    for m in ("quad_perm:[1,0,3,2]", "quad_perm:[2,3,0,1]"):
        for mt in range(2):
            for i in range(4):
                d = DD + 8 * mt + i
                g(f"v_add_f32_dpp v{d}, v{d}, v{d} {m} row_mask:0xf bank_mask:0xf")
    g("s_mov_b64 exec, s[96:97]")
    g(f"ds_write_b128 v{VGW}, v[{DD}:{DD+3}] offset:{L_GP}")
    g(f"ds_write_b128 v{VGW}, v[{DD+8}:{DD+11}] offset:{L_GP+64}")
    g("s_mov_b64 exec, -1")
    g("s_waitcnt lgkmcnt(0)")

    g("L_B5:")
    g("s_barrier")
    TS(8, 'V')
    TS(7, 'K')
    g("s_cmp_lg_u32 s3, 4\ns_cbranch_scc1 L_H2")
    for w in range(4):
        g(f"ds_read_b64 v[{16+2*w}:{17+2*w}], v{VGP} offset:{L_GP + 512*w}")
    g("s_waitcnt lgkmcnt(0)")
    g("v_pk_add_f32 v[16:17], v[16:17], v[18:19]\nv_pk_add_f32 v[20:21], v[20:21], v[22:23]\nv_pk_add_f32 v[32:33], v[16:17], v[20:21]")
    g("v_min_u32 v32, -2, v32\nv_min_u32 v33, -2, v33")
    g(f"buffer_store_dwordx2 v[32:33], v{VH2S}, s[44:47], s69 offen sc1")
    g("L_H2:")
    g("s_cmp_ge_u32 s2, 4\ns_cbranch_scc1 L_fin")
    g("s_lshl_b32 s8, s2, 15\ns_lshl_b32 s9, s63, 8\ns_add_u32 s8, s8, s9")
    g(f"s_add_u32 s64, s8, {WS_H2:#x}\ns_add_u32 s65, s64, 0x2000\ns_add_u32 s66, s64, 0x4000\ns_add_u32 s67, s64, 0x6000")
    for i in range(4):
        g(f"buffer_load_dwordx4 v[{16+4*i}:{19+4*i}], v{VH2}, s[44:47], s{64+i} offen sc1")
    g(f"s_mov_b32 s8, {f2u(1.0/512):#x}\ns_mov_b32 s9, {f2u(1.0/512):#x}\ns_mov_b32 s10, {f2u(1e-5):#x}")
    g("s_mov_b32 s60, 0x80000000\ns_mov_b32 s61, 0x80000000")
    srd(48, 36, 4096)
    g("s_mov_b32 s71, 0")
    g("L_h2chk:")
    g("s_waitcnt vmcnt(0)")
    for i in range(4):
        g(f"v_max3_u32 v{8+i}, v{16+4*i}, v{17+4*i}, v{18+4*i}")
    for i in range(4):
        g(f"v_max_u32 v{8+i}, v{8+i}, v{19+4*i}")
    g("v_max3_u32 v12, v8, v9, v10\nv_max_u32 v12, v12, v11")
    g("v_cmp_eq_u32 vcc, -1, v12")
    g("s_cmp_eq_u64 vcc, 0\ns_cbranch_scc1 L_h2done")
    g(f"s_add_u32 s71, s71, 1\ns_cmp_ge_u32 s71, {maxpoll}\ns_cbranch_scc1 L_h2done")
    for i in range(4):
        g(f"v_cmp_eq_u32_e64 s[{52+2*i}:{53+2*i}], -1, v{8+i}")
    for i in range(4):
        g(f"s_mov_b64 exec, s[{52+2*i}:{53+2*i}]")
        g(f"s_cbranch_execz L_h2s{i}")
        g(f"buffer_load_dwordx4 v[{16+4*i}:{19+4*i}], v{VH2}, s[44:47], s{64+i} offen sc1")
        g(f"L_h2s{i}:")
    g("s_mov_b64 exec, -1\ns_branch L_h2chk")
    g("L_h2done:")
    TS(9, 'V')
    TS(8, 'K')
    g(f"""
    v_lshlrev_b32 v{VX}, 16, v{VX}
    v_pk_add_f32 v[16:17], v[16:17], v[20:21]
    v_pk_add_f32 v[18:19], v[18:19], v[22:23]
    v_pk_add_f32 v[24:25], v[24:25], v[28:29]
    v_pk_add_f32 v[26:27], v[26:27], v[30:31]
    v_pk_add_f32 v[16:17], v[16:17], v[24:25]
    v_pk_add_f32 v[18:19], v[18:19], v[26:27]
    v_permlane32_swap_b32 v16, v17
    v_permlane32_swap_b32 v18, v19
    v_add_f32 v16, v16, v17
    v_add_f32 v18, v18, v19
    v_permlane16_swap_b32 v16, v18
    v_add_f32 v16, v16, v18
    v_cvt_pk_bf16_f32 v16, v16, v16
    v_and_b32 v16, s42, v16
    v_add_f32 v16, v16, v{VX}
    v_cvt_pk_bf16_f32 v16, v16, v16
    v_and_b32 v13, s42, v16
    """)

    def wave_stats(x, st_off, vmwait=False):
        g(f"v_mul_f32 v19, v{x}, v{x}\nv_mov_b32 v18, v{x}")
        g("v_permlane32_swap_b32 v18, v19\nv_add_f32 v18, v18, v19")
        for m in DPP6[:5]:
            g(f"v_add_f32_dpp v18, v18, v18 {m}")
        g("s_mov_b64 exec, s[60:61]")
        g(f"ds_write_b32 v{VST}, v18 offset:{st_off}")
        g("s_mov_b64 exec, -1")
        g("s_waitcnt lgkmcnt(0)" if not vmwait else "s_waitcnt vmcnt(0) lgkmcnt(0)")
        g("s_barrier")
        for i in range(4):
            g(f"ds_read_b128 v[{20+4*i}:{23+4*i}], v{VZ} offset:{st_off + 16*i}")
        g("s_waitcnt lgkmcnt(0)")
        g("""
        v_pk_add_f32 v[20:21], v[20:21], v[22:23]
        v_pk_add_f32 v[24:25], v[24:25], v[26:27]
        v_pk_add_f32 v[28:29], v[28:29], v[30:31]
        v_pk_add_f32 v[32:33], v[32:33], v[34:35]
        v_pk_add_f32 v[20:21], v[20:21], v[24:25]
        v_pk_add_f32 v[28:29], v[28:29], v[32:33]
        v_pk_add_f32 v[20:21], v[20:21], v[28:29]
        """)
        ln_scalar(20, 21, 22)

    wave_stats(13, L_ST2)
    g("v_sub_f32 v16, v13, v20")
    g("v_cvt_pk_bf16_f32 v16, v16, v16\nv_and_b32 v16, s42, v16")
    g("v_mul_f32 v16, v16, v21")
    g("v_cvt_pk_bf16_f32 v16, v16, v16\nv_and_b32 v16, s42, v16")
    wave_stats(16, L_ST3)
    TS(9, 'K')
    g("v_sub_f32 v16, v16, v20")
    g("v_cvt_pk_bf16_f32 v16, v16, v16\nv_and_b32 v16, s42, v16")
    g("v_mul_f32 v16, v16, v21")
    g("v_cvt_pk_bf16_f32 v16, v16, v16")
    g(f"v_and_b32 v17, 0x7fff, v16\nv_subrev_u32 v17, {EXP0 << 7}, v17")
    g("v_bfe_u32 v18, v16, 15, 1")
    g(f"s_movk_i32 s11, {NBIN*128}")
    g("v_cmp_gt_u32 vcc, s11, v17")
    g("v_mad_u32_u24 v18, v18, s11, v17")
    g("v_lshlrev_b32 v18, 1, v18")
    g("v_cndmask_b32 v18, 0, v18, vcc")
    g(f"ds_read_u16 v19, v18 offset:{L_TAB}")
    g("s_mov_b32 s12, 0xffff")
    g("s_waitcnt lgkmcnt(0)")
    g("v_cmp_ne_u32_e64 s[52:53], s12, v19")
    g("v_lshlrev_b32 v19, 16, v19\nv_add_f32 v19, v19, v13\nv_cvt_pk_bf16_f32 v19, v19, v19")
    g("s_and_b64 s[52:53], s[52:53], vcc")
    if force_fb:
        g("s_and_b32 s52, s52, 0xfffffff0")
    g("s_mov_b64 exec, s[52:53]")
    g("s_cbranch_execz L_nost")
    g(f"buffer_store_short v19, v{VCOL}, s[48:51], s43 offen")
    g("L_nost:")
    g("s_not_b64 exec, s[52:53]")
    g("s_cbranch_execz L_nomiss")
    g(f"ds_add_rtn_u32 v17, v{VFL}, v{VONE} offset:{F_MISS}")
    g(f"v_and_b32 v12, s42, v16\nv_or_b32 v12, v12, v{VCOL}")
    g("s_waitcnt lgkmcnt(0)")
    g("v_lshlrev_b32 v17, 3, v17")
    g(f"ds_write_b64 v17, v[12:13] offset:{L_MISS}")
    g("s_waitcnt lgkmcnt(0)")
    g("L_nomiss:")
    g("s_mov_b64 exec, -1")
    g("s_barrier")
    g("s_cmp_lg_u32 s2, 0\ns_cbranch_scc1 L_fin\ns_cmp_lg_u32 s3, 4\ns_cbranch_scc1 L_fin")
    g("s_add_u32 s94, s94, 1\nv_mov_b32 v4, s94")
    g("s_mov_b64 exec, 1")
    g(f"buffer_store_dword v4, v{VZ}, s[44:47], 0 offen offset:{WS_E}")
    g("L_fin:")
    if dbg:
        g("s_mov_b64 exec, -1")
        g("s_memrealtime s[92:93]")
        g("s_waitcnt lgkmcnt(0)")
        g(f"s_lshl_b32 s8, s2, 11\ns_lshl_b32 s9, s3, 7\ns_add_u32 s8, s8, s9\ns_add_u32 s8, s8, {WS_DBG:#x}")
        g("s_mov_b64 exec, 1")
        for i in range(0, 22, 2):
            g(f"v_mov_b32 v8, s{72+i}\nv_mov_b32 v9, s{73+i}")
            g(f"buffer_store_dwordx2 v[8:9], v{VZ}, s[44:47], s8 offen offset:{4*i}")
            g("s_nop 1")
    g("L_end:")
    g("s_endpgm")
    g('.section .rodata,"a"')
    g(".p2align 6")
    g(f".amdhsa_kernel {KN}")
    for d in ["next_free_vgpr 168", "next_free_sgpr 102", "accum_offset 168", "group_segment_fixed_size 0", "kernarg_size 104",
              "user_sgpr_count 2", "user_sgpr_kernarg_segment_ptr 1", "system_sgpr_workgroup_id_x 1", "float_denorm_mode_32 3"]:
        g(f".amdhsa_{d}")
    g(".end_amdhsa_kernel")
    open(path, "w").write(g.text())


if __name__ == "__main__":
    kw = eval("dict(%s)" % (sys.argv[2] if len(sys.argv) > 2 else ""))
    gen(sys.argv[1], **kw)
```

```python
import sys, struct, math
from asmlib import Gen

KN = "sequential_preLN__sliding_block_cached__mixer_token_mlp__decode_kernel"

def f2u(x):
    return struct.unpack("<I", struct.pack("<f", x))[0]

WS_E = 0
WS_T = 0x1000
WS_LSE = 0x2000
WS_TAB = 0x4000
WS_H2 = 0x10000
WS_O = 0x40000
OSTR = 1152
WS_QS = 0x90000
QSL = 0x80000
WS_DBG = 0x200000
L_WQT = 0
L_OP = 0
OPW = 2304
OPH = 576
L_GP = 9216
L_MISS = 11264
L_ST2 = 15360
L_ST3 = 15424
L_WOT = 16384
L_TAB = 16384
L_XN = 32768
L_QL = 33792
L_PL = 34816
L_ST = 43008
L_WT = 43200
L_FL = 43456
L_MW = 43520
L_TOTAL = 55808
F_NL, F_Q, F_MW, F_ST, F_K, F_P, F_MISS, F_CL, F_VI = 0, 4, 8, 12, 16, 32, 48, 52, 56
EXP0 = 108
NBIN = 24
NW = 12

LOG2E = 1.4426950408889634
K0 = -2.0 * math.sqrt(2.0 / math.pi) * LOG2E
K1 = K0 * 0.044715
ALPHA = -((-K1) ** (1.0 / 3.0))
BETA = K0 / ALPHA
HEADER = open("sequential_preLN__sliding_block_cached__mixer_token_mlp__decode.s.ref").read().split("; Override launch")[0]

names_c = ["start", "B0", "q pub", "mw rdy", "tabdone", "-", "-", "-", "-", "-", "end"]
names_k = ["start", "Kissued", "q got", "P rdy", "preB3", "B3", "O pub", "B5", "h2 done", "B6b", "end"]
names_v = ["start", "rounds", "B3", "wo in", "rnd1", "Vissued", "PVdone", "h1 done", "B5", "h2 done", "end"]

DPP6 = ["row_shr:1 row_mask:0xf bank_mask:0xf bound_ctrl:0", "row_shr:2 row_mask:0xf bank_mask:0xf bound_ctrl:0",
        "row_shr:4 row_mask:0xf bank_mask:0xf bound_ctrl:0", "row_shr:8 row_mask:0xf bank_mask:0xf bound_ctrl:0",
        "row_bcast:15 row_mask:0xa bank_mask:0xf", "row_bcast:31 row_mask:0xc bank_mask:0xf"]

VZ, VT, VONE, VFL, VFW = 160, 161, 162, 163, 164
VX, VB2, VH2, VCOL, VH2S, VGP, VST = 144, 145, 146, 147, 148, 149, 150
P0 = 152


def gen(path, dbg=False, kvflags="nt", wflags="nt", maxpoll=1 << 18, lim=6, limv=8, ksig=13, gpos=11, wolast=True, strided=False, rotm=1, kneed=0, kearly=0, nloc=8, pretouch=True, force_fb=False, local=True, mwearly=True, slp=2, notab=False, nomw=False, g1=False):
    g = Gen()
    uid = [0]

    def TS(k, cond=None):
        if dbg:
            if cond:
                uid[0] += 1
                g(f"s_cmp_{'lt' if cond == 'V' else 'ge'}_u32 s3, 8\ns_cbranch_scc1 L_ts{uid[0]}")
            g(f"s_memrealtime s[{72+2*k}:{73+2*k}]")
            if cond:
                g(f"L_ts{uid[0]}:")

    def srd(d, lo, nbytes):
        g(f"s_mov_b32 s{d}, s{lo}\ns_and_b32 s{d+1}, s{lo+1}, 0xffff\ns_mov_b32 s{d+2}, {nbytes:#x}\ns_mov_b32 s{d+3}, 0x20000")

    def signal(off, vaddr=VFL):
        g("s_mov_b64 exec, 1")
        g(f"ds_add_u32 v{vaddr}, v{VONE} offset:{off}")
        g("s_mov_b64 exec, -1")

    def spin(off, target, sl=1, vaddr=VFL):
        uid[0] += 1
        u = uid[0]
        g("s_mov_b32 s71, 0")
        g(f"L_sp{u}:")
        g(f"ds_read_b32 v{VT}, v{vaddr} offset:{off}")
        g(f"s_add_u32 s71, s71, 1\ns_cmp_ge_u32 s71, {maxpoll*4}\ns_cbranch_scc1 L_spx{u}")
        g("s_waitcnt lgkmcnt(0)")
        g(f"v_readfirstlane_b32 s70, v{VT}")
        g(f"s_cmp_ge_u32 s70, {target}\ns_cbranch_scc1 L_spx{u}")
        g(f"s_sleep {sl}")
        g(f"s_branch L_sp{u}")
        g(f"L_spx{u}:")

    def tags():
        g("s_mul_i32 s92, s94, 0x85ebca6b\ns_add_u32 s92, s92, 0x7f4a7c15\ns_mul_i32 s93, s94, 0x9e3779b1\ns_add_u32 s93, s93, 0x1b873593")

    def ln_scalar(m, v, t):
        g(f"v_pk_mul_f32 v[{m}:{v}], v[{m}:{v}], s[8:9]")
        g(f"v_fma_f32 v{v}, -v{m}, v{m}, v{v}")
        g(f"v_max_f32 v{v}, 0, v{v}")
        g(f"v_cvt_pk_bf16_f32 v{t}, v{m}, v{v}")
        g(f"v_and_b32 v{v}, s42, v{t}")
        g(f"v_lshlrev_b32 v{m}, 16, v{t}")
        g(f"v_add_f32 v{v}, s10, v{v}")
        g(f"v_cvt_pk_bf16_f32 v{t}, v{v}, v{v}")
        g(f"v_and_b32 v{v}, s42, v{t}")
        g(f"v_sqrt_f32 v{v}, v{v}")
        g(f"v_cvt_pk_bf16_f32 v{t}, v{v}, v{v}")
        g(f"v_and_b32 v{v}, s42, v{t}")
        g(f"v_rcp_f32 v{v}, v{v}")

    g(HEADER.rstrip())
    g(f"; @launch grid=(256,1,1) block=({NW*64},1,1) lds={L_TOTAL}")
    g('.amdgcn_target "amdgcn-amd-amdhsa--gfx950"')
    g(".text")
    g(f".globl {KN}")
    g(".p2align 8")
    g(f".type {KN},@function")
    g(f"{KN}:")
    TS(0)
    g("""
    s_cmp_ge_u32 s2, 256
    s_cbranch_scc1 L_end
    s_load_dwordx16 s[16:31], s[0:1], 0
    s_load_dwordx8 s[32:39], s[0:1], 64
    s_load_dwordx2 s[40:41], s[0:1], 96
    v_lshrrev_b32 v4, 6, v0
    v_and_b32 v1, 63, v0
    v_readfirstlane_b32 s3, v4
    v_and_b32 v2, 15, v1
    v_lshrrev_b32 v3, 4, v1
    s_and_b32 s4, s2, 7
    s_lshr_b32 s5, s2, 3
    s_lshr_b32 s6, s5, 3
    s_and_b32 s7, s5, 7
    s_mov_b32 s42, 0xffff0000
    """)
    g(f"v_mov_b32 v{VFL}, {L_FL}\nv_mov_b32 v{VONE}, 1\nv_mov_b32 v{VZ}, 0")
    g(f"""
    s_and_b32 s15, s3, 3
    s_lshl_b32 s8, s6, 3
    s_add_u32 s8, s8, s4
    s_lshl_b32 s8, s8, 21
    s_lshl_b32 s9, s7, {12 if strided else 16}
    s_add_u32 s8, s8, s9
    s_add_u32 s8, s8, 0x180000
    s_add_u32 s9, s2, s5
    s_mul_i32 s9, s9, {rotm}
    s_add_u32 s9, s9, s15
    s_lshl_b32 s11, s15, 2
    v_add_u32 v{VFW}, s11, v{VFL}
    """)
    for i in range(4):
        g(f"s_add_u32 s{64+i}, s9, {4*i}\ns_and_b32 s{64+i}, s{64+i}, 15\ns_lshl_b32 s{64+i}, s{64+i}, {15 if strided else 12}\ns_add_u32 s{64+i}, s{64+i}, s8")
    g("s_waitcnt lgkmcnt(0)")
    srd(44, 40, 0x10000000)
    g(f"s_load_dword s94, s[40:41], {WS_E}")
    g("s_getreg_b32 s0, hwreg(HW_REG_XCC_ID)\ns_and_b32 s0, s0, 7")
    g("""
    s_cmp_ge_u32 s3, 8
    s_cbranch_scc1 L_V
    s_cmp_ge_u32 s3, 4
    s_cbranch_scc1 L_K
    """)
    srd(60, 34, 2)
    g(f"buffer_load_ushort v{VB2}, v{VZ}, s[60:63], 0 offen")
    g("s_cmp_lg_u32 s3, 0\ns_cbranch_scc1 L_C123")
    srd(48, 16, 4096)
    srd(52, 22, 0x400000)
    g("""
    v_and_b32 v4, 3, v1
    v_lshlrev_b32 v5, 10, v4
    v_lshrrev_b32 v6, 2, v1
    v_lshl_add_u32 v6, v6, 6, v5
    """)
    for i in range(4):
        g(f"buffer_load_dwordx4 v[{16+4*i}:{19+4*i}], v6, s[48:51], 0 offen offset:{16*i}")
    g("""
    v_lshrrev_b32 v7, 2, v2
    v_lshl_add_u32 v5, v7, 6, v5
    v_lshl_add_u32 v5, v3, 3, v5
    s_lshl_b32 s8, s6, 8
    buffer_load_dwordx2 v[32:33], v5, s[48:51], s8 offen
    buffer_load_dwordx2 v[34:35], v5, s[48:51], s8 offen offset:32
    v_lshrrev_b32 v6, 3, v1
    v_lshlrev_b32 v6, 13, v6
    v_and_b32 v8, 7, v1
    v_lshlrev_b32 v9, 1, v3
    v_xor_b32 v8, v8, v9
    v_lshl_add_u32 v6, v8, 4, v6
    s_lshl_b32 s8, s6, 20
    s_lshl_b32 s9, s4, 10
    s_add_u32 s8, s8, s9
    s_lshl_b32 s9, s7, 7
    s_add_u32 s8, s8, s9
    """)
    for i in range(16):
        g(f"s_mov_b32 m0, {L_WQT + 1024*i}")
        g(f"buffer_load_dwordx4 v6, s[52:55], s8 offen {wflags} lds")
        if i < 15:
            g("s_add_u32 s8, s8, 0x10000")
    g("s_barrier")
    TS(1)
    g("s_branch L_Q2")

    g("L_K:")
    srd(48, 18, 0x4000000)
    g("v_lshlrev_b32 v4, 8, v2\nv_lshl_add_u32 v4, v3, 4, v4")
    g("""
    s_lshl_b32 s8, s4, 16
    s_lshl_b32 s9, s6, 14
    s_add_u32 s8, s8, s9
    s_lshl_b32 s9, s15, 10
    s_add_u32 s8, s8, s9
    """)
    g(f"s_add_u32 s12, s8, {WS_QS:#x}\ns_add_u32 s13, s12, 0x1000\ns_add_u32 s14, s12, 0x2000\ns_add_u32 s43, s12, 0x3000")
    g(f"s_lshl_b32 s68, s15, 9\ns_add_u32 s68, s68, {WS_T:#x}")
    g(f"v_lshlrev_b32 v5, 4, v1\nv_add_u32 v5, {QSL:#x}, v5\nv_lshlrev_b32 v6, 3, v1")
    g("s_setprio 2")
    if kearly == 0: g("s_barrier")
    KR, QF, SA, PR, TM = 16, 80, 96, 112, 120
    qso = ["s12", "s13", "s14", "s43"] if not g1 else ["s12", "s12", "s12", "s12"]

    def kload(n):
        T, t = n >> 2, n & 3
        r = KR + 16 * T + 4 * t
        g(f"buffer_load_dwordx4 v[{r}:{r+3}], v4, s[48:51], s{64+T} offen offset:{64*t} {kvflags}")
    for n in range(0, 16):
        if n == gpos:
            for ks in range(4):
                g(f"buffer_load_dwordx4 v[{QF+4*ks}:{QF+4*ks+3}], v5, s[44:47], {qso[ks]} offen sc1")
        if n >= lim:
            extra = 4 if (n >= gpos and n - lim < gpos) else 0
            g(f"s_waitcnt vmcnt({lim-1+extra})")
        kload(n)
        if kearly and n == kearly - 1: g("s_barrier")
        if n == ksig:
            signal(F_K, VFW if not kneed else VFL)
    if gpos >= 16:
        for ks in range(4):
            g(f"buffer_load_dwordx4 v[{QF+4*ks}:{QF+4*ks+3}], v5, s[44:47], {qso[ks]} offen sc1")
    TS(1)
    g("s_waitcnt lgkmcnt(0)")
    tags()
    g("s_mov_b32 s71, 0")
    g(f"s_waitcnt vmcnt({max(16-gpos,0)})")
    g("s_branch L_qchk")
    g("L_qpoll:")
    g(f"s_cmp_lg_u32 s71, {nloc}\ns_cbranch_scc1 L_qnl")
    g("v_lshlrev_b32 v5, 4, v1")
    g("L_qnl:")
    for ks in range(4):
        g(f"s_mov_b64 exec, s[{52+2*ks}:{53+2*ks}]")
        g(f"s_cbranch_execz L_qs{ks}")
        g(f"buffer_load_dwordx4 v[{QF+4*ks}:{QF+4*ks+3}], v5, s[44:47], {qso[ks]} offen sc1")
        g(f"L_qs{ks}:")
    g("s_mov_b64 exec, -1")
    g("s_waitcnt vmcnt(0)")
    g("L_qchk:")
    for ks in range(4):
        r = QF + 4 * ks
        g(f"v_xor_b32 v8, v{r+2}, v{r+1}")
        g(f"v_xor_b32 v9, v{r+3}, v{r}")
        g("v_xor_b32 v8, s92, v8")
        g(f"v_subrev_u32 v{128+ks}, s93, v9")
        g(f"v_lshrrev_b32 v9, 3, v{128+ks}")
        g("v_or_b32 v8, v8, v9")
        g(f"v_cmp_ne_u32_e64 s[{52+2*ks}:{53+2*ks}], 0, v8")
    g(f"s_add_u32 s71, s71, 1\ns_cmp_ge_u32 s71, {maxpoll}\ns_cbranch_scc1 L_qdone")
    g("s_or_b64 s[8:9], s[52:53], s[54:55]\ns_or_b64 s[10:11], s[56:57], s[58:59]\ns_or_b64 s[8:9], s[8:9], s[10:11]")
    g("s_cbranch_scc1 L_qpoll")
    g("L_qdone:")
    g("v_xor_b32 v128, s0, v128\nv_xor_b32 v129, s0, v129\nv_xor_b32 v130, s0, v130\nv_xor_b32 v131, s0, v131")
    g("v_or3_b32 v128, v128, v129, v130\nv_or_b32 v128, v128, v131")
    g("v_cmp_ne_u32 vcc, 0, v128")
    g("s_cmp_eq_u64 vcc, 0\ns_cbranch_scc1 L_alllocal")
    signal(F_NL)
    g("L_alllocal:")
    g(f"v_pk_add_f32 v[{QF}:{QF+1}], v[{QF}:{QF+1}], v[{QF+4}:{QF+5}]")
    g(f"v_pk_add_f32 v[{QF+8}:{QF+9}], v[{QF+8}:{QF+9}], v[{QF+12}:{QF+13}]")
    g(f"v_pk_add_f32 v[{QF}:{QF+1}], v[{QF}:{QF+1}], v[{QF+8}:{QF+9}]")
    g(f"v_cvt_pk_bf16_f32 v8, v{QF}, v{QF+1}")
    g("v_lshlrev_b32 v9, 2, v1\ns_lshl_b32 s8, s15, 8\nv_add_u32 v9, s8, v9")
    g(f"ds_write_b32 v9, v8 offset:{L_QL}")
    signal(F_Q)
    g("""
    v_and_b32 v10, 3, v2
    v_lshlrev_b32 v7, 8, v10
    v_lshl_add_u32 v7, v3, 4, v7
    v_lshlrev_b32 v12, 5, v10
    s_lshl_b32 s11, s15, 3
    v_add_u32 v13, s11, v12
    v_lshlrev_b32 v14, 4, v1
    s_lshl_b32 s11, s15, 11
    v_add_u32 v14, s11, v14
    """)
    spin(F_Q, 4)
    TS(2)
    for t in range(4):
        g(f"ds_read_b128 v[{QF+4*t}:{QF+4*t+3}], v7 offset:{L_QL + 64*t}")
    SC = 128 ** -0.5
    g(f"s_mov_b32 s8, {f2u(SC):#x}\ns_mov_b32 s9, {f2u(SC):#x}\ns_mov_b32 s10, {f2u(LOG2E):#x}")
    g("s_waitcnt lgkmcnt(0)")
    for T in range(4):
        g(f"s_waitcnt vmcnt({12-4*T})")
        for t in range(4):
            r = KR + 16 * T + 4 * t
            c = "0" if t == 0 else f"v[{SA+4*T}:{SA+4*T+3}]"
            g(f"v_mfma_f32_16x16x32_bf16 v[{SA+4*T}:{SA+4*T+3}], v[{r}:{r+3}], v[{QF+4*t}:{QF+4*t+3}], {c}")
    for rep in range(2):
        for p in range(8):
            a = SA + 2 * p
            g(f"v_cvt_pk_bf16_f32 v{TM+p}, v{a}, v{a+1}")
        for p in range(8):
            a = SA + 2 * p
            g(f"v_lshlrev_b32 v{a}, 16, v{TM+p}")
            g(f"v_and_b32 v{a+1}, s42, v{TM+p}")
        if rep == 0:
            for p in range(8):
                a = SA + 2 * p
                g(f"v_pk_mul_f32 v[{a}:{a+1}], v[{a}:{a+1}], s[8:9]")
    g(f"v_max3_f32 v8, v{SA}, v{SA+1}, v{SA+2}")
    g(f"v_max3_f32 v9, v{SA+3}, v{SA+4}, v{SA+5}")
    g(f"v_max3_f32 v10, v{SA+6}, v{SA+7}, v{SA+8}")
    g(f"v_max3_f32 v11, v{SA+9}, v{SA+10}, v{SA+11}")
    g(f"v_max3_f32 v8, v8, v{SA+12}, v{SA+13}")
    g(f"v_max3_f32 v9, v9, v{SA+14}, v{SA+15}")
    g("v_max3_f32 v8, v8, v9, v10\nv_max_f32 v8, v8, v11")
    g("v_mov_b32 v9, v8\nv_permlane32_swap_b32 v8, v9\nv_max_f32 v8, v8, v9")
    g("v_mov_b32 v9, v8\nv_permlane16_swap_b32 v8, v9\nv_max_f32 v8, v8, v9")
    g("v_mul_f32 v10, s10, v8")
    for e in range(16):
        g(f"v_fma_f32 v{SA+e}, v{SA+e}, s10, -v10")
    for e in range(16):
        g(f"v_exp_f32 v{SA+e}, v{SA+e}")
    for p in range(8):
        g(f"v_cvt_pk_bf16_f32 v{PR+p}, v{SA+2*p}, v{SA+2*p+1}")
    g(f"ds_write_b128 v14, v[{PR}:{PR+3}] offset:{L_PL}")
    g(f"ds_write_b128 v14, v[{PR+4}:{PR+7}] offset:{L_PL+1024}")
    signal(F_P, VFW)
    for p in range(4):
        g(f"v_pk_add_f32 v[{SA+2*p}:{SA+2*p+1}], v[{SA+2*p}:{SA+2*p+1}], v[{SA+8+2*p}:{SA+9+2*p}]")
    for p in range(2):
        g(f"v_pk_add_f32 v[{SA+2*p}:{SA+2*p+1}], v[{SA+2*p}:{SA+2*p+1}], v[{SA+4+2*p}:{SA+5+2*p}]")
    g(f"v_pk_add_f32 v[{SA}:{SA+1}], v[{SA}:{SA+1}], v[{SA+2}:{SA+3}]")
    g(f"v_add_f32 v9, v{SA}, v{SA+1}")
    g("v_mov_b32 v11, v9\nv_permlane32_swap_b32 v9, v11\nv_add_f32 v9, v9, v11")
    g("v_mov_b32 v11, v9\nv_permlane16_swap_b32 v9, v11\nv_add_f32 v9, v9, v11")
    g("s_mov_b64 exec, 15")
    g(f"ds_write_b64 v13, v[8:9] offset:{L_ST}")
    g("s_mov_b64 exec, -1")
    signal(F_ST)
    TS(3)
    spin(F_ST, 4)
    FA = P0
    g("s_lshl_b32 s11, s15, 5\nv_mov_b32 v12, s11")
    g(f"ds_read_b128 v[16:19], v12 offset:{L_ST}")
    g(f"ds_read_b128 v[20:23], v12 offset:{L_ST+16}")
    g(f"ds_read_b32 v27, v{VFL} offset:{F_NL}")
    g("s_waitcnt lgkmcnt(0)")
    g("v_readfirstlane_b32 s1, v27")
    g("v_max3_f32 v24, v16, v18, v20\nv_max_f32 v24, v24, v22")
    for i in range(4):
        g(f"v_sub_f32 v{FA+i}, v{16+2*i}, v24")
        g(f"v_mul_f32 v{FA+i}, s10, v{FA+i}")
        g(f"v_exp_f32 v{FA+i}, v{FA+i}")
    g(f"v_mul_f32 v25, v{FA}, v17")
    for i in range(1, 4):
        g(f"v_fmac_f32 v25, v{FA+i}, v{17+2*i}")
    g("v_rcp_f32 v26, v25\nv_log_f32 v25, v25")
    for i in range(4):
        g(f"v_mul_f32 v{FA+i}, v{FA+i}, v26")
    VOPR, VL4, VLSE = P0 + 4, P0 + 5, P0 + 6
    g(f"v_fma_f32 v25, v24, s10, v25\nv_min_u32 v{VLSE}, -2, v25")
    g(f"v_lshlrev_b32 v{VOPR}, 3, v1\ns_mul_i32 s11, s15, {OPH}\nv_add_u32 v{VOPR}, s11, v{VOPR}")
    g(f"v_lshlrev_b32 v{VL4}, 2, v2\nv_lshl_add_u32 v{VL4}, v3, 11, v{VL4}")
    g("s_cmp_ge_u32 s2, 4\ns_cbranch_scc1 L_tdone")
    g("s_mov_b32 s71, 0")
    g("L_tpoll:")
    g("buffer_load_dwordx2 v[128:129], v6, s[44:47], s68 offen sc1")
    g("s_waitcnt vmcnt(0)")
    g("v_xor_b32 v16, s92, v128\nv_xor_b32 v17, s93, v129\nv_or_b32 v16, v16, v17")
    g("v_cmp_ne_u32 vcc, 0, v16")
    g(f"s_add_u32 s71, s71, 1\ns_cmp_ge_u32 s71, {maxpoll}\ns_cbranch_scc1 L_tdone")
    g("s_cmp_lg_u64 vcc, 0\ns_cbranch_scc1 L_tpoll")
    g("L_tdone:")
    g(f"s_lshl_b32 s11, s4, 15\ns_lshr_b32 s13, s7, 2\ns_lshl_b32 s13, s13, 10\ns_add_u32 s11, s11, s13\ns_lshl_b32 s13, s6, 8\ns_add_u32 s11, s11, s13\ns_and_b32 s13, s7, 3\ns_lshl_b32 s13, s13, 6\ns_add_u32 s11, s11, s13\ns_add_u32 s11, s11, {WS_O:#x}")
    g("s_lshl_b32 s13, s15, 13\ns_add_u32 s68, s11, s13")
    g(f"s_lshl_b32 s62, s4, 9\ns_lshl_b32 s13, s6, 5\ns_add_u32 s62, s62, s13\ns_and_b32 s13, s7, 3\ns_lshl_b32 s13, s13, 3\ns_add_u32 s62, s62, s13\ns_lshr_b32 s13, s7, 2\ns_lshl_b32 s13, s13, 2\ns_add_u32 s62, s62, s13\ns_add_u32 s62, s62, {WS_LSE:#x}")
    g("s_lshl_b32 s13, s15, 7\ns_add_u32 s62, s62, s13")
    g("s_call_b64 s[100:101], L_fsetup")
    g("s_mov_b64 exec, 1")
    if local:
        g("s_cmp_lg_u32 s1, 0\ns_cbranch_scc1 L_lstg")
        g(f"buffer_store_dword v{VLSE}, v{VZ}, s[44:47], s62 offen")
        g("s_branch L_lsd")
        g("L_lstg:")
    g(f"buffer_store_dword v{VLSE}, v{VZ}, s[44:47], s62 offen sc1")
    g("L_lsd:")
    g("s_mov_b64 exec, -1")
    g("s_waitcnt lgkmcnt(0)")
    TS(4)
    g("s_barrier")
    TS(5)
    for w in range(4):
        g(f"ds_read_b64 v[{16+2*w}:{17+2*w}], v{VOPR} offset:{L_OP + OPW*w}")
    g("s_waitcnt lgkmcnt(0)")
    g(f"v_pk_mul_f32 v[16:17], v[16:17], v[{FA}:{FA+1}] op_sel:[0,0] op_sel_hi:[1,0]")
    g(f"v_pk_mul_f32 v[20:21], v[20:21], v[{FA+2}:{FA+3}] op_sel:[0,0] op_sel_hi:[1,0]")
    g(f"v_pk_fma_f32 v[16:17], v[18:19], v[{FA}:{FA+1}], v[16:17] op_sel:[0,1,0] op_sel_hi:[1,1,1]")
    g(f"v_pk_fma_f32 v[20:21], v[22:23], v[{FA+2}:{FA+3}], v[20:21] op_sel:[0,1,0] op_sel_hi:[1,1,1]")
    g("v_pk_add_f32 v[16:17], v[16:17], v[20:21]")
    g("v_cvt_pk_bf16_f32 v16, v16, v17\nv_min_u32 v16, -2, v16")
    if local:
        g("s_cmp_lg_u32 s1, 0\ns_cbranch_scc1 L_ostg")
        g(f"buffer_store_dword v16, v{VL4}, s[44:47], s68 offen")
        TS(6)
        g("s_branch L_B5")
        g("L_ostg:")
    g(f"buffer_store_dword v16, v{VL4}, s[44:47], s68 offen sc1")
    TS(6)
    g("s_branch L_B5")

    g("L_fsetup:")
    g(f"""
    s_sub_u32 s63, s3, 4
    s_lshr_b32 s13, s5, 4
    s_lshl_b32 s14, s4, 1
    s_add_u32 s13, s13, s14
    s_lshl_b32 s13, s13, 11
    s_and_b32 s14, s5, 15
    s_lshl_b32 s14, s14, 7
    s_add_u32 s13, s13, s14
    v_lshlrev_b32 v{VH2S}, 15, v3
    v_lshl_add_u32 v{VH2S}, v2, 3, v{VH2S}
    v_lshlrev_b32 v{VGP}, 3, v1
    """)
    g(f"s_add_u32 s69, s13, {WS_H2:#x}")
    srd(56, 16, 4096)
    g(f"""
    v_and_b32 v8, 1, v3
    v_lshlrev_b32 v8, 1, v8
    v_lshrrev_b32 v9, 1, v3
    v_or_b32 v8, v8, v9
    v_lshl_add_u32 v8, v2, 2, v8
    s_lshl_b32 s8, s63, 6
    v_add_u32 v8, s8, v8
    v_lshlrev_b32 v{VCOL}, 1, v8
    s_and_b32 s8, s2, 3
    s_lshl_b32 s43, s8, 10
    v_lshlrev_b32 v{VH2}, 11, v3
    v_lshl_add_u32 v{VH2}, v2, 4, v{VH2}
    s_lshl_b32 s11, s63, 3
    v_lshrrev_b32 v{VST}, 5, v1
    v_lshlrev_b32 v{VST}, 2, v{VST}
    v_add_u32 v{VST}, s11, v{VST}
    s_cmp_ge_u32 s2, 4
    s_cbranch_scc1 L_fs1
    buffer_load_ushort v{VX}, v{VCOL}, s[56:59], s43 offen
    L_fs1:
    s_setpc_b64 s[100:101]
    """)

    g("L_Q2:")
    g("s_setprio 1")
    g("s_waitcnt vmcnt(18)")
    g("s_mov_b32 s8, 0x3f803f80\nv_mov_b32 v10, 0\nv_mov_b32 v11, 0\nv_mov_b32 v12, 0\nv_mov_b32 v13, 0")
    for i in range(0, 16, 2):
        g(f"v_dot2_f32_bf16 v10, v{16+i}, s8, v10")
        g(f"v_dot2_f32_bf16 v11, v{16+i}, v{16+i}, v11")
        g(f"v_dot2_f32_bf16 v12, v{17+i}, s8, v12")
        g(f"v_dot2_f32_bf16 v13, v{17+i}, v{17+i}, v13")
    g("s_nop 2")
    g("v_pk_add_f32 v[10:11], v[10:11], v[12:13]")
    for m in ("row_ror:4", "row_ror:8"):
        g(f"v_add_f32_dpp v10, v10, v10 {m} row_mask:0xf bank_mask:0xf")
        g(f"v_add_f32_dpp v11, v11, v11 {m} row_mask:0xf bank_mask:0xf")
    for sw in ("v_permlane32_swap_b32", "v_permlane16_swap_b32"):
        g("v_mov_b32 v12, v10\nv_mov_b32 v13, v11")
        g(f"{sw} v10, v12\n{sw} v11, v13")
        g("v_pk_add_f32 v[10:11], v[10:11], v[12:13]")
    g(f"s_mov_b32 s8, {f2u(1.0/512):#x}\ns_mov_b32 s9, {f2u(1.0/512):#x}\ns_mov_b32 s10, {f2u(1e-5):#x}")
    ln_scalar(10, 11, 12)
    g("s_waitcnt vmcnt(16)")
    for d in range(4):
        a = 16 + 2 * d
        g(f"v_lshlrev_b32 v{a}, 16, v{32+d}\nv_and_b32 v{a+1}, s42, v{32+d}")
    for d in range(4):
        a = 16 + 2 * d
        g(f"v_pk_add_f32 v[{a}:{a+1}], v[{a}:{a+1}], v[10:11] op_sel:[0,0] op_sel_hi:[1,0] neg_lo:[0,1] neg_hi:[0,1]")
    for d in range(4):
        a = 16 + 2 * d
        g(f"v_cvt_pk_bf16_f32 v{32+d}, v{a}, v{a+1}")
    for d in range(4):
        a = 16 + 2 * d
        g(f"v_lshlrev_b32 v{a}, 16, v{32+d}\nv_and_b32 v{a+1}, s42, v{32+d}")
    for d in range(4):
        a = 16 + 2 * d
        g(f"v_pk_mul_f32 v[{a}:{a+1}], v[{a}:{a+1}], v[10:11] op_sel:[0,1] op_sel_hi:[1,1]")
    for d in range(4):
        a = 16 + 2 * d
        g(f"v_cvt_pk_bf16_f32 v{32+d}, v{a}, v{a+1}")
    g("""
    v_lshlrev_b32 v8, 8, v4
    v_lshl_add_u32 v8, v3, 4, v8
    v_lshl_add_u32 v9, v7, 6, v8
    """)
    g(f"ds_write_b128 v9, v[32:35] offset:{L_XN}")
    for kb in range(4):
        g(f"ds_read_b128 v[{36+4*kb}:{39+4*kb}], v8 offset:{L_XN + 64*kb}")
    g("""
    v_lshrrev_b32 v9, 2, v2
    v_lshl_add_u32 v9, v3, 2, v9
    v_bfe_u32 v14, v9, 1, 2
    v_lshlrev_b32 v9, 7, v9
    v_lshl_add_u32 v9, v4, 3, v9
    """)
    for mt in range(4):
        g(f"v_xor_b32 v15, {mt}, v14")
        g(f"v_lshl_add_u32 v{10+mt}, v15, 5, v9")
    g("s_waitcnt lgkmcnt(0)")
    tags()
    AF = 52
    for kb in range(4):
        g(f"s_waitcnt vmcnt({12-4*kb})")
        for mt in range(4):
            r = AF + 16 * kb + 4 * mt
            g(f"ds_read_b64_tr_b16 v[{r}:{r+1}], v{10+mt} offset:{L_WQT + 4096*kb}")
            g(f"ds_read_b64_tr_b16 v[{r+2}:{r+3}], v{10+mt} offset:{L_WQT + 4096*kb + 2048}")
    for z in (1, 2, 3):
        g(f"v_cmp_eq_u32_e64 s[{50+2*z}:{51+2*z}], {z}, v7")
    g("""
    v_lshlrev_b32 v8, 14, v4
    v_lshl_add_u32 v8, v7, 7, v8
    v_lshl_add_u32 v8, v3, 5, v8
    s_lshl_b32 s8, s4, 16
    s_lshl_b32 s9, s6, 12
    s_add_u32 s8, s8, s9
    s_lshl_b32 s9, s7, 9
    s_add_u32 s8, s8, s9
    """)
    g(f"s_add_u32 s8, s8, {WS_QS:#x}")
    g("s_add_u32 s93, s93, s0")
    g("s_waitcnt lgkmcnt(0)")
    QD = 116
    for kb in range(4):
        for mt in range(4):
            r = AF + 16 * kb + 4 * mt
            c = "0" if kb == 0 else f"v[{QD+4*mt}:{QD+4*mt+3}]"
            g(f"v_mfma_f32_16x16x32_bf16 v[{QD+4*mt}:{QD+4*mt+3}], v[{r}:{r+3}], v[{36+4*kb}:{39+4*kb}], {c}")
    for z in (1, 2, 3):
        for i in range(4):
            g(f"v_cndmask_b32_e64 v{QD+i}, v{QD+i}, v{QD+4*z+i}, s[{50+2*z}:{51+2*z}]")
    spin(F_CL, 1)
    g(f"""
    v_mov_b32 v136, v{QD}
    v_mov_b32 v137, v{QD+1}
    v_xor_b32 v138, s92, v{QD+1}
    v_xor_b32 v139, s93, v{QD}
    v_mov_b32 v140, v{QD+2}
    v_mov_b32 v141, v{QD+3}
    v_xor_b32 v142, s92, v{QD+3}
    v_xor_b32 v143, s93, v{QD+2}
    s_add_u32 s9, s8, {QSL:#x}
    s_setprio 3
    buffer_store_dwordx4 v[136:139], v8, s[44:47], s9 offen
    buffer_store_dwordx4 v[140:143], v8, s[44:47], s9 offen offset:16
    buffer_store_dwordx4 v[136:139], v8, s[44:47], s8 offen sc1
    buffer_store_dwordx4 v[140:143], v8, s[44:47], s8 offen offset:16 sc1
    s_setprio 0
    """)
    TS(2)
    g("s_branch L_C")

    g("L_C123:")
    g("s_cmp_lg_u32 s3, 1\ns_cbranch_scc1 L_C23")
    g("v_lshlrev_b32 v4, 2, v2")
    g(f"ds_write_b32 v4, v{VZ} offset:{L_FL}")
    srd(48, 28, 3584)
    srd(52, 30, 3584)
    srd(56, 32, 3584)
    g("v_lshlrev_b32 v6, 4, v1")
    g("s_waitcnt lgkmcnt(0)")
    if not mwearly: g("s_barrier")
    for a in range(3):
        g(f"s_mov_b32 m0, {L_MW + 4096*a}")
        for i in range(4):
            if not nomw: g(f"buffer_load_dwordx4 v6, s[{48+4*a}:{51+4*a}], 0 offen offset:{1024*i} lds")
    if mwearly: g("s_barrier")
    g("s_waitcnt vmcnt(0)")
    signal(F_MW)
    g("s_branch L_C")
    g("L_C23:")
    g("s_cmp_eq_u32 s3, 2\ns_cbranch_scc1 L_C2")
    g("s_barrier")
    g("s_waitcnt vmcnt(0)")
    g("s_branch L_C")
    g("L_C2:")
    g("""
    s_lshl_b32 s11, s4, 5
    s_add_u32 s11, s11, s5
    v_mov_b32 v8, -1
    v_mov_b32 v9, -1
    v_mov_b32 v10, -1
    v_mov_b32 v11, -1
    v_lshlrev_b32 v4, 4, v1
    """)
    g(f"s_lshl_b32 s11, s4, 15\ns_lshr_b32 s13, s7, 2\ns_lshl_b32 s13, s13, 10\ns_add_u32 s11, s11, s13\ns_lshl_b32 s13, s6, 8\ns_add_u32 s11, s11, s13\ns_and_b32 s13, s7, 3\ns_lshl_b32 s13, s13, 6\ns_add_u32 s11, s11, s13\ns_add_u32 s11, s11, {WS_O:#x}")
    g(f"s_lshl_b32 s62, s4, 9\ns_lshl_b32 s13, s6, 5\ns_add_u32 s62, s62, s13\ns_and_b32 s13, s7, 3\ns_lshl_b32 s13, s13, 3\ns_add_u32 s62, s62, s13\ns_lshr_b32 s13, s7, 2\ns_lshl_b32 s13, s13, 2\ns_add_u32 s62, s62, s13\ns_add_u32 s62, s62, {WS_LSE:#x}")
    g("s_mov_b32 s12, s11")
    g("v_lshrrev_b32 v12, 2, v1\nv_lshlrev_b32 v12, 11, v12\nv_and_b32 v13, 3, v1\nv_lshl_add_u32 v12, v13, 4, v12\nv_lshlrev_b32 v13, 7, v1")
    g("buffer_store_dwordx4 v[8:11], v12, s[44:47], s12 offen sc1")
    g("""
    v_lshlrev_b32 v5, 15, v3
    v_lshl_add_u32 v5, v2, 3, v5
    s_lshr_b32 s13, s5, 4
    s_lshl_b32 s14, s4, 1
    s_add_u32 s13, s13, s14
    s_lshl_b32 s13, s13, 11
    s_and_b32 s14, s5, 15
    s_lshl_b32 s14, s14, 7
    s_add_u32 s13, s13, s14
    """)
    g(f"s_add_u32 s13, s13, {WS_H2:#x}")
    g("buffer_store_dwordx2 v[8:9], v5, s[44:47], s13 offen sc1")
    g("s_mov_b64 exec, 15")
    g("buffer_store_dword v8, v13, s[44:47], s62 offen sc1")
    g(f"s_mul_i32 s14, s2, 48\ns_add_u32 s14, s14, {WS_TAB:#x}")
    g("s_mov_b64 exec, 7")
    g("buffer_store_dwordx4 v[8:11], v4, s[44:47], s14 offen sc1")
    g("s_mov_b64 exec, -1")
    g("s_barrier")
    g("s_waitcnt vmcnt(0) lgkmcnt(0)")
    tags()
    signal(F_CL)
    if pretouch:
        g("s_setprio 3")
        g("buffer_load_dwordx4 v[152:155], v12, s[44:47], s12 offen sc1")
    g("v_mov_b32 v8, s92\nv_mov_b32 v9, s93")
    g(f"s_lshl_b32 s9, s2, 3\ns_add_u32 s9, s9, {WS_T:#x}")
    g("s_mov_b64 exec, 1")
    g(f"buffer_store_dwordx2 v[8:9], v{VZ}, s[44:47], s9 offen sc1")
    g("s_mov_b64 exec, -1")
    g("s_setprio 0")
    signal(F_MW)

    MWB, EH, EA, ES = 16, 100, 102, 108
    g("L_C:")
    spin(F_MW, 2)
    TS(3)
    if dbg: g("s_memtime s[82:83]")
    g(f"v_lshlrev_b32 v4, 2, v1")
    for a in range(3):
        for k in range(14):
            g(f"ds_read_b32 v{MWB+28*a+2*k+1}, v4 offset:{L_MW + 4096*a + 256*k}")
    g(f"s_mov_b32 s8, {f2u(ALPHA):#x}\ns_mov_b32 s9, {f2u(ALPHA):#x}\ns_mov_b32 s10, {f2u(1.0/ALPHA):#x}\ns_mov_b32 s11, {f2u(1.0/ALPHA):#x}")
    g("s_waitcnt lgkmcnt(0)")
    for a in range(3):
        for k in range(14):
            r = MWB + 28 * a + 2 * k
            g(f"v_lshlrev_b32 v{r}, 16, v{r+1}")
            g(f"v_and_b32 v{r+1}, s42, v{r+1}")
    for a in range(3):
        for k in range(14):
            r = MWB + 28 * a + 2 * k
            g(f"v_pk_mul_f32 v[{r}:{r+1}], v[{r}:{r+1}], s[{8 if a < 2 else 10}:{9 if a < 2 else 11}]")
    g(f"s_mov_b32 s62, {f2u(BETA):#x}\ns_mov_b32 s63, {f2u(BETA):#x}")
    g("s_mul_i32 s95, s2, 24\ns_mul_i32 s96, s3, 6\ns_add_u32 s95, s95, s96\ns_add_u32 s96, s95, 6")
    g(f"v_lshlrev_b32 v{VB2}, 16, v{VB2}")
    g("L_tab1:")
    g(f"s_cmp_ge_u32 s95, {NBIN*128}\ns_cselect_b32 s97, {0x8000 - NBIN*128}, 0")
    g(f"s_add_u32 s97, s97, s95\ns_add_u32 s97, s97, {EXP0 << 7}\ns_lshl_b32 s97, s97, 16\nv_mov_b32 v{EH}, s97")
    if not notab: g("s_call_b64 s[100:101], L_eval")
    g(f"v_alignbit_b32 v136, v137, v136, 16\nv_alignbit_b32 v137, v138, v137, 16\nv_alignbit_b32 v138, v{EA}, v138, 16")
    g("s_add_u32 s95, s95, 1\ns_cmp_lt_u32 s95, s96\ns_cbranch_scc1 L_tab1")
    g(f"s_lshl_b32 s97, s96, 1\ns_add_u32 s97, s97, {WS_TAB - 12:#x}")
    g("s_mov_b32 exec_lo, 0\ns_mov_b32 exec_hi, 0x80000000")
    g("s_setprio 3")
    g(f"buffer_store_dwordx3 v[136:138], v{VZ}, s[44:47], s97 offen sc1")
    g("s_mov_b64 exec, -1")
    TS(4)
    if dbg: g("s_memtime s[84:85]")
    g("s_cmp_ge_u32 s2, 4\ns_cbranch_scc1 L_fin")
    srd(48, 36, 4096)
    g(f"v_lshlrev_b32 v4, 4, v1\ns_mul_i32 s12, s3, 3072\ns_add_u32 m0, s12, {L_TAB}\ns_add_u32 s12, s12, {WS_TAB:#x}")
    g("s_barrier\ns_barrier")
    for i in range(3):
        g(f"buffer_load_dwordx4 v4, s[44:47], s12 offen offset:{1024*i} sc1 lds")
    g("s_waitcnt vmcnt(0)")
    g("s_barrier\ns_barrier\ns_barrier")
    g(f"ds_read_b32 v4, v{VFL} offset:{F_MISS}")
    g("s_waitcnt lgkmcnt(0)")
    g("v_readfirstlane_b32 s96, v4")
    g("s_mov_b32 s95, s3")
    g("s_lshl_b32 s43, s2, 10")
    g("L_fb:")
    g("s_cmp_ge_u32 s95, s96\ns_cbranch_scc1 L_fin")
    g("s_lshl_b32 s8, s95, 3\nv_mov_b32 v4, s8")
    g(f"ds_read_b64 v[6:7], v4 offset:{L_MISS}")
    g("s_waitcnt lgkmcnt(0)")
    g(f"v_and_b32 v{EH}, s42, v6\nv_and_b32 v6, 0xffff, v6")
    g("s_call_b64 s[100:101], L_eval")
    g(f"v_and_b32 v8, s42, v{EA}\nv_add_f32 v8, v8, v7\nv_cvt_pk_bf16_f32 v8, v8, v8")
    g("s_mov_b32 exec_lo, 0\ns_mov_b32 exec_hi, 0x80000000")
    g("buffer_store_short v8, v6, s[48:51], s43 offen")
    g("s_mov_b64 exec, -1")
    g("s_add_u32 s95, s95, 4\ns_branch L_fb")

    g("L_eval:")
    NB = 7
    for b0 in range(0, 14, NB):
        ks = list(range(b0, b0 + NB))
        S_ = lambda i: ES + 4 * i
        Z = lambda i: ES + 2 + 4 * i
        for i, k in enumerate(ks):
            w_ = MWB + 2 * k
            bb = MWB + 28 + 2 * k
            g(f"v_pk_fma_f32 v[{S_(i)}:{S_(i)+1}], v[{w_}:{w_+1}], v[{EH}:{EH+1}], v[{bb}:{bb+1}] op_sel:[0,0,0] op_sel_hi:[1,0,1]")
        for i, k in enumerate(ks):
            g(f"v_pk_fma_f32 v[{Z(i)}:{Z(i)+1}], v[{S_(i)}:{S_(i)+1}], v[{S_(i)}:{S_(i)+1}], s[62:63]")
        for i, k in enumerate(ks):
            g(f"v_pk_mul_f32 v[{Z(i)}:{Z(i)+1}], v[{Z(i)}:{Z(i)+1}], v[{S_(i)}:{S_(i)+1}]")
        for i, k in enumerate(ks):
            g(f"v_exp_f32 v{Z(i)}, v{Z(i)}\nv_exp_f32 v{Z(i)+1}, v{Z(i)+1}")
            vv = MWB + 56 + 2 * k
            g(f"v_pk_mul_f32 v[{S_(i)}:{S_(i)+1}], v[{S_(i)}:{S_(i)+1}], v[{vv}:{vv+1}]")
        for i, k in enumerate(ks):
            g(f"v_pk_add_f32 v[{Z(i)}:{Z(i)+1}], v[{Z(i)}:{Z(i)+1}], 1.0 op_sel_hi:[1,0]")
        for i, k in enumerate(ks):
            g(f"v_rcp_f32 v{Z(i)}, v{Z(i)}\nv_rcp_f32 v{Z(i)+1}, v{Z(i)+1}")
        for i, k in enumerate(ks):
            acc = EA + 2 * (i & 1)
            if b0 == 0 and i < 2:
                g(f"v_pk_mul_f32 v[{acc}:{acc+1}], v[{S_(i)}:{S_(i)+1}], v[{Z(i)}:{Z(i)+1}]")
            else:
                g(f"v_pk_fma_f32 v[{acc}:{acc+1}], v[{S_(i)}:{S_(i)+1}], v[{Z(i)}:{Z(i)+1}], v[{acc}:{acc+1}]")
    g(f"v_pk_add_f32 v[{EA}:{EA+1}], v[{EA}:{EA+1}], v[{EA+2}:{EA+3}]\nv_add_f32 v{EA}, v{EA}, v{EA+1}")
    for m in DPP6:
        g(f"v_add_f32_dpp v{EA}, v{EA}, v{EA} {m}")
    g(f"""
    v_cvt_pk_bf16_f32 v{EA}, v{EA}, v{EA}
    v_and_b32 v{EA}, s42, v{EA}
    v_add_f32 v{EA}, v{EA}, v{VB2}
    v_cvt_pk_bf16_f32 v{EA}, v{EA}, v{EA}
    s_setpc_b64 s[100:101]
    """)

    g("L_V:")
    g("s_setprio 2")
    g("s_barrier")
    g("s_call_b64 s[100:101], L_fsetup")
    srd(48, 20, 0x4000000)
    srd(52, 24, 0x400000)
    VPAY, VW0, VW1, VWT, VGW = P0, P0 + 1, P0 + 2, P0 + 3, P0 + 4
    g("""
    v_lshlrev_b32 v5, 4, v2
    v_lshl_add_u32 v5, v3, 10, v5
    v_lshlrev_b32 v14, 4, v1
    s_lshl_b32 s11, s15, 11
    v_add_u32 v14, s11, v14
    """)
    g(f"v_mul_u32_u24 v15, {OPH}, v2")
    g("v_lshl_add_u32 v15, v3, 4, v15")
    g(f"s_mul_i32 s11, s15, {OPW}\nv_add_u32 v15, s11, v15")
    g("""
    v_and_b32 v7, 1, v3
    v_lshlrev_b32 v8, 6, v7
    v_bfe_u32 v9, v1, 2, 2
    v_lshl_add_u32 v8, v9, 3, v8
    v_lshrrev_b32 v9, 5, v1
    v_add_u32 v8, v8, v9
    v_lshlrev_b32 v8, 10, v8
    v_and_b32 v9, 3, v1
    v_lshlrev_b32 v7, 1, v7
    v_xor_b32 v9, v9, v7
    v_lshl_add_u32 v8, v9, 4, v8
    s_lshl_b32 s8, s4, 19
    s_lshr_b32 s9, s5, 4
    s_lshl_b32 s9, s9, 18
    s_add_u32 s8, s8, s9
    s_and_b32 s9, s5, 15
    s_lshl_b32 s9, s9, 6
    s_add_u32 s8, s8, s9
    s_lshr_b32 s9, s15, 1
    s_lshl_b32 s9, s9, 17
    s_add_u32 s8, s8, s9
    s_and_b32 s9, s15, 1
    s_lshl_b32 s9, s9, 12
    s_add_u32 s8, s8, s9
    s_lshl_b32 s14, s15, 12
    """)
    g(f"s_add_u32 s14, s14, {L_WOT}")
    g("""
    s_lshr_b32 s9, s5, 4
    s_lshl_b32 s9, s9, 1
    s_lshr_b32 s10, s15, 1
    s_add_u32 s9, s9, s10
    """)
    g(f"s_lshl_b32 s10, s4, 15\ns_add_u32 s10, s10, {WS_O:#x}")
    g("s_lshl_b32 s11, s9, 13\ns_add_u32 s10, s10, s11\ns_and_b32 s11, s15, 1\ns_lshl_b32 s11, s11, 12\ns_add_u32 s60, s10, s11")
    g(f"s_lshl_b32 s10, s4, 9\ns_lshl_b32 s11, s9, 7\ns_add_u32 s58, s10, s11\ns_add_u32 s58, s58, {WS_LSE:#x}")
    g(f"""
    v_lshrrev_b32 v6, 2, v2
    v_and_b32 v7, 3, v2
    v_lshlrev_b32 v{VWT}, 3, v2
    v_lshlrev_b32 v{VPAY}, 6, v2
    v_lshl_add_u32 v{VPAY}, v3, 4, v{VPAY}
    v_lshrrev_b32 v7, 2, v2
    v_lshl_add_u32 v7, v3, 2, v7
    v_lshlrev_b32 v7, 6, v7
    v_and_b32 v9, 3, v2
    v_lshl_add_u32 v7, v9, 3, v7
    v_and_b32 v9, 1, v3
    v_lshl_add_u32 v{VW0}, v9, 5, v7
    v_xor_b32 v9, 1, v9
    v_lshl_add_u32 v{VW1}, v9, 5, v7
    v_add_u32 v{VW0}, s14, v{VW0}
    v_add_u32 v{VW1}, s14, v{VW1}
    v_lshlrev_b32 v{VGW}, 7, v6
    v_lshl_add_u32 v{VGW}, v3, 4, v{VGW}
    s_lshl_b32 s10, s15, 9
    v_add_u32 v{VGW}, s10, v{VGW}
    s_mov_b32 s96, 0x11111111
    s_mov_b32 s97, 0x11111111
    s_mov_b32 s12, 0x05040100
    s_mov_b32 s13, 0x07060302
    s_mov_b32 s56, 0x000f000f
    s_mov_b32 s57, 0x000f000f
    """)
    if kneed:
        spin(F_K, kneed, sl=1)
    else:
        spin(F_K, 1, vaddr=VFW, sl=slp)
    TS(4)
    VR, AO, AT, PA = 16, 80, 112, 6
    n = 0
    for T in range(4):
        for i in range(4):
            r = VR + 16 * T + 4 * i
            if n >= limv:
                g(f"s_waitcnt vmcnt({limv-1})")
            g(f"buffer_load_dwordx4 v[{r}:{r+3}], v5, s[48:51], s{64+T} offen offset:{256*i} {kvflags}")
            n += 1
    if wolast:
        signal(F_VI)
        spin(F_VI, 4)
    for i in range(4):
        dI = 32 * (i & 1) + 2 * (i >> 1)
        g(f"s_add_u32 s9, s8, {dI*1024:#x}")
        g(f"s_add_u32 m0, s14, {1024*i}")
        g(f"buffer_load_dwordx4 v8, s[52:55], s9 offen {wflags} lds")
    TS(5)
    spin(F_P, 1, vaddr=VFW)
    g(f"ds_read_b128 v[{PA}:{PA+3}], v14 offset:{L_PL}")
    g(f"ds_read_b128 v[{PA+4}:{PA+7}], v14 offset:{L_PL+1024}")
    g("s_waitcnt lgkmcnt(0)")
    tb = lambda j: AT + 4 * j
    for u_ in range(2):
        for q in range(4):
            T = 2 * u_ + (q >> 1)
            i0 = 2 * (q & 1)
            done = 4 * T + i0 + 2
            g(f"s_waitcnt vmcnt({20-done})")
            a = VR + 16 * T + 4 * i0
            b_ = a + 4
            for dw in range(4):
                g(f"v_perm_b32 v{tb(2*dw)+q}, v{b_+dw}, v{a+dw}, s12")
                g(f"v_perm_b32 v{tb(2*dw+1)+q}, v{b_+dw}, v{a+dw}, s13")
        for j in range(8):
            c = "0" if u_ == 0 else f"v[{AO+4*j}:{AO+4*j+3}]"
            g(f"v_mfma_f32_16x16x32_bf16 v[{AO+4*j}:{AO+4*j+3}], v[{tb(j)}:{tb(j)+3}], v[{PA+4*u_}:{PA+4*u_+3}], {c}")
    g("s_mov_b64 exec, s[56:57]")
    for j in range(8):
        g(f"ds_write_b128 v15, v[{AO+4*j}:{AO+4*j+3}] offset:{L_OP + 64*j}")
    g("s_mov_b64 exec, -1")
    TS(6)
    g("s_waitcnt lgkmcnt(0)")
    g("s_barrier")
    PAY, WF, DD = 16, 32, 48

    def h1loads(hf):
        for kb in range(2):
            r = PAY + 8 * hf + 4 * kb
            g(f"buffer_load_dwordx4 v[{r}:{r+3}], v{VPAY}, s[44:47], s60 offen offset:{2048*kb + 1024*hf} sc1")
        g(f"buffer_load_dword v{64+hf}, v{VWT}, s[44:47], s58 offen offset:{4*hf} sc1")
    TS(2)
    h1loads(0)
    h1loads(1)
    g("s_waitcnt vmcnt(6)")
    TS(3)
    for kb in range(2):
        for mt in range(2):
            r = WF + 8 * kb + 4 * mt
            g(f"ds_read_b64_tr_b16 v[{r}:{r+1}], v{VW0+mt} offset:{2048*kb}")
            g(f"ds_read_b64_tr_b16 v[{r+2}:{r+3}], v{VW0+mt} offset:{2048*kb+1024}")
    if dbg:
        g("s_waitcnt vmcnt(0)")
        TS(4)
    g("s_mov_b32 s71, 0")
    g("L_h1chk:")
    g("""
    s_waitcnt vmcnt(0)
    v_max3_u32 v8, v16, v17, v18
    v_max3_u32 v9, v24, v25, v26
    v_max3_u32 v8, v8, v19, v20
    v_max3_u32 v9, v9, v27, v28
    v_max3_u32 v8, v8, v21, v22
    v_max3_u32 v9, v9, v29, v30
    v_max3_u32 v8, v8, v23, v64
    v_max3_u32 v9, v9, v31, v65
    v_cmp_eq_u32_e64 s[52:53], -1, v8
    v_cmp_eq_u32_e64 s[54:55], -1, v9
    s_or_b64 s[56:57], s[52:53], s[54:55]
    s_cbranch_scc0 L_h1done
    """)
    g(f"s_add_u32 s71, s71, 1\ns_cmp_ge_u32 s71, {maxpoll}\ns_cbranch_scc1 L_h1done")
    for hf in range(2):
        g(f"s_mov_b64 exec, s[{52+2*hf}:{53+2*hf}]")
        g(f"s_cbranch_execz L_h1s{hf}")
        h1loads(hf)
        g(f"L_h1s{hf}:")
    g("s_mov_b64 exec, -1\ns_branch L_h1chk")
    g("L_h1done:")
    g("s_waitcnt lgkmcnt(0)")
    TS(7)
    if dbg:
        g("s_mov_b32 s74, s71\ns_mov_b32 s75, 0")
    wts = ["v_max_f32 v8, v64, v65",
           "v_max_f32_dpp v8, v8, v8 quad_perm:[1,0,3,2] row_mask:0xf bank_mask:0xf",
           "v_max_f32_dpp v8, v8, v8 quad_perm:[2,3,0,1] row_mask:0xf bank_mask:0xf",
           "v_sub_f32 v64, v64, v8\nv_sub_f32 v65, v65, v8",
           "v_exp_f32 v64, v64\nv_exp_f32 v65, v65",
           "v_add_f32 v8, v64, v65",
           "v_add_f32_dpp v8, v8, v8 quad_perm:[1,0,3,2] row_mask:0xf bank_mask:0xf",
           "v_add_f32_dpp v8, v8, v8 quad_perm:[2,3,0,1] row_mask:0xf bank_mask:0xf"]
    wi = 0
    for kb in range(2):
        for mt in range(2):
            for hf in range(2):
                d = DD + 8 * mt + 4 * hf
                b_ = PAY + 8 * hf + 4 * kb
                a_ = WF + 8 * kb + 4 * mt
                c = "0" if kb == 0 else f"v[{d}:{d+3}]"
                g(f"v_mfma_f32_16x16x32_bf16 v[{d}:{d+3}], v[{a_}:{a_+3}], v[{b_}:{b_+3}], {c}")
                g(wts[wi]); wi += 1
    g("v_rcp_f32 v8, v8")
    g("v_pk_mul_f32 v[64:65], v[64:65], v[8:9] op_sel:[0,0] op_sel_hi:[1,0]")
    for mt in range(2):
        for h_ in range(2):
            d = DD + 8 * mt + 2 * h_
            g(f"v_pk_mul_f32 v[{d}:{d+1}], v[{d}:{d+1}], v[64:65] op_sel:[0,0] op_sel_hi:[1,0]")
    for mt in range(2):
        for h_ in range(2):
            d = DD + 8 * mt + 2 * h_
            g(f"v_pk_fma_f32 v[{d}:{d+1}], v[{d+4}:{d+5}], v[64:65], v[{d}:{d+1}] op_sel:[0,1,0] op_sel_hi:[1,1,1]")
    for m in ("quad_perm:[1,0,3,2]", "quad_perm:[2,3,0,1]"):
        for mt in range(2):
            for i in range(4):
                d = DD + 8 * mt + i
                g(f"v_add_f32_dpp v{d}, v{d}, v{d} {m} row_mask:0xf bank_mask:0xf")
    g("s_mov_b64 exec, s[96:97]")
    g(f"ds_write_b128 v{VGW}, v[{DD}:{DD+3}] offset:{L_GP}")
    g(f"ds_write_b128 v{VGW}, v[{DD+8}:{DD+11}] offset:{L_GP+64}")
    g("s_mov_b64 exec, -1")
    g("s_waitcnt lgkmcnt(0)")

    g("L_B5:")
    g("s_barrier")
    TS(8, 'V')
    TS(7, 'K')
    g("s_cmp_lg_u32 s3, 4\ns_cbranch_scc1 L_H2")
    for w in range(4):
        g(f"ds_read_b64 v[{16+2*w}:{17+2*w}], v{VGP} offset:{L_GP + 512*w}")
    g("s_waitcnt lgkmcnt(0)")
    g("v_pk_add_f32 v[16:17], v[16:17], v[18:19]\nv_pk_add_f32 v[20:21], v[20:21], v[22:23]\nv_pk_add_f32 v[32:33], v[16:17], v[20:21]")
    g("v_min_u32 v32, -2, v32\nv_min_u32 v33, -2, v33")
    g(f"buffer_store_dwordx2 v[32:33], v{VH2S}, s[44:47], s69 offen sc1")
    g("L_H2:")
    g("s_cmp_ge_u32 s2, 4\ns_cbranch_scc1 L_fin")
    g("s_lshl_b32 s8, s2, 15\ns_lshl_b32 s9, s63, 8\ns_add_u32 s8, s8, s9")
    g(f"s_add_u32 s64, s8, {WS_H2:#x}\ns_add_u32 s65, s64, 0x2000\ns_add_u32 s66, s64, 0x4000\ns_add_u32 s67, s64, 0x6000")
    for i in range(4):
        g(f"buffer_load_dwordx4 v[{16+4*i}:{19+4*i}], v{VH2}, s[44:47], s{64+i} offen sc1")
    g(f"s_mov_b32 s8, {f2u(1.0/512):#x}\ns_mov_b32 s9, {f2u(1.0/512):#x}\ns_mov_b32 s10, {f2u(1e-5):#x}")
    g("s_mov_b32 s60, 0x80000000\ns_mov_b32 s61, 0x80000000")
    srd(48, 36, 4096)
    g("s_mov_b32 s71, 0")
    g("L_h2chk:")
    g("s_waitcnt vmcnt(0)")
    for i in range(4):
        g(f"v_max3_u32 v{8+i}, v{16+4*i}, v{17+4*i}, v{18+4*i}")
    for i in range(4):
        g(f"v_max_u32 v{8+i}, v{8+i}, v{19+4*i}")
    g("v_max3_u32 v12, v8, v9, v10\nv_max_u32 v12, v12, v11")
    g("v_cmp_eq_u32 vcc, -1, v12")
    g("s_cmp_eq_u64 vcc, 0\ns_cbranch_scc1 L_h2done")
    g(f"s_add_u32 s71, s71, 1\ns_cmp_ge_u32 s71, {maxpoll}\ns_cbranch_scc1 L_h2done")
    for i in range(4):
        g(f"v_cmp_eq_u32_e64 s[{52+2*i}:{53+2*i}], -1, v{8+i}")
    for i in range(4):
        g(f"s_mov_b64 exec, s[{52+2*i}:{53+2*i}]")
        g(f"s_cbranch_execz L_h2s{i}")
        g(f"buffer_load_dwordx4 v[{16+4*i}:{19+4*i}], v{VH2}, s[44:47], s{64+i} offen sc1")
        g(f"L_h2s{i}:")
    g("s_mov_b64 exec, -1\ns_branch L_h2chk")
    g("L_h2done:")
    TS(9, 'V')
    TS(8, 'K')
    g(f"""
    v_lshlrev_b32 v{VX}, 16, v{VX}
    v_pk_add_f32 v[16:17], v[16:17], v[20:21]
    v_pk_add_f32 v[18:19], v[18:19], v[22:23]
    v_pk_add_f32 v[24:25], v[24:25], v[28:29]
    v_pk_add_f32 v[26:27], v[26:27], v[30:31]
    v_pk_add_f32 v[16:17], v[16:17], v[24:25]
    v_pk_add_f32 v[18:19], v[18:19], v[26:27]
    v_permlane32_swap_b32 v16, v17
    v_permlane32_swap_b32 v18, v19
    v_add_f32 v16, v16, v17
    v_add_f32 v18, v18, v19
    v_permlane16_swap_b32 v16, v18
    v_add_f32 v16, v16, v18
    v_cvt_pk_bf16_f32 v16, v16, v16
    v_and_b32 v16, s42, v16
    v_add_f32 v16, v16, v{VX}
    v_cvt_pk_bf16_f32 v16, v16, v16
    v_and_b32 v13, s42, v16
    """)

    def wave_stats(x, st_off, vmwait=False):
        g(f"v_mul_f32 v19, v{x}, v{x}\nv_mov_b32 v18, v{x}")
        g("v_permlane32_swap_b32 v18, v19\nv_add_f32 v18, v18, v19")
        for m in DPP6[:5]:
            g(f"v_add_f32_dpp v18, v18, v18 {m}")
        g("s_mov_b64 exec, s[60:61]")
        g(f"ds_write_b32 v{VST}, v18 offset:{st_off}")
        g("s_mov_b64 exec, -1")
        g("s_waitcnt lgkmcnt(0)" if not vmwait else "s_waitcnt vmcnt(0) lgkmcnt(0)")
        g("s_barrier")
        for i in range(4):
            g(f"ds_read_b128 v[{20+4*i}:{23+4*i}], v{VZ} offset:{st_off + 16*i}")
        g("s_waitcnt lgkmcnt(0)")
        g("""
        v_pk_add_f32 v[20:21], v[20:21], v[22:23]
        v_pk_add_f32 v[24:25], v[24:25], v[26:27]
        v_pk_add_f32 v[28:29], v[28:29], v[30:31]
        v_pk_add_f32 v[32:33], v[32:33], v[34:35]
        v_pk_add_f32 v[20:21], v[20:21], v[24:25]
        v_pk_add_f32 v[28:29], v[28:29], v[32:33]
        v_pk_add_f32 v[20:21], v[20:21], v[28:29]
        """)
        ln_scalar(20, 21, 22)

    wave_stats(13, L_ST2)
    g("v_sub_f32 v16, v13, v20")
    g("v_cvt_pk_bf16_f32 v16, v16, v16\nv_and_b32 v16, s42, v16")
    g("v_mul_f32 v16, v16, v21")
    g("v_cvt_pk_bf16_f32 v16, v16, v16\nv_and_b32 v16, s42, v16")
    wave_stats(16, L_ST3)
    TS(9, 'K')
    g("v_sub_f32 v16, v16, v20")
    g("v_cvt_pk_bf16_f32 v16, v16, v16\nv_and_b32 v16, s42, v16")
    g("v_mul_f32 v16, v16, v21")
    g("v_cvt_pk_bf16_f32 v16, v16, v16")
    g(f"v_and_b32 v17, 0x7fff, v16\nv_subrev_u32 v17, {EXP0 << 7}, v17")
    g("v_bfe_u32 v18, v16, 15, 1")
    g(f"s_movk_i32 s11, {NBIN*128}")
    g("v_cmp_gt_u32 vcc, s11, v17")
    g("v_mad_u32_u24 v18, v18, s11, v17")
    g("v_lshlrev_b32 v18, 1, v18")
    g("v_cndmask_b32 v18, 0, v18, vcc")
    g(f"ds_read_u16 v19, v18 offset:{L_TAB}")
    g("s_mov_b32 s12, 0xffff")
    g("s_waitcnt lgkmcnt(0)")
    g("v_cmp_ne_u32_e64 s[52:53], s12, v19")
    g("v_lshlrev_b32 v19, 16, v19\nv_add_f32 v19, v19, v13\nv_cvt_pk_bf16_f32 v19, v19, v19")
    g("s_and_b64 s[52:53], s[52:53], vcc")
    if force_fb:
        g("s_and_b32 s52, s52, 0xfffffff0")
    g("s_mov_b64 exec, s[52:53]")
    g("s_cbranch_execz L_nost")
    g(f"buffer_store_short v19, v{VCOL}, s[48:51], s43 offen")
    g("L_nost:")
    g("s_not_b64 exec, s[52:53]")
    g("s_cbranch_execz L_nomiss")
    g(f"ds_add_rtn_u32 v17, v{VFL}, v{VONE} offset:{F_MISS}")
    g(f"v_and_b32 v12, s42, v16\nv_or_b32 v12, v12, v{VCOL}")
    g("s_waitcnt lgkmcnt(0)")
    g("v_lshlrev_b32 v17, 3, v17")
    g(f"ds_write_b64 v17, v[12:13] offset:{L_MISS}")
    g("s_waitcnt lgkmcnt(0)")
    g("L_nomiss:")
    g("s_mov_b64 exec, -1")
    g("s_barrier")
    g("s_cmp_lg_u32 s2, 0\ns_cbranch_scc1 L_fin\ns_cmp_lg_u32 s3, 4\ns_cbranch_scc1 L_fin")
    g("s_add_u32 s94, s94, 1\nv_mov_b32 v4, s94")
    g("s_mov_b64 exec, 1")
    g(f"buffer_store_dword v4, v{VZ}, s[44:47], 0 offen offset:{WS_E}")
    g("L_fin:")
    if dbg:
        g("s_mov_b64 exec, -1")
        g("s_memrealtime s[92:93]")
        g("s_waitcnt lgkmcnt(0)")
        g(f"s_lshl_b32 s8, s2, 11\ns_lshl_b32 s9, s3, 7\ns_add_u32 s8, s8, s9\ns_add_u32 s8, s8, {WS_DBG:#x}")
        g("s_mov_b64 exec, 1")
        for i in range(0, 22, 2):
            g(f"v_mov_b32 v8, s{72+i}\nv_mov_b32 v9, s{73+i}")
            g(f"buffer_store_dwordx2 v[8:9], v{VZ}, s[44:47], s8 offen offset:{4*i}")
            g("s_nop 1")
    g("L_end:")
    g("s_endpgm")
    g('.section .rodata,"a"')
    g(".p2align 6")
    g(f".amdhsa_kernel {KN}")
    for d in ["next_free_vgpr 168", "next_free_sgpr 102", "accum_offset 168", "group_segment_fixed_size 0", "kernarg_size 104",
              "user_sgpr_count 2", "user_sgpr_kernarg_segment_ptr 1", "system_sgpr_workgroup_id_x 1", "float_denorm_mode_32 3"]:
        g(f".amdhsa_{d}")
    g(".end_amdhsa_kernel")
    open(path, "w").write(g.text())


if __name__ == "__main__":
    kw = eval("dict(%s)" % (sys.argv[2] if len(sys.argv) > 2 else ""))
    gen(sys.argv[1], **kw)
```

```python
import sys, struct, math
from asmlib import Gen

KN = "sequential_preLN__sliding_block_cached__mixer_token_mlp__decode_kernel"

def f2u(x):
    return struct.unpack("<I", struct.pack("<f", x))[0]

WS_E = 0
WS_T = 0x1000
WS_LSE = 0x2000
WS_TAB = 0x4000
WS_H2 = 0x10000
WS_O = 0x40000
OSTR = 1152
WS_QS = 0x90000
QSL = 0x80000
WS_DBG = 0x200000
L_WQT = 0
L_OP = 0
OPW = 2304
OPH = 576
L_GP = 9216
L_MISS = 11264
L_ST2 = 15360
L_ST3 = 15424
L_WOT = 16384
L_TAB = 16384
L_XN = 32768
L_QL = 33792
L_PL = 34816
L_ST = 43008
L_WT = 43200
L_FL = 43456
L_MW = 43520
L_TOTAL = 55808
F_NL, F_Q, F_MW, F_ST, F_K, F_P, F_MISS, F_CL, F_VI = 0, 4, 8, 12, 16, 32, 48, 52, 56
EXP0 = 108
NBIN = 24
NW = 12

LOG2E = 1.4426950408889634
K0 = -2.0 * math.sqrt(2.0 / math.pi) * LOG2E
K1 = K0 * 0.044715
ALPHA = -((-K1) ** (1.0 / 3.0))
BETA = K0 / ALPHA
HEADER = open("sequential_preLN__sliding_block_cached__mixer_token_mlp__decode.s.ref").read().split("; Override launch")[0]

names_c = ["start", "B0", "q pub", "mw rdy", "tabdone", "-", "-", "-", "-", "-", "end"]
names_k = ["start", "Kissued", "q got", "P rdy", "preB3", "B3", "O pub", "B5", "h2 done", "B6b", "end"]
names_v = ["start", "rounds", "B3", "wo in", "rnd1", "Vissued", "PVdone", "h1 done", "B5", "h2 done", "end"]

DPP6 = ["row_shr:1 row_mask:0xf bank_mask:0xf bound_ctrl:0", "row_shr:2 row_mask:0xf bank_mask:0xf bound_ctrl:0",
        "row_shr:4 row_mask:0xf bank_mask:0xf bound_ctrl:0", "row_shr:8 row_mask:0xf bank_mask:0xf bound_ctrl:0",
        "row_bcast:15 row_mask:0xa bank_mask:0xf", "row_bcast:31 row_mask:0xc bank_mask:0xf"]

VZ, VT, VONE, VFL, VFW = 160, 161, 162, 163, 164
VX, VB2, VH2, VCOL, VH2S, VGP, VST = 144, 145, 146, 147, 148, 149, 150
P0 = 152


def gen(path, dbg=False, kvflags="nt", wflags="nt", maxpoll=1 << 18, lim=6, limv=8, ksig=13, gpos=11, wolast=True, dq=0, dv=0, dt=0, dp=0, strided=False, rotm=1, kneed=0, kearly=0, nloc=8, pretouch=True, force_fb=False, local=True, mwearly=True, slp=2, notab=False, nomw=False, g1=False):
    g = Gen()
    uid = [0]

    def TS(k, cond=None):
        if dbg:
            if cond:
                uid[0] += 1
                g(f"s_cmp_{'lt' if cond == 'V' else 'ge'}_u32 s3, 8\ns_cbranch_scc1 L_ts{uid[0]}")
            g(f"s_memrealtime s[{72+2*k}:{73+2*k}]")
            if cond:
                g(f"L_ts{uid[0]}:")

    def srd(d, lo, nbytes):
        g(f"s_mov_b32 s{d}, s{lo}\ns_and_b32 s{d+1}, s{lo+1}, 0xffff\ns_mov_b32 s{d+2}, {nbytes:#x}\ns_mov_b32 s{d+3}, 0x20000")

    def signal(off, vaddr=VFL):
        g("s_mov_b64 exec, 1")
        g(f"ds_add_u32 v{vaddr}, v{VONE} offset:{off}")
        g("s_mov_b64 exec, -1")

    def spin(off, target, sl=1, vaddr=VFL):
        uid[0] += 1
        u = uid[0]
        g("s_mov_b32 s71, 0")
        g(f"L_sp{u}:")
        g(f"ds_read_b32 v{VT}, v{vaddr} offset:{off}")
        g(f"s_add_u32 s71, s71, 1\ns_cmp_ge_u32 s71, {maxpoll*4}\ns_cbranch_scc1 L_spx{u}")
        g("s_waitcnt lgkmcnt(0)")
        g(f"v_readfirstlane_b32 s70, v{VT}")
        g(f"s_cmp_ge_u32 s70, {target}\ns_cbranch_scc1 L_spx{u}")
        g(f"s_sleep {sl}")
        g(f"s_branch L_sp{u}")
        g(f"L_spx{u}:")

    def tags():
        g("s_mul_i32 s92, s94, 0x85ebca6b\ns_add_u32 s92, s92, 0x7f4a7c15\ns_mul_i32 s93, s94, 0x9e3779b1\ns_add_u32 s93, s93, 0x1b873593")

    def ln_scalar(m, v, t):
        g(f"v_pk_mul_f32 v[{m}:{v}], v[{m}:{v}], s[8:9]")
        g(f"v_fma_f32 v{v}, -v{m}, v{m}, v{v}")
        g(f"v_max_f32 v{v}, 0, v{v}")
        g(f"v_cvt_pk_bf16_f32 v{t}, v{m}, v{v}")
        g(f"v_and_b32 v{v}, s42, v{t}")
        g(f"v_lshlrev_b32 v{m}, 16, v{t}")
        g(f"v_add_f32 v{v}, s10, v{v}")
        g(f"v_cvt_pk_bf16_f32 v{t}, v{v}, v{v}")
        g(f"v_and_b32 v{v}, s42, v{t}")
        g(f"v_sqrt_f32 v{v}, v{v}")
        g(f"v_cvt_pk_bf16_f32 v{t}, v{v}, v{v}")
        g(f"v_and_b32 v{v}, s42, v{t}")
        g(f"v_rcp_f32 v{v}, v{v}")

    g(HEADER.rstrip())
    g(f"; @launch grid=(256,1,1) block=({NW*64},1,1) lds={L_TOTAL}")
    g('.amdgcn_target "amdgcn-amd-amdhsa--gfx950"')
    g(".text")
    g(f".globl {KN}")
    g(".p2align 8")
    g(f".type {KN},@function")
    g(f"{KN}:")
    TS(0)
    g("""
    s_cmp_ge_u32 s2, 256
    s_cbranch_scc1 L_end
    s_load_dwordx16 s[16:31], s[0:1], 0
    s_load_dwordx8 s[32:39], s[0:1], 64
    s_load_dwordx2 s[40:41], s[0:1], 96
    v_lshrrev_b32 v4, 6, v0
    v_and_b32 v1, 63, v0
    v_readfirstlane_b32 s3, v4
    v_and_b32 v2, 15, v1
    v_lshrrev_b32 v3, 4, v1
    s_and_b32 s4, s2, 7
    s_lshr_b32 s5, s2, 3
    s_lshr_b32 s6, s5, 3
    s_and_b32 s7, s5, 7
    s_mov_b32 s42, 0xffff0000
    """)
    g(f"v_mov_b32 v{VFL}, {L_FL}\nv_mov_b32 v{VONE}, 1\nv_mov_b32 v{VZ}, 0")
    g(f"""
    s_and_b32 s15, s3, 3
    s_lshl_b32 s8, s6, 3
    s_add_u32 s8, s8, s4
    s_lshl_b32 s8, s8, 21
    s_lshl_b32 s9, s7, {12 if strided else 16}
    s_add_u32 s8, s8, s9
    s_add_u32 s8, s8, 0x180000
    s_add_u32 s9, s2, s5
    s_mul_i32 s9, s9, {rotm}
    s_add_u32 s9, s9, s15
    s_lshl_b32 s11, s15, 2
    v_add_u32 v{VFW}, s11, v{VFL}
    """)
    for i in range(4):
        g(f"s_add_u32 s{64+i}, s9, {4*i}\ns_and_b32 s{64+i}, s{64+i}, 15\ns_lshl_b32 s{64+i}, s{64+i}, {15 if strided else 12}\ns_add_u32 s{64+i}, s{64+i}, s8")
    g("s_waitcnt lgkmcnt(0)")
    srd(44, 40, 0x10000000)
    g(f"s_load_dword s94, s[40:41], {WS_E}")
    g("s_getreg_b32 s0, hwreg(HW_REG_XCC_ID)\ns_and_b32 s0, s0, 7")
    g("""
    s_cmp_ge_u32 s3, 8
    s_cbranch_scc1 L_V
    s_cmp_ge_u32 s3, 4
    s_cbranch_scc1 L_K
    """)
    srd(60, 34, 2)
    g(f"buffer_load_ushort v{VB2}, v{VZ}, s[60:63], 0 offen")
    g("s_cmp_lg_u32 s3, 0\ns_cbranch_scc1 L_C123")
    srd(48, 16, 4096)
    srd(52, 22, 0x400000)
    g("""
    v_and_b32 v4, 3, v1
    v_lshlrev_b32 v5, 10, v4
    v_lshrrev_b32 v6, 2, v1
    v_lshl_add_u32 v6, v6, 6, v5
    """)
    for i in range(4):
        g(f"buffer_load_dwordx4 v[{16+4*i}:{19+4*i}], v6, s[48:51], 0 offen offset:{16*i}")
    g("""
    v_lshrrev_b32 v7, 2, v2
    v_lshl_add_u32 v5, v7, 6, v5
    v_lshl_add_u32 v5, v3, 3, v5
    s_lshl_b32 s8, s6, 8
    buffer_load_dwordx2 v[32:33], v5, s[48:51], s8 offen
    buffer_load_dwordx2 v[34:35], v5, s[48:51], s8 offen offset:32
    v_lshrrev_b32 v6, 3, v1
    v_lshlrev_b32 v6, 13, v6
    v_and_b32 v8, 7, v1
    v_lshlrev_b32 v9, 1, v3
    v_xor_b32 v8, v8, v9
    v_lshl_add_u32 v6, v8, 4, v6
    s_lshl_b32 s8, s6, 20
    s_lshl_b32 s9, s4, 10
    s_add_u32 s8, s8, s9
    s_lshl_b32 s9, s7, 7
    s_add_u32 s8, s8, s9
    """)
    for i in range(16):
        g(f"s_mov_b32 m0, {L_WQT + 1024*i}")
        g(f"buffer_load_dwordx4 v6, s[52:55], s8 offen {wflags} lds")
        if i < 15:
            g("s_add_u32 s8, s8, 0x10000")
    g("s_barrier")
    TS(1)
    g("s_branch L_Q2")

    g("L_K:")
    srd(48, 18, 0x4000000)
    g("v_lshlrev_b32 v4, 8, v2\nv_lshl_add_u32 v4, v3, 4, v4")
    g("""
    s_lshl_b32 s8, s4, 16
    s_lshl_b32 s9, s6, 14
    s_add_u32 s8, s8, s9
    s_lshl_b32 s9, s15, 10
    s_add_u32 s8, s8, s9
    """)
    g(f"s_add_u32 s12, s8, {WS_QS:#x}\ns_add_u32 s13, s12, 0x1000\ns_add_u32 s14, s12, 0x2000\ns_add_u32 s43, s12, 0x3000")
    g(f"s_lshl_b32 s68, s15, 9\ns_add_u32 s68, s68, {WS_T:#x}")
    g(f"v_lshlrev_b32 v5, 4, v1\nv_add_u32 v5, {QSL:#x}, v5\nv_lshlrev_b32 v6, 3, v1")
    g("s_setprio 2")
    if kearly == 0: g("s_barrier")
    KR, QF, SA, PR, TM = 16, 80, 96, 112, 120
    qso = ["s12", "s13", "s14", "s43"] if not g1 else ["s12", "s12", "s12", "s12"]

    def kload(n):
        T, t = n >> 2, n & 3
        r = KR + 16 * T + 4 * t
        g(f"buffer_load_dwordx4 v[{r}:{r+3}], v4, s[48:51], s{64+T} offen offset:{64*t} {kvflags}")
    for n in range(0, 16):
        if n == gpos:
            for ks in range(4):
                g(f"buffer_load_dwordx4 v[{QF+4*ks}:{QF+4*ks+3}], v5, s[44:47], {qso[ks]} offen sc1")
        if n >= lim:
            extra = 4 if (n >= gpos and n - lim < gpos) else 0
            g(f"s_waitcnt vmcnt({lim-1+extra})")
        kload(n)
        if kearly and n == kearly - 1: g("s_barrier")
        if n == ksig:
            signal(F_K, VFW if not kneed else VFL)
    if gpos >= 16:
        for ks in range(4):
            g(f"buffer_load_dwordx4 v[{QF+4*ks}:{QF+4*ks+3}], v5, s[44:47], {qso[ks]} offen sc1")
    TS(1)
    g("s_waitcnt lgkmcnt(0)")
    tags()
    g("s_mov_b32 s71, 0")
    g(f"s_waitcnt vmcnt({max(16-gpos,0)})")
    g("s_branch L_qchk")
    g("L_qpoll:")
    g(f"s_cmp_lg_u32 s71, {nloc}\ns_cbranch_scc1 L_qnl")
    g("v_lshlrev_b32 v5, 4, v1")
    g("L_qnl:")
    for ks in range(4):
        g(f"s_mov_b64 exec, s[{52+2*ks}:{53+2*ks}]")
        g(f"s_cbranch_execz L_qs{ks}")
        g(f"buffer_load_dwordx4 v[{QF+4*ks}:{QF+4*ks+3}], v5, s[44:47], {qso[ks]} offen sc1")
        g(f"L_qs{ks}:")
    g("s_mov_b64 exec, -1")
    g("s_waitcnt vmcnt(0)")
    g("L_qchk:")
    for ks in range(4):
        r = QF + 4 * ks
        g(f"v_xor_b32 v8, v{r+2}, v{r+1}")
        g(f"v_xor_b32 v9, v{r+3}, v{r}")
        g("v_xor_b32 v8, s92, v8")
        g(f"v_subrev_u32 v{128+ks}, s93, v9")
        g(f"v_lshrrev_b32 v9, 3, v{128+ks}")
        g("v_or_b32 v8, v8, v9")
        g(f"v_cmp_ne_u32_e64 s[{52+2*ks}:{53+2*ks}], 0, v8")
    g(f"s_add_u32 s71, s71, 1\ns_cmp_ge_u32 s71, {maxpoll}\ns_cbranch_scc1 L_qdone")
    g("s_or_b64 s[8:9], s[52:53], s[54:55]\ns_or_b64 s[10:11], s[56:57], s[58:59]\ns_or_b64 s[8:9], s[8:9], s[10:11]")
    g("s_cbranch_scc1 L_qpoll")
    g("L_qdone:")
    g("v_xor_b32 v128, s0, v128\nv_xor_b32 v129, s0, v129\nv_xor_b32 v130, s0, v130\nv_xor_b32 v131, s0, v131")
    g("v_or3_b32 v128, v128, v129, v130\nv_or_b32 v128, v128, v131")
    g("v_cmp_ne_u32 vcc, 0, v128")
    g("s_cmp_eq_u64 vcc, 0\ns_cbranch_scc1 L_alllocal")
    signal(F_NL)
    g("L_alllocal:")
    g(f"v_pk_add_f32 v[{QF}:{QF+1}], v[{QF}:{QF+1}], v[{QF+4}:{QF+5}]")
    g(f"v_pk_add_f32 v[{QF+8}:{QF+9}], v[{QF+8}:{QF+9}], v[{QF+12}:{QF+13}]")
    g(f"v_pk_add_f32 v[{QF}:{QF+1}], v[{QF}:{QF+1}], v[{QF+8}:{QF+9}]")
    g(f"v_cvt_pk_bf16_f32 v8, v{QF}, v{QF+1}")
    g("v_lshlrev_b32 v9, 2, v1\ns_lshl_b32 s8, s15, 8\nv_add_u32 v9, s8, v9")
    g(f"ds_write_b32 v9, v8 offset:{L_QL}")
    signal(F_Q)
    g("""
    v_and_b32 v10, 3, v2
    v_lshlrev_b32 v7, 8, v10
    v_lshl_add_u32 v7, v3, 4, v7
    v_lshlrev_b32 v12, 5, v10
    s_lshl_b32 s11, s15, 3
    v_add_u32 v13, s11, v12
    v_lshlrev_b32 v14, 4, v1
    s_lshl_b32 s11, s15, 11
    v_add_u32 v14, s11, v14
    """)
    spin(F_Q, 4)
    TS(2)
    for t in range(4):
        g(f"ds_read_b128 v[{QF+4*t}:{QF+4*t+3}], v7 offset:{L_QL + 64*t}")
    SC = 128 ** -0.5
    g(f"s_mov_b32 s8, {f2u(SC):#x}\ns_mov_b32 s9, {f2u(SC):#x}\ns_mov_b32 s10, {f2u(LOG2E):#x}")
    g("s_waitcnt lgkmcnt(0)")
    for T in range(4):
        g(f"s_waitcnt vmcnt({12-4*T})")
        for t in range(4):
            r = KR + 16 * T + 4 * t
            c = "0" if t == 0 else f"v[{SA+4*T}:{SA+4*T+3}]"
            g(f"v_mfma_f32_16x16x32_bf16 v[{SA+4*T}:{SA+4*T+3}], v[{r}:{r+3}], v[{QF+4*t}:{QF+4*t+3}], {c}")
    for rep in range(2):
        for p in range(8):
            a = SA + 2 * p
            g(f"v_cvt_pk_bf16_f32 v{TM+p}, v{a}, v{a+1}")
        for p in range(8):
            a = SA + 2 * p
            g(f"v_lshlrev_b32 v{a}, 16, v{TM+p}")
            g(f"v_and_b32 v{a+1}, s42, v{TM+p}")
        if rep == 0:
            for p in range(8):
                a = SA + 2 * p
                g(f"v_pk_mul_f32 v[{a}:{a+1}], v[{a}:{a+1}], s[8:9]")
    g(f"v_max3_f32 v8, v{SA}, v{SA+1}, v{SA+2}")
    g(f"v_max3_f32 v9, v{SA+3}, v{SA+4}, v{SA+5}")
    g(f"v_max3_f32 v10, v{SA+6}, v{SA+7}, v{SA+8}")
    g(f"v_max3_f32 v11, v{SA+9}, v{SA+10}, v{SA+11}")
    g(f"v_max3_f32 v8, v8, v{SA+12}, v{SA+13}")
    g(f"v_max3_f32 v9, v9, v{SA+14}, v{SA+15}")
    g("v_max3_f32 v8, v8, v9, v10\nv_max_f32 v8, v8, v11")
    g("v_mov_b32 v9, v8\nv_permlane32_swap_b32 v8, v9\nv_max_f32 v8, v8, v9")
    g("v_mov_b32 v9, v8\nv_permlane16_swap_b32 v8, v9\nv_max_f32 v8, v8, v9")
    g("v_mul_f32 v10, s10, v8")
    for e in range(16):
        g(f"v_fma_f32 v{SA+e}, v{SA+e}, s10, -v10")
    for e in range(16):
        g(f"v_exp_f32 v{SA+e}, v{SA+e}")
    for p in range(8):
        g(f"v_cvt_pk_bf16_f32 v{PR+p}, v{SA+2*p}, v{SA+2*p+1}")
    g(f"ds_write_b128 v14, v[{PR}:{PR+3}] offset:{L_PL}")
    g(f"ds_write_b128 v14, v[{PR+4}:{PR+7}] offset:{L_PL+1024}")
    if dp: g(f"s_sleep {dp}")
    signal(F_P, VFW)
    for p in range(4):
        g(f"v_pk_add_f32 v[{SA+2*p}:{SA+2*p+1}], v[{SA+2*p}:{SA+2*p+1}], v[{SA+8+2*p}:{SA+9+2*p}]")
    for p in range(2):
        g(f"v_pk_add_f32 v[{SA+2*p}:{SA+2*p+1}], v[{SA+2*p}:{SA+2*p+1}], v[{SA+4+2*p}:{SA+5+2*p}]")
    g(f"v_pk_add_f32 v[{SA}:{SA+1}], v[{SA}:{SA+1}], v[{SA+2}:{SA+3}]")
    g(f"v_add_f32 v9, v{SA}, v{SA+1}")
    g("v_mov_b32 v11, v9\nv_permlane32_swap_b32 v9, v11\nv_add_f32 v9, v9, v11")
    g("v_mov_b32 v11, v9\nv_permlane16_swap_b32 v9, v11\nv_add_f32 v9, v9, v11")
    g("s_mov_b64 exec, 15")
    g(f"ds_write_b64 v13, v[8:9] offset:{L_ST}")
    g("s_mov_b64 exec, -1")
    signal(F_ST)
    TS(3)
    spin(F_ST, 4)
    FA = P0
    g("s_lshl_b32 s11, s15, 5\nv_mov_b32 v12, s11")
    g(f"ds_read_b128 v[16:19], v12 offset:{L_ST}")
    g(f"ds_read_b128 v[20:23], v12 offset:{L_ST+16}")
    g(f"ds_read_b32 v27, v{VFL} offset:{F_NL}")
    g("s_waitcnt lgkmcnt(0)")
    g("v_readfirstlane_b32 s1, v27")
    g("v_max3_f32 v24, v16, v18, v20\nv_max_f32 v24, v24, v22")
    for i in range(4):
        g(f"v_sub_f32 v{FA+i}, v{16+2*i}, v24")
        g(f"v_mul_f32 v{FA+i}, s10, v{FA+i}")
        g(f"v_exp_f32 v{FA+i}, v{FA+i}")
    g(f"v_mul_f32 v25, v{FA}, v17")
    for i in range(1, 4):
        g(f"v_fmac_f32 v25, v{FA+i}, v{17+2*i}")
    g("v_rcp_f32 v26, v25\nv_log_f32 v25, v25")
    for i in range(4):
        g(f"v_mul_f32 v{FA+i}, v{FA+i}, v26")
    VOPR, VL4, VLSE = P0 + 4, P0 + 5, P0 + 6
    g(f"v_fma_f32 v25, v24, s10, v25\nv_min_u32 v{VLSE}, -2, v25")
    g(f"v_lshlrev_b32 v{VOPR}, 3, v1\ns_mul_i32 s11, s15, {OPH}\nv_add_u32 v{VOPR}, s11, v{VOPR}")
    g(f"v_lshlrev_b32 v{VL4}, 2, v2\nv_lshl_add_u32 v{VL4}, v3, 11, v{VL4}")
    g("s_cmp_ge_u32 s2, 4\ns_cbranch_scc1 L_tdone")
    g("s_mov_b32 s71, 0")
    g("L_tpoll:")
    g("buffer_load_dwordx2 v[128:129], v6, s[44:47], s68 offen sc1")
    g("s_waitcnt vmcnt(0)")
    g("v_xor_b32 v16, s92, v128\nv_xor_b32 v17, s93, v129\nv_or_b32 v16, v16, v17")
    g("v_cmp_ne_u32 vcc, 0, v16")
    g(f"s_add_u32 s71, s71, 1\ns_cmp_ge_u32 s71, {maxpoll}\ns_cbranch_scc1 L_tdone")
    g("s_cmp_lg_u64 vcc, 0\ns_cbranch_scc1 L_tpoll")
    g("L_tdone:")
    g(f"s_lshl_b32 s11, s4, 15\ns_lshr_b32 s13, s7, 2\ns_lshl_b32 s13, s13, 10\ns_add_u32 s11, s11, s13\ns_lshl_b32 s13, s6, 8\ns_add_u32 s11, s11, s13\ns_and_b32 s13, s7, 3\ns_lshl_b32 s13, s13, 6\ns_add_u32 s11, s11, s13\ns_add_u32 s11, s11, {WS_O:#x}")
    g("s_lshl_b32 s13, s15, 13\ns_add_u32 s68, s11, s13")
    g(f"s_lshl_b32 s62, s4, 9\ns_lshl_b32 s13, s6, 5\ns_add_u32 s62, s62, s13\ns_and_b32 s13, s7, 3\ns_lshl_b32 s13, s13, 3\ns_add_u32 s62, s62, s13\ns_lshr_b32 s13, s7, 2\ns_lshl_b32 s13, s13, 2\ns_add_u32 s62, s62, s13\ns_add_u32 s62, s62, {WS_LSE:#x}")
    g("s_lshl_b32 s13, s15, 7\ns_add_u32 s62, s62, s13")
    g("s_call_b64 s[100:101], L_fsetup")
    g("s_mov_b64 exec, 1")
    if local:
        g("s_cmp_lg_u32 s1, 0\ns_cbranch_scc1 L_lstg")
        g(f"buffer_store_dword v{VLSE}, v{VZ}, s[44:47], s62 offen")
        g("s_branch L_lsd")
        g("L_lstg:")
    g(f"buffer_store_dword v{VLSE}, v{VZ}, s[44:47], s62 offen sc1")
    g("L_lsd:")
    g("s_mov_b64 exec, -1")
    g("s_waitcnt lgkmcnt(0)")
    TS(4)
    g("s_barrier")
    TS(5)
    for w in range(4):
        g(f"ds_read_b64 v[{16+2*w}:{17+2*w}], v{VOPR} offset:{L_OP + OPW*w}")
    g("s_waitcnt lgkmcnt(0)")
    g(f"v_pk_mul_f32 v[16:17], v[16:17], v[{FA}:{FA+1}] op_sel:[0,0] op_sel_hi:[1,0]")
    g(f"v_pk_mul_f32 v[20:21], v[20:21], v[{FA+2}:{FA+3}] op_sel:[0,0] op_sel_hi:[1,0]")
    g(f"v_pk_fma_f32 v[16:17], v[18:19], v[{FA}:{FA+1}], v[16:17] op_sel:[0,1,0] op_sel_hi:[1,1,1]")
    g(f"v_pk_fma_f32 v[20:21], v[22:23], v[{FA+2}:{FA+3}], v[20:21] op_sel:[0,1,0] op_sel_hi:[1,1,1]")
    g("v_pk_add_f32 v[16:17], v[16:17], v[20:21]")
    g("v_cvt_pk_bf16_f32 v16, v16, v17\nv_min_u32 v16, -2, v16")
    if local:
        g("s_cmp_lg_u32 s1, 0\ns_cbranch_scc1 L_ostg")
        g(f"buffer_store_dword v16, v{VL4}, s[44:47], s68 offen")
        TS(6)
        g("s_branch L_B5")
        g("L_ostg:")
    g(f"buffer_store_dword v16, v{VL4}, s[44:47], s68 offen sc1")
    TS(6)
    g("s_branch L_B5")

    g("L_fsetup:")
    g(f"""
    s_sub_u32 s63, s3, 4
    s_lshr_b32 s13, s5, 4
    s_lshl_b32 s14, s4, 1
    s_add_u32 s13, s13, s14
    s_lshl_b32 s13, s13, 11
    s_and_b32 s14, s5, 15
    s_lshl_b32 s14, s14, 7
    s_add_u32 s13, s13, s14
    v_lshlrev_b32 v{VH2S}, 15, v3
    v_lshl_add_u32 v{VH2S}, v2, 3, v{VH2S}
    v_lshlrev_b32 v{VGP}, 3, v1
    """)
    g(f"s_add_u32 s69, s13, {WS_H2:#x}")
    srd(56, 16, 4096)
    g(f"""
    v_and_b32 v8, 1, v3
    v_lshlrev_b32 v8, 1, v8
    v_lshrrev_b32 v9, 1, v3
    v_or_b32 v8, v8, v9
    v_lshl_add_u32 v8, v2, 2, v8
    s_lshl_b32 s8, s63, 6
    v_add_u32 v8, s8, v8
    v_lshlrev_b32 v{VCOL}, 1, v8
    s_and_b32 s8, s2, 3
    s_lshl_b32 s43, s8, 10
    v_lshlrev_b32 v{VH2}, 11, v3
    v_lshl_add_u32 v{VH2}, v2, 4, v{VH2}
    s_lshl_b32 s11, s63, 3
    v_lshrrev_b32 v{VST}, 5, v1
    v_lshlrev_b32 v{VST}, 2, v{VST}
    v_add_u32 v{VST}, s11, v{VST}
    s_cmp_ge_u32 s2, 4
    s_cbranch_scc1 L_fs1
    buffer_load_ushort v{VX}, v{VCOL}, s[56:59], s43 offen
    L_fs1:
    s_setpc_b64 s[100:101]
    """)

    g("L_Q2:")
    g("s_setprio 1")
    g("s_waitcnt vmcnt(18)")
    g("s_mov_b32 s8, 0x3f803f80\nv_mov_b32 v10, 0\nv_mov_b32 v11, 0\nv_mov_b32 v12, 0\nv_mov_b32 v13, 0")
    for i in range(0, 16, 2):
        g(f"v_dot2_f32_bf16 v10, v{16+i}, s8, v10")
        g(f"v_dot2_f32_bf16 v11, v{16+i}, v{16+i}, v11")
        g(f"v_dot2_f32_bf16 v12, v{17+i}, s8, v12")
        g(f"v_dot2_f32_bf16 v13, v{17+i}, v{17+i}, v13")
    g("s_nop 2")
    g("v_pk_add_f32 v[10:11], v[10:11], v[12:13]")
    for m in ("row_ror:4", "row_ror:8"):
        g(f"v_add_f32_dpp v10, v10, v10 {m} row_mask:0xf bank_mask:0xf")
        g(f"v_add_f32_dpp v11, v11, v11 {m} row_mask:0xf bank_mask:0xf")
    for sw in ("v_permlane32_swap_b32", "v_permlane16_swap_b32"):
        g("v_mov_b32 v12, v10\nv_mov_b32 v13, v11")
        g(f"{sw} v10, v12\n{sw} v11, v13")
        g("v_pk_add_f32 v[10:11], v[10:11], v[12:13]")
    g(f"s_mov_b32 s8, {f2u(1.0/512):#x}\ns_mov_b32 s9, {f2u(1.0/512):#x}\ns_mov_b32 s10, {f2u(1e-5):#x}")
    ln_scalar(10, 11, 12)
    g("s_waitcnt vmcnt(16)")
    for d in range(4):
        a = 16 + 2 * d
        g(f"v_lshlrev_b32 v{a}, 16, v{32+d}\nv_and_b32 v{a+1}, s42, v{32+d}")
    for d in range(4):
        a = 16 + 2 * d
        g(f"v_pk_add_f32 v[{a}:{a+1}], v[{a}:{a+1}], v[10:11] op_sel:[0,0] op_sel_hi:[1,0] neg_lo:[0,1] neg_hi:[0,1]")
    for d in range(4):
        a = 16 + 2 * d
        g(f"v_cvt_pk_bf16_f32 v{32+d}, v{a}, v{a+1}")
    for d in range(4):
        a = 16 + 2 * d
        g(f"v_lshlrev_b32 v{a}, 16, v{32+d}\nv_and_b32 v{a+1}, s42, v{32+d}")
    for d in range(4):
        a = 16 + 2 * d
        g(f"v_pk_mul_f32 v[{a}:{a+1}], v[{a}:{a+1}], v[10:11] op_sel:[0,1] op_sel_hi:[1,1]")
    for d in range(4):
        a = 16 + 2 * d
        g(f"v_cvt_pk_bf16_f32 v{32+d}, v{a}, v{a+1}")
    g("""
    v_lshlrev_b32 v8, 8, v4
    v_lshl_add_u32 v8, v3, 4, v8
    v_lshl_add_u32 v9, v7, 6, v8
    """)
    g(f"ds_write_b128 v9, v[32:35] offset:{L_XN}")
    for kb in range(4):
        g(f"ds_read_b128 v[{36+4*kb}:{39+4*kb}], v8 offset:{L_XN + 64*kb}")
    g("""
    v_lshrrev_b32 v9, 2, v2
    v_lshl_add_u32 v9, v3, 2, v9
    v_bfe_u32 v14, v9, 1, 2
    v_lshlrev_b32 v9, 7, v9
    v_lshl_add_u32 v9, v4, 3, v9
    """)
    for mt in range(4):
        g(f"v_xor_b32 v15, {mt}, v14")
        g(f"v_lshl_add_u32 v{10+mt}, v15, 5, v9")
    g("s_waitcnt lgkmcnt(0)")
    tags()
    AF = 52
    for kb in range(4):
        g(f"s_waitcnt vmcnt({12-4*kb})")
        for mt in range(4):
            r = AF + 16 * kb + 4 * mt
            g(f"ds_read_b64_tr_b16 v[{r}:{r+1}], v{10+mt} offset:{L_WQT + 4096*kb}")
            g(f"ds_read_b64_tr_b16 v[{r+2}:{r+3}], v{10+mt} offset:{L_WQT + 4096*kb + 2048}")
    for z in (1, 2, 3):
        g(f"v_cmp_eq_u32_e64 s[{50+2*z}:{51+2*z}], {z}, v7")
    g("""
    v_lshlrev_b32 v8, 14, v4
    v_lshl_add_u32 v8, v7, 7, v8
    v_lshl_add_u32 v8, v3, 5, v8
    s_lshl_b32 s8, s4, 16
    s_lshl_b32 s9, s6, 12
    s_add_u32 s8, s8, s9
    s_lshl_b32 s9, s7, 9
    s_add_u32 s8, s8, s9
    """)
    g(f"s_add_u32 s8, s8, {WS_QS:#x}")
    g("s_add_u32 s93, s93, s0")
    g("s_waitcnt lgkmcnt(0)")
    QD = 116
    for kb in range(4):
        for mt in range(4):
            r = AF + 16 * kb + 4 * mt
            c = "0" if kb == 0 else f"v[{QD+4*mt}:{QD+4*mt+3}]"
            g(f"v_mfma_f32_16x16x32_bf16 v[{QD+4*mt}:{QD+4*mt+3}], v[{r}:{r+3}], v[{36+4*kb}:{39+4*kb}], {c}")
    for z in (1, 2, 3):
        for i in range(4):
            g(f"v_cndmask_b32_e64 v{QD+i}, v{QD+i}, v{QD+4*z+i}, s[{50+2*z}:{51+2*z}]")
    spin(F_CL, 1)
    if dq: g(f"s_sleep {dq}")
    g(f"""
    v_mov_b32 v136, v{QD}
    v_mov_b32 v137, v{QD+1}
    v_xor_b32 v138, s92, v{QD+1}
    v_xor_b32 v139, s93, v{QD}
    v_mov_b32 v140, v{QD+2}
    v_mov_b32 v141, v{QD+3}
    v_xor_b32 v142, s92, v{QD+3}
    v_xor_b32 v143, s93, v{QD+2}
    s_add_u32 s9, s8, {QSL:#x}
    s_setprio 3
    buffer_store_dwordx4 v[136:139], v8, s[44:47], s9 offen
    buffer_store_dwordx4 v[140:143], v8, s[44:47], s9 offen offset:16
    buffer_store_dwordx4 v[136:139], v8, s[44:47], s8 offen sc1
    buffer_store_dwordx4 v[140:143], v8, s[44:47], s8 offen offset:16 sc1
    s_setprio 0
    """)
    TS(2)
    g("s_branch L_C")

    g("L_C123:")
    g("s_cmp_lg_u32 s3, 1\ns_cbranch_scc1 L_C23")
    g("v_lshlrev_b32 v4, 2, v2")
    g(f"ds_write_b32 v4, v{VZ} offset:{L_FL}")
    srd(48, 28, 3584)
    srd(52, 30, 3584)
    srd(56, 32, 3584)
    g("v_lshlrev_b32 v6, 4, v1")
    g("s_waitcnt lgkmcnt(0)")
    if not mwearly: g("s_barrier")
    for a in range(3):
        g(f"s_mov_b32 m0, {L_MW + 4096*a}")
        for i in range(4):
            if not nomw: g(f"buffer_load_dwordx4 v6, s[{48+4*a}:{51+4*a}], 0 offen offset:{1024*i} lds")
    if mwearly: g("s_barrier")
    g("s_waitcnt vmcnt(0)")
    signal(F_MW)
    g("s_branch L_C")
    g("L_C23:")
    g("s_cmp_eq_u32 s3, 2\ns_cbranch_scc1 L_C2")
    g("s_barrier")
    g("s_waitcnt vmcnt(0)")
    g("s_branch L_C")
    g("L_C2:")
    g("""
    s_lshl_b32 s11, s4, 5
    s_add_u32 s11, s11, s5
    v_mov_b32 v8, -1
    v_mov_b32 v9, -1
    v_mov_b32 v10, -1
    v_mov_b32 v11, -1
    v_lshlrev_b32 v4, 4, v1
    """)
    g(f"s_lshl_b32 s11, s4, 15\ns_lshr_b32 s13, s7, 2\ns_lshl_b32 s13, s13, 10\ns_add_u32 s11, s11, s13\ns_lshl_b32 s13, s6, 8\ns_add_u32 s11, s11, s13\ns_and_b32 s13, s7, 3\ns_lshl_b32 s13, s13, 6\ns_add_u32 s11, s11, s13\ns_add_u32 s11, s11, {WS_O:#x}")
    g(f"s_lshl_b32 s62, s4, 9\ns_lshl_b32 s13, s6, 5\ns_add_u32 s62, s62, s13\ns_and_b32 s13, s7, 3\ns_lshl_b32 s13, s13, 3\ns_add_u32 s62, s62, s13\ns_lshr_b32 s13, s7, 2\ns_lshl_b32 s13, s13, 2\ns_add_u32 s62, s62, s13\ns_add_u32 s62, s62, {WS_LSE:#x}")
    g("s_mov_b32 s12, s11")
    g("v_lshrrev_b32 v12, 2, v1\nv_lshlrev_b32 v12, 11, v12\nv_and_b32 v13, 3, v1\nv_lshl_add_u32 v12, v13, 4, v12\nv_lshlrev_b32 v13, 7, v1")
    g("buffer_store_dwordx4 v[8:11], v12, s[44:47], s12 offen sc1")
    g("""
    v_lshlrev_b32 v5, 15, v3
    v_lshl_add_u32 v5, v2, 3, v5
    s_lshr_b32 s13, s5, 4
    s_lshl_b32 s14, s4, 1
    s_add_u32 s13, s13, s14
    s_lshl_b32 s13, s13, 11
    s_and_b32 s14, s5, 15
    s_lshl_b32 s14, s14, 7
    s_add_u32 s13, s13, s14
    """)
    g(f"s_add_u32 s13, s13, {WS_H2:#x}")
    g("buffer_store_dwordx2 v[8:9], v5, s[44:47], s13 offen sc1")
    g("s_mov_b64 exec, 15")
    g("buffer_store_dword v8, v13, s[44:47], s62 offen sc1")
    g(f"s_mul_i32 s14, s2, 48\ns_add_u32 s14, s14, {WS_TAB:#x}")
    g("s_mov_b64 exec, 7")
    g("buffer_store_dwordx4 v[8:11], v4, s[44:47], s14 offen sc1")
    g("s_mov_b64 exec, -1")
    g("s_barrier")
    g("s_waitcnt vmcnt(0) lgkmcnt(0)")
    tags()
    signal(F_CL)
    if pretouch:
        g("s_setprio 3")
        g("buffer_load_dwordx4 v[152:155], v12, s[44:47], s12 offen sc1")
    g("v_mov_b32 v8, s92\nv_mov_b32 v9, s93")
    g(f"s_lshl_b32 s9, s2, 3\ns_add_u32 s9, s9, {WS_T:#x}")
    g("s_mov_b64 exec, 1")
    g(f"buffer_store_dwordx2 v[8:9], v{VZ}, s[44:47], s9 offen sc1")
    g("s_mov_b64 exec, -1")
    g("s_setprio 0")
    signal(F_MW)

    MWB, EH, EA, ES = 16, 100, 102, 108
    g("L_C:")
    spin(F_MW, 2)
    TS(3)
    if dbg: g("s_memtime s[82:83]")
    g(f"v_lshlrev_b32 v4, 2, v1")
    for a in range(3):
        for k in range(14):
            g(f"ds_read_b32 v{MWB+28*a+2*k+1}, v4 offset:{L_MW + 4096*a + 256*k}")
    g(f"s_mov_b32 s8, {f2u(ALPHA):#x}\ns_mov_b32 s9, {f2u(ALPHA):#x}\ns_mov_b32 s10, {f2u(1.0/ALPHA):#x}\ns_mov_b32 s11, {f2u(1.0/ALPHA):#x}")
    g("s_waitcnt lgkmcnt(0)")
    for a in range(3):
        for k in range(14):
            r = MWB + 28 * a + 2 * k
            g(f"v_lshlrev_b32 v{r}, 16, v{r+1}")
            g(f"v_and_b32 v{r+1}, s42, v{r+1}")
    for a in range(3):
        for k in range(14):
            r = MWB + 28 * a + 2 * k
            g(f"v_pk_mul_f32 v[{r}:{r+1}], v[{r}:{r+1}], s[{8 if a < 2 else 10}:{9 if a < 2 else 11}]")
    g(f"s_mov_b32 s62, {f2u(BETA):#x}\ns_mov_b32 s63, {f2u(BETA):#x}")
    g("s_mul_i32 s95, s2, 24\ns_mul_i32 s96, s3, 6\ns_add_u32 s95, s95, s96\ns_add_u32 s96, s95, 6")
    g(f"v_lshlrev_b32 v{VB2}, 16, v{VB2}")
    if dt: g(f"s_sleep {dt}")
    g("L_tab1:")
    g(f"s_cmp_ge_u32 s95, {NBIN*128}\ns_cselect_b32 s97, {0x8000 - NBIN*128}, 0")
    g(f"s_add_u32 s97, s97, s95\ns_add_u32 s97, s97, {EXP0 << 7}\ns_lshl_b32 s97, s97, 16\nv_mov_b32 v{EH}, s97")
    if not notab: g("s_call_b64 s[100:101], L_eval")
    g(f"v_alignbit_b32 v136, v137, v136, 16\nv_alignbit_b32 v137, v138, v137, 16\nv_alignbit_b32 v138, v{EA}, v138, 16")
    g("s_add_u32 s95, s95, 1\ns_cmp_lt_u32 s95, s96\ns_cbranch_scc1 L_tab1")
    g(f"s_lshl_b32 s97, s96, 1\ns_add_u32 s97, s97, {WS_TAB - 12:#x}")
    g("s_mov_b32 exec_lo, 0\ns_mov_b32 exec_hi, 0x80000000")
    g("s_setprio 3")
    g(f"buffer_store_dwordx3 v[136:138], v{VZ}, s[44:47], s97 offen sc1")
    g("s_mov_b64 exec, -1")
    TS(4)
    if dbg: g("s_memtime s[84:85]")
    g("s_cmp_ge_u32 s2, 4\ns_cbranch_scc1 L_fin")
    srd(48, 36, 4096)
    g(f"v_lshlrev_b32 v4, 4, v1\ns_mul_i32 s12, s3, 3072\ns_add_u32 m0, s12, {L_TAB}\ns_add_u32 s12, s12, {WS_TAB:#x}")
    g("s_barrier\ns_barrier")
    for i in range(3):
        g(f"buffer_load_dwordx4 v4, s[44:47], s12 offen offset:{1024*i} sc1 lds")
    g("s_waitcnt vmcnt(0)")
    g("s_barrier\ns_barrier\ns_barrier")
    g(f"ds_read_b32 v4, v{VFL} offset:{F_MISS}")
    g("s_waitcnt lgkmcnt(0)")
    g("v_readfirstlane_b32 s96, v4")
    g("s_mov_b32 s95, s3")
    g("s_lshl_b32 s43, s2, 10")
    g("L_fb:")
    g("s_cmp_ge_u32 s95, s96\ns_cbranch_scc1 L_fin")
    g("s_lshl_b32 s8, s95, 3\nv_mov_b32 v4, s8")
    g(f"ds_read_b64 v[6:7], v4 offset:{L_MISS}")
    g("s_waitcnt lgkmcnt(0)")
    g(f"v_and_b32 v{EH}, s42, v6\nv_and_b32 v6, 0xffff, v6")
    g("s_call_b64 s[100:101], L_eval")
    g(f"v_and_b32 v8, s42, v{EA}\nv_add_f32 v8, v8, v7\nv_cvt_pk_bf16_f32 v8, v8, v8")
    g("s_mov_b32 exec_lo, 0\ns_mov_b32 exec_hi, 0x80000000")
    g("buffer_store_short v8, v6, s[48:51], s43 offen")
    g("s_mov_b64 exec, -1")
    g("s_add_u32 s95, s95, 4\ns_branch L_fb")

    g("L_eval:")
    NB = 7
    for b0 in range(0, 14, NB):
        ks = list(range(b0, b0 + NB))
        S_ = lambda i: ES + 4 * i
        Z = lambda i: ES + 2 + 4 * i
        for i, k in enumerate(ks):
            w_ = MWB + 2 * k
            bb = MWB + 28 + 2 * k
            g(f"v_pk_fma_f32 v[{S_(i)}:{S_(i)+1}], v[{w_}:{w_+1}], v[{EH}:{EH+1}], v[{bb}:{bb+1}] op_sel:[0,0,0] op_sel_hi:[1,0,1]")
        for i, k in enumerate(ks):
            g(f"v_pk_fma_f32 v[{Z(i)}:{Z(i)+1}], v[{S_(i)}:{S_(i)+1}], v[{S_(i)}:{S_(i)+1}], s[62:63]")
        for i, k in enumerate(ks):
            g(f"v_pk_mul_f32 v[{Z(i)}:{Z(i)+1}], v[{Z(i)}:{Z(i)+1}], v[{S_(i)}:{S_(i)+1}]")
        for i, k in enumerate(ks):
            g(f"v_exp_f32 v{Z(i)}, v{Z(i)}\nv_exp_f32 v{Z(i)+1}, v{Z(i)+1}")
            vv = MWB + 56 + 2 * k
            g(f"v_pk_mul_f32 v[{S_(i)}:{S_(i)+1}], v[{S_(i)}:{S_(i)+1}], v[{vv}:{vv+1}]")
        for i, k in enumerate(ks):
            g(f"v_pk_add_f32 v[{Z(i)}:{Z(i)+1}], v[{Z(i)}:{Z(i)+1}], 1.0 op_sel_hi:[1,0]")
        for i, k in enumerate(ks):
            g(f"v_rcp_f32 v{Z(i)}, v{Z(i)}\nv_rcp_f32 v{Z(i)+1}, v{Z(i)+1}")
        for i, k in enumerate(ks):
            acc = EA + 2 * (i & 1)
            if b0 == 0 and i < 2:
                g(f"v_pk_mul_f32 v[{acc}:{acc+1}], v[{S_(i)}:{S_(i)+1}], v[{Z(i)}:{Z(i)+1}]")
            else:
                g(f"v_pk_fma_f32 v[{acc}:{acc+1}], v[{S_(i)}:{S_(i)+1}], v[{Z(i)}:{Z(i)+1}], v[{acc}:{acc+1}]")
    g(f"v_pk_add_f32 v[{EA}:{EA+1}], v[{EA}:{EA+1}], v[{EA+2}:{EA+3}]\nv_add_f32 v{EA}, v{EA}, v{EA+1}")
    for m in DPP6:
        g(f"v_add_f32_dpp v{EA}, v{EA}, v{EA} {m}")
    g(f"""
    v_cvt_pk_bf16_f32 v{EA}, v{EA}, v{EA}
    v_and_b32 v{EA}, s42, v{EA}
    v_add_f32 v{EA}, v{EA}, v{VB2}
    v_cvt_pk_bf16_f32 v{EA}, v{EA}, v{EA}
    s_setpc_b64 s[100:101]
    """)

    g("L_V:")
    g("s_setprio 2")
    g("s_barrier")
    g("s_call_b64 s[100:101], L_fsetup")
    srd(48, 20, 0x4000000)
    srd(52, 24, 0x400000)
    VPAY, VW0, VW1, VWT, VGW = P0, P0 + 1, P0 + 2, P0 + 3, P0 + 4
    g("""
    v_lshlrev_b32 v5, 4, v2
    v_lshl_add_u32 v5, v3, 10, v5
    v_lshlrev_b32 v14, 4, v1
    s_lshl_b32 s11, s15, 11
    v_add_u32 v14, s11, v14
    """)
    g(f"v_mul_u32_u24 v15, {OPH}, v2")
    g("v_lshl_add_u32 v15, v3, 4, v15")
    g(f"s_mul_i32 s11, s15, {OPW}\nv_add_u32 v15, s11, v15")
    g("""
    v_and_b32 v7, 1, v3
    v_lshlrev_b32 v8, 6, v7
    v_bfe_u32 v9, v1, 2, 2
    v_lshl_add_u32 v8, v9, 3, v8
    v_lshrrev_b32 v9, 5, v1
    v_add_u32 v8, v8, v9
    v_lshlrev_b32 v8, 10, v8
    v_and_b32 v9, 3, v1
    v_lshlrev_b32 v7, 1, v7
    v_xor_b32 v9, v9, v7
    v_lshl_add_u32 v8, v9, 4, v8
    s_lshl_b32 s8, s4, 19
    s_lshr_b32 s9, s5, 4
    s_lshl_b32 s9, s9, 18
    s_add_u32 s8, s8, s9
    s_and_b32 s9, s5, 15
    s_lshl_b32 s9, s9, 6
    s_add_u32 s8, s8, s9
    s_lshr_b32 s9, s15, 1
    s_lshl_b32 s9, s9, 17
    s_add_u32 s8, s8, s9
    s_and_b32 s9, s15, 1
    s_lshl_b32 s9, s9, 12
    s_add_u32 s8, s8, s9
    s_lshl_b32 s14, s15, 12
    """)
    g(f"s_add_u32 s14, s14, {L_WOT}")
    g("""
    s_lshr_b32 s9, s5, 4
    s_lshl_b32 s9, s9, 1
    s_lshr_b32 s10, s15, 1
    s_add_u32 s9, s9, s10
    """)
    g(f"s_lshl_b32 s10, s4, 15\ns_add_u32 s10, s10, {WS_O:#x}")
    g("s_lshl_b32 s11, s9, 13\ns_add_u32 s10, s10, s11\ns_and_b32 s11, s15, 1\ns_lshl_b32 s11, s11, 12\ns_add_u32 s60, s10, s11")
    g(f"s_lshl_b32 s10, s4, 9\ns_lshl_b32 s11, s9, 7\ns_add_u32 s58, s10, s11\ns_add_u32 s58, s58, {WS_LSE:#x}")
    g(f"""
    v_lshrrev_b32 v6, 2, v2
    v_and_b32 v7, 3, v2
    v_lshlrev_b32 v{VWT}, 3, v2
    v_lshlrev_b32 v{VPAY}, 6, v2
    v_lshl_add_u32 v{VPAY}, v3, 4, v{VPAY}
    v_lshrrev_b32 v7, 2, v2
    v_lshl_add_u32 v7, v3, 2, v7
    v_lshlrev_b32 v7, 6, v7
    v_and_b32 v9, 3, v2
    v_lshl_add_u32 v7, v9, 3, v7
    v_and_b32 v9, 1, v3
    v_lshl_add_u32 v{VW0}, v9, 5, v7
    v_xor_b32 v9, 1, v9
    v_lshl_add_u32 v{VW1}, v9, 5, v7
    v_add_u32 v{VW0}, s14, v{VW0}
    v_add_u32 v{VW1}, s14, v{VW1}
    v_lshlrev_b32 v{VGW}, 7, v6
    v_lshl_add_u32 v{VGW}, v3, 4, v{VGW}
    s_lshl_b32 s10, s15, 9
    v_add_u32 v{VGW}, s10, v{VGW}
    s_mov_b32 s96, 0x11111111
    s_mov_b32 s97, 0x11111111
    s_mov_b32 s12, 0x05040100
    s_mov_b32 s13, 0x07060302
    s_mov_b32 s56, 0x000f000f
    s_mov_b32 s57, 0x000f000f
    """)
    if kneed:
        spin(F_K, kneed, sl=1)
    else:
        spin(F_K, 1, vaddr=VFW, sl=slp)
    TS(4)
    VR, AO, AT, PA = 16, 80, 112, 6
    if dv: g(f"s_sleep {dv}")
    n = 0
    for T in range(4):
        for i in range(4):
            r = VR + 16 * T + 4 * i
            if n >= limv:
                g(f"s_waitcnt vmcnt({limv-1})")
            g(f"buffer_load_dwordx4 v[{r}:{r+3}], v5, s[48:51], s{64+T} offen offset:{256*i} {kvflags}")
            n += 1
    if wolast:
        signal(F_VI)
        spin(F_VI, 4)
    for i in range(4):
        dI = 32 * (i & 1) + 2 * (i >> 1)
        g(f"s_add_u32 s9, s8, {dI*1024:#x}")
        g(f"s_add_u32 m0, s14, {1024*i}")
        g(f"buffer_load_dwordx4 v8, s[52:55], s9 offen {wflags} lds")
    TS(5)
    spin(F_P, 1, vaddr=VFW)
    g(f"ds_read_b128 v[{PA}:{PA+3}], v14 offset:{L_PL}")
    g(f"ds_read_b128 v[{PA+4}:{PA+7}], v14 offset:{L_PL+1024}")
    g("s_waitcnt lgkmcnt(0)")
    tb = lambda j: AT + 4 * j
    for u_ in range(2):
        for q in range(4):
            T = 2 * u_ + (q >> 1)
            i0 = 2 * (q & 1)
            done = 4 * T + i0 + 2
            g(f"s_waitcnt vmcnt({20-done})")
            a = VR + 16 * T + 4 * i0
            b_ = a + 4
            for dw in range(4):
                g(f"v_perm_b32 v{tb(2*dw)+q}, v{b_+dw}, v{a+dw}, s12")
                g(f"v_perm_b32 v{tb(2*dw+1)+q}, v{b_+dw}, v{a+dw}, s13")
        for j in range(8):
            c = "0" if u_ == 0 else f"v[{AO+4*j}:{AO+4*j+3}]"
            g(f"v_mfma_f32_16x16x32_bf16 v[{AO+4*j}:{AO+4*j+3}], v[{tb(j)}:{tb(j)+3}], v[{PA+4*u_}:{PA+4*u_+3}], {c}")
    g("s_mov_b64 exec, s[56:57]")
    for j in range(8):
        g(f"ds_write_b128 v15, v[{AO+4*j}:{AO+4*j+3}] offset:{L_OP + 64*j}")
    g("s_mov_b64 exec, -1")
    TS(6)
    g("s_waitcnt lgkmcnt(0)")
    g("s_barrier")
    PAY, WF, DD = 16, 32, 48

    def h1loads(hf):
        for kb in range(2):
            r = PAY + 8 * hf + 4 * kb
            g(f"buffer_load_dwordx4 v[{r}:{r+3}], v{VPAY}, s[44:47], s60 offen offset:{2048*kb + 1024*hf} sc1")
        g(f"buffer_load_dword v{64+hf}, v{VWT}, s[44:47], s58 offen offset:{4*hf} sc1")
    TS(2)
    h1loads(0)
    h1loads(1)
    g("s_waitcnt vmcnt(6)")
    TS(3)
    for kb in range(2):
        for mt in range(2):
            r = WF + 8 * kb + 4 * mt
            g(f"ds_read_b64_tr_b16 v[{r}:{r+1}], v{VW0+mt} offset:{2048*kb}")
            g(f"ds_read_b64_tr_b16 v[{r+2}:{r+3}], v{VW0+mt} offset:{2048*kb+1024}")
    if dbg:
        g("s_waitcnt vmcnt(0)")
        TS(4)
    g("s_mov_b32 s71, 0")
    g("L_h1chk:")
    g("""
    s_waitcnt vmcnt(0)
    v_max3_u32 v8, v16, v17, v18
    v_max3_u32 v9, v24, v25, v26
    v_max3_u32 v8, v8, v19, v20
    v_max3_u32 v9, v9, v27, v28
    v_max3_u32 v8, v8, v21, v22
    v_max3_u32 v9, v9, v29, v30
    v_max3_u32 v8, v8, v23, v64
    v_max3_u32 v9, v9, v31, v65
    v_cmp_eq_u32_e64 s[52:53], -1, v8
    v_cmp_eq_u32_e64 s[54:55], -1, v9
    s_or_b64 s[56:57], s[52:53], s[54:55]
    s_cbranch_scc0 L_h1done
    """)
    g(f"s_add_u32 s71, s71, 1\ns_cmp_ge_u32 s71, {maxpoll}\ns_cbranch_scc1 L_h1done")
    for hf in range(2):
        g(f"s_mov_b64 exec, s[{52+2*hf}:{53+2*hf}]")
        g(f"s_cbranch_execz L_h1s{hf}")
        h1loads(hf)
        g(f"L_h1s{hf}:")
    g("s_mov_b64 exec, -1\ns_branch L_h1chk")
    g("L_h1done:")
    g("s_waitcnt lgkmcnt(0)")
    TS(7)
    if dbg:
        g("s_mov_b32 s74, s71\ns_mov_b32 s75, 0")
    wts = ["v_max_f32 v8, v64, v65",
           "v_max_f32_dpp v8, v8, v8 quad_perm:[1,0,3,2] row_mask:0xf bank_mask:0xf",
           "v_max_f32_dpp v8, v8, v8 quad_perm:[2,3,0,1] row_mask:0xf bank_mask:0xf",
           "v_sub_f32 v64, v64, v8\nv_sub_f32 v65, v65, v8",
           "v_exp_f32 v64, v64\nv_exp_f32 v65, v65",
           "v_add_f32 v8, v64, v65",
           "v_add_f32_dpp v8, v8, v8 quad_perm:[1,0,3,2] row_mask:0xf bank_mask:0xf",
           "v_add_f32_dpp v8, v8, v8 quad_perm:[2,3,0,1] row_mask:0xf bank_mask:0xf"]
    wi = 0
    for kb in range(2):
        for mt in range(2):
            for hf in range(2):
                d = DD + 8 * mt + 4 * hf
                b_ = PAY + 8 * hf + 4 * kb
                a_ = WF + 8 * kb + 4 * mt
                c = "0" if kb == 0 else f"v[{d}:{d+3}]"
                g(f"v_mfma_f32_16x16x32_bf16 v[{d}:{d+3}], v[{a_}:{a_+3}], v[{b_}:{b_+3}], {c}")
                g(wts[wi]); wi += 1
    g("v_rcp_f32 v8, v8")
    g("v_pk_mul_f32 v[64:65], v[64:65], v[8:9] op_sel:[0,0] op_sel_hi:[1,0]")
    for mt in range(2):
        for h_ in range(2):
            d = DD + 8 * mt + 2 * h_
            g(f"v_pk_mul_f32 v[{d}:{d+1}], v[{d}:{d+1}], v[64:65] op_sel:[0,0] op_sel_hi:[1,0]")
    for mt in range(2):
        for h_ in range(2):
            d = DD + 8 * mt + 2 * h_
            g(f"v_pk_fma_f32 v[{d}:{d+1}], v[{d+4}:{d+5}], v[64:65], v[{d}:{d+1}] op_sel:[0,1,0] op_sel_hi:[1,1,1]")
    for m in ("quad_perm:[1,0,3,2]", "quad_perm:[2,3,0,1]"):
        for mt in range(2):
            for i in range(4):
                d = DD + 8 * mt + i
                g(f"v_add_f32_dpp v{d}, v{d}, v{d} {m} row_mask:0xf bank_mask:0xf")
    g("s_mov_b64 exec, s[96:97]")
    g(f"ds_write_b128 v{VGW}, v[{DD}:{DD+3}] offset:{L_GP}")
    g(f"ds_write_b128 v{VGW}, v[{DD+8}:{DD+11}] offset:{L_GP+64}")
    g("s_mov_b64 exec, -1")
    g("s_waitcnt lgkmcnt(0)")

    g("L_B5:")
    g("s_barrier")
    TS(8, 'V')
    TS(7, 'K')
    g("s_cmp_lg_u32 s3, 4\ns_cbranch_scc1 L_H2")
    for w in range(4):
        g(f"ds_read_b64 v[{16+2*w}:{17+2*w}], v{VGP} offset:{L_GP + 512*w}")
    g("s_waitcnt lgkmcnt(0)")
    g("v_pk_add_f32 v[16:17], v[16:17], v[18:19]\nv_pk_add_f32 v[20:21], v[20:21], v[22:23]\nv_pk_add_f32 v[32:33], v[16:17], v[20:21]")
    g("v_min_u32 v32, -2, v32\nv_min_u32 v33, -2, v33")
    g(f"buffer_store_dwordx2 v[32:33], v{VH2S}, s[44:47], s69 offen sc1")
    g("L_H2:")
    g("s_cmp_ge_u32 s2, 4\ns_cbranch_scc1 L_fin")
    g("s_lshl_b32 s8, s2, 15\ns_lshl_b32 s9, s63, 8\ns_add_u32 s8, s8, s9")
    g(f"s_add_u32 s64, s8, {WS_H2:#x}\ns_add_u32 s65, s64, 0x2000\ns_add_u32 s66, s64, 0x4000\ns_add_u32 s67, s64, 0x6000")
    for i in range(4):
        g(f"buffer_load_dwordx4 v[{16+4*i}:{19+4*i}], v{VH2}, s[44:47], s{64+i} offen sc1")
    g(f"s_mov_b32 s8, {f2u(1.0/512):#x}\ns_mov_b32 s9, {f2u(1.0/512):#x}\ns_mov_b32 s10, {f2u(1e-5):#x}")
    g("s_mov_b32 s60, 0x80000000\ns_mov_b32 s61, 0x80000000")
    srd(48, 36, 4096)
    g("s_mov_b32 s71, 0")
    g("L_h2chk:")
    g("s_waitcnt vmcnt(0)")
    for i in range(4):
        g(f"v_max3_u32 v{8+i}, v{16+4*i}, v{17+4*i}, v{18+4*i}")
    for i in range(4):
        g(f"v_max_u32 v{8+i}, v{8+i}, v{19+4*i}")
    g("v_max3_u32 v12, v8, v9, v10\nv_max_u32 v12, v12, v11")
    g("v_cmp_eq_u32 vcc, -1, v12")
    g("s_cmp_eq_u64 vcc, 0\ns_cbranch_scc1 L_h2done")
    g(f"s_add_u32 s71, s71, 1\ns_cmp_ge_u32 s71, {maxpoll}\ns_cbranch_scc1 L_h2done")
    for i in range(4):
        g(f"v_cmp_eq_u32_e64 s[{52+2*i}:{53+2*i}], -1, v{8+i}")
    for i in range(4):
        g(f"s_mov_b64 exec, s[{52+2*i}:{53+2*i}]")
        g(f"s_cbranch_execz L_h2s{i}")
        g(f"buffer_load_dwordx4 v[{16+4*i}:{19+4*i}], v{VH2}, s[44:47], s{64+i} offen sc1")
        g(f"L_h2s{i}:")
    g("s_mov_b64 exec, -1\ns_branch L_h2chk")
    g("L_h2done:")
    TS(9, 'V')
    TS(8, 'K')
    g(f"""
    v_lshlrev_b32 v{VX}, 16, v{VX}
    v_pk_add_f32 v[16:17], v[16:17], v[20:21]
    v_pk_add_f32 v[18:19], v[18:19], v[22:23]
    v_pk_add_f32 v[24:25], v[24:25], v[28:29]
    v_pk_add_f32 v[26:27], v[26:27], v[30:31]
    v_pk_add_f32 v[16:17], v[16:17], v[24:25]
    v_pk_add_f32 v[18:19], v[18:19], v[26:27]
    v_permlane32_swap_b32 v16, v17
    v_permlane32_swap_b32 v18, v19
    v_add_f32 v16, v16, v17
    v_add_f32 v18, v18, v19
    v_permlane16_swap_b32 v16, v18
    v_add_f32 v16, v16, v18
    v_cvt_pk_bf16_f32 v16, v16, v16
    v_and_b32 v16, s42, v16
    v_add_f32 v16, v16, v{VX}
    v_cvt_pk_bf16_f32 v16, v16, v16
    v_and_b32 v13, s42, v16
    """)

    def wave_stats(x, st_off, vmwait=False):
        g(f"v_mul_f32 v19, v{x}, v{x}\nv_mov_b32 v18, v{x}")
        g("v_permlane32_swap_b32 v18, v19\nv_add_f32 v18, v18, v19")
        for m in DPP6[:5]:
            g(f"v_add_f32_dpp v18, v18, v18 {m}")
        g("s_mov_b64 exec, s[60:61]")
        g(f"ds_write_b32 v{VST}, v18 offset:{st_off}")
        g("s_mov_b64 exec, -1")
        g("s_waitcnt lgkmcnt(0)" if not vmwait else "s_waitcnt vmcnt(0) lgkmcnt(0)")
        g("s_barrier")
        for i in range(4):
            g(f"ds_read_b128 v[{20+4*i}:{23+4*i}], v{VZ} offset:{st_off + 16*i}")
        g("s_waitcnt lgkmcnt(0)")
        g("""
        v_pk_add_f32 v[20:21], v[20:21], v[22:23]
        v_pk_add_f32 v[24:25], v[24:25], v[26:27]
        v_pk_add_f32 v[28:29], v[28:29], v[30:31]
        v_pk_add_f32 v[32:33], v[32:33], v[34:35]
        v_pk_add_f32 v[20:21], v[20:21], v[24:25]
        v_pk_add_f32 v[28:29], v[28:29], v[32:33]
        v_pk_add_f32 v[20:21], v[20:21], v[28:29]
        """)
        ln_scalar(20, 21, 22)

    wave_stats(13, L_ST2)
    g("v_sub_f32 v16, v13, v20")
    g("v_cvt_pk_bf16_f32 v16, v16, v16\nv_and_b32 v16, s42, v16")
    g("v_mul_f32 v16, v16, v21")
    g("v_cvt_pk_bf16_f32 v16, v16, v16\nv_and_b32 v16, s42, v16")
    wave_stats(16, L_ST3)
    TS(9, 'K')
    g("v_sub_f32 v16, v16, v20")
    g("v_cvt_pk_bf16_f32 v16, v16, v16\nv_and_b32 v16, s42, v16")
    g("v_mul_f32 v16, v16, v21")
    g("v_cvt_pk_bf16_f32 v16, v16, v16")
    g(f"v_and_b32 v17, 0x7fff, v16\nv_subrev_u32 v17, {EXP0 << 7}, v17")
    g("v_bfe_u32 v18, v16, 15, 1")
    g(f"s_movk_i32 s11, {NBIN*128}")
    g("v_cmp_gt_u32 vcc, s11, v17")
    g("v_mad_u32_u24 v18, v18, s11, v17")
    g("v_lshlrev_b32 v18, 1, v18")
    g("v_cndmask_b32 v18, 0, v18, vcc")
    g(f"ds_read_u16 v19, v18 offset:{L_TAB}")
    g("s_mov_b32 s12, 0xffff")
    g("s_waitcnt lgkmcnt(0)")
    g("v_cmp_ne_u32_e64 s[52:53], s12, v19")
    g("v_lshlrev_b32 v19, 16, v19\nv_add_f32 v19, v19, v13\nv_cvt_pk_bf16_f32 v19, v19, v19")
    g("s_and_b64 s[52:53], s[52:53], vcc")
    if force_fb:
        g("s_and_b32 s52, s52, 0xfffffff0")
    g("s_mov_b64 exec, s[52:53]")
    g("s_cbranch_execz L_nost")
    g(f"buffer_store_short v19, v{VCOL}, s[48:51], s43 offen")
    g("L_nost:")
    g("s_not_b64 exec, s[52:53]")
    g("s_cbranch_execz L_nomiss")
    g(f"ds_add_rtn_u32 v17, v{VFL}, v{VONE} offset:{F_MISS}")
    g(f"v_and_b32 v12, s42, v16\nv_or_b32 v12, v12, v{VCOL}")
    g("s_waitcnt lgkmcnt(0)")
    g("v_lshlrev_b32 v17, 3, v17")
    g(f"ds_write_b64 v17, v[12:13] offset:{L_MISS}")
    g("s_waitcnt lgkmcnt(0)")
    g("L_nomiss:")
    g("s_mov_b64 exec, -1")
    g("s_barrier")
    g("s_cmp_lg_u32 s2, 0\ns_cbranch_scc1 L_fin\ns_cmp_lg_u32 s3, 4\ns_cbranch_scc1 L_fin")
    g("s_add_u32 s94, s94, 1\nv_mov_b32 v4, s94")
    g("s_mov_b64 exec, 1")
    g(f"buffer_store_dword v4, v{VZ}, s[44:47], 0 offen offset:{WS_E}")
    g("L_fin:")
    if dbg:
        g("s_mov_b64 exec, -1")
        g("s_memrealtime s[92:93]")
        g("s_waitcnt lgkmcnt(0)")
        g(f"s_lshl_b32 s8, s2, 11\ns_lshl_b32 s9, s3, 7\ns_add_u32 s8, s8, s9\ns_add_u32 s8, s8, {WS_DBG:#x}")
        g("s_mov_b64 exec, 1")
        for i in range(0, 22, 2):
            g(f"v_mov_b32 v8, s{72+i}\nv_mov_b32 v9, s{73+i}")
            g(f"buffer_store_dwordx2 v[8:9], v{VZ}, s[44:47], s8 offen offset:{4*i}")
            g("s_nop 1")
    g("L_end:")
    g("s_endpgm")
    g('.section .rodata,"a"')
    g(".p2align 6")
    g(f".amdhsa_kernel {KN}")
    for d in ["next_free_vgpr 168", "next_free_sgpr 102", "accum_offset 168", "group_segment_fixed_size 0", "kernarg_size 104",
              "user_sgpr_count 2", "user_sgpr_kernarg_segment_ptr 1", "system_sgpr_workgroup_id_x 1", "float_denorm_mode_32 3"]:
        g(f".amdhsa_{d}")
    g(".end_amdhsa_kernel")
    open(path, "w").write(g.text())


if __name__ == "__main__":
    kw = eval("dict(%s)" % (sys.argv[2] if len(sys.argv) > 2 else ""))
    gen(sys.argv[1], **kw)
```

```python
import sys, struct, math
from asmlib import Gen

KN = "sequential_preLN__sliding_block_cached__mixer_token_mlp__decode_kernel"

def f2u(x):
    return struct.unpack("<I", struct.pack("<f", x))[0]

WS_E = 0
WS_T = 0x1000
WS_LSE = 0x2000
WS_TAB = 0x4000
WS_H2 = 0x10000
WS_O = 0x40000
OSTR = 1152
WS_QS = 0x90000
QSL = 0x80000
WS_DBG = 0x200000
L_WQT = 0
L_OP = 0
OPW = 2304
OPH = 576
L_GP = 9216
L_MISS = 11264
L_ST2 = 15360
L_ST3 = 15424
L_WOT = 16384
L_TAB = 16384
L_XN = 32768
L_QL = 33792
L_PL = 34816
L_ST = 43008
L_WT = 43200
L_FL = 43456
L_MW = 43520
L_KL = 57344
L_TOTAL = 57344 + 65536
F_NL, F_Q, F_MW, F_ST, F_K, F_P, F_MISS, F_CL, F_VI = 0, 4, 8, 12, 16, 32, 48, 52, 56
EXP0 = 108
NBIN = 24
NW = 12

LOG2E = 1.4426950408889634
K0 = -2.0 * math.sqrt(2.0 / math.pi) * LOG2E
K1 = K0 * 0.044715
ALPHA = -((-K1) ** (1.0 / 3.0))
BETA = K0 / ALPHA
HEADER = open("sequential_preLN__sliding_block_cached__mixer_token_mlp__decode.s.ref").read().split("; Override launch")[0]

names_c = ["start", "B0", "q pub", "mw rdy", "tabdone", "-", "-", "-", "-", "-", "end"]
names_k = ["start", "Kissued", "q got", "P rdy", "preB3", "B3", "O pub", "B5", "h2 done", "B6b", "end"]
names_v = ["start", "rounds", "B3", "wo in", "rnd1", "Vissued", "PVdone", "h1 done", "B5", "h2 done", "end"]

DPP6 = ["row_shr:1 row_mask:0xf bank_mask:0xf bound_ctrl:0", "row_shr:2 row_mask:0xf bank_mask:0xf bound_ctrl:0",
        "row_shr:4 row_mask:0xf bank_mask:0xf bound_ctrl:0", "row_shr:8 row_mask:0xf bank_mask:0xf bound_ctrl:0",
        "row_bcast:15 row_mask:0xa bank_mask:0xf", "row_bcast:31 row_mask:0xc bank_mask:0xf"]

VZ, VT, VONE, VFL, VFW = 160, 161, 162, 163, 164
VX, VB2, VH2, VCOL, VH2S, VGP, VST = 144, 145, 146, 147, 148, 149, 150
P0 = 152


def gen(path, dbg=False, kvflags="nt", wflags="nt", maxpoll=1 << 18, lim=4, limv=6, dry=False, ksig=13, gpos=11, wolast=True, strided=True, rotm=1, kneed=0, kearly=0, nloc=8, pretouch=True, force_fb=False, local=True, mwearly=True, slp=2, notab=False, nomw=False, g1=False):
    g = Gen()
    uid = [0]

    def TS(k, cond=None):
        if dbg:
            if cond:
                uid[0] += 1
                g(f"s_cmp_{'lt' if cond == 'V' else 'ge'}_u32 s3, 8\ns_cbranch_scc1 L_ts{uid[0]}")
            g(f"s_memrealtime s[{72+2*k}:{73+2*k}]")
            if cond:
                g(f"L_ts{uid[0]}:")

    def srd(d, lo, nbytes):
        g(f"s_mov_b32 s{d}, s{lo}\ns_and_b32 s{d+1}, s{lo+1}, 0xffff\ns_mov_b32 s{d+2}, {nbytes:#x}\ns_mov_b32 s{d+3}, 0x20000")

    def signal(off, vaddr=VFL):
        g("s_mov_b64 exec, 1")
        g(f"ds_add_u32 v{vaddr}, v{VONE} offset:{off}")
        g("s_mov_b64 exec, -1")

    def spin(off, target, sl=1, vaddr=VFL):
        uid[0] += 1
        u = uid[0]
        g("s_mov_b32 s71, 0")
        g(f"L_sp{u}:")
        g(f"ds_read_b32 v{VT}, v{vaddr} offset:{off}")
        g(f"s_add_u32 s71, s71, 1\ns_cmp_ge_u32 s71, {maxpoll*4}\ns_cbranch_scc1 L_spx{u}")
        g("s_waitcnt lgkmcnt(0)")
        g(f"v_readfirstlane_b32 s70, v{VT}")
        g(f"s_cmp_ge_u32 s70, {target}\ns_cbranch_scc1 L_spx{u}")
        g(f"s_sleep {sl}")
        g(f"s_branch L_sp{u}")
        g(f"L_spx{u}:")

    def tags():
        g("s_mul_i32 s92, s94, 0x85ebca6b\ns_add_u32 s92, s92, 0x7f4a7c15\ns_mul_i32 s93, s94, 0x9e3779b1\ns_add_u32 s93, s93, 0x1b873593")

    def ln_scalar(m, v, t):
        g(f"v_pk_mul_f32 v[{m}:{v}], v[{m}:{v}], s[8:9]")
        g(f"v_fma_f32 v{v}, -v{m}, v{m}, v{v}")
        g(f"v_max_f32 v{v}, 0, v{v}")
        g(f"v_cvt_pk_bf16_f32 v{t}, v{m}, v{v}")
        g(f"v_and_b32 v{v}, s42, v{t}")
        g(f"v_lshlrev_b32 v{m}, 16, v{t}")
        g(f"v_add_f32 v{v}, s10, v{v}")
        g(f"v_cvt_pk_bf16_f32 v{t}, v{v}, v{v}")
        g(f"v_and_b32 v{v}, s42, v{t}")
        g(f"v_sqrt_f32 v{v}, v{v}")
        g(f"v_cvt_pk_bf16_f32 v{t}, v{v}, v{v}")
        g(f"v_and_b32 v{v}, s42, v{t}")
        g(f"v_rcp_f32 v{v}, v{v}")

    g(HEADER.rstrip())
    g(f"; @launch grid=(256,1,1) block=({NW*64},1,1) lds={L_TOTAL}")
    g('.amdgcn_target "amdgcn-amd-amdhsa--gfx950"')
    g(".text")
    g(f".globl {KN}")
    g(".p2align 8")
    g(f".type {KN},@function")
    g(f"{KN}:")
    TS(0)
    g("""
    s_cmp_ge_u32 s2, 256
    s_cbranch_scc1 L_end
    s_load_dwordx16 s[16:31], s[0:1], 0
    s_load_dwordx8 s[32:39], s[0:1], 64
    s_load_dwordx2 s[40:41], s[0:1], 96
    v_lshrrev_b32 v4, 6, v0
    v_and_b32 v1, 63, v0
    v_readfirstlane_b32 s3, v4
    v_and_b32 v2, 15, v1
    v_lshrrev_b32 v3, 4, v1
    s_and_b32 s4, s2, 7
    s_lshr_b32 s5, s2, 3
    s_lshr_b32 s6, s5, 3
    s_and_b32 s7, s5, 7
    s_mov_b32 s42, 0xffff0000
    s_mov_b64 s[98:99], -1
    """)
    g(f"v_mov_b32 v{VFL}, {L_FL}\nv_mov_b32 v{VONE}, 1\nv_mov_b32 v{VZ}, 0")
    g(f"""
    s_and_b32 s15, s3, 3
    s_lshl_b32 s8, s6, 3
    s_add_u32 s8, s8, s4
    s_lshl_b32 s8, s8, 21
    s_lshl_b32 s9, s7, {12 if strided else 16}
    s_add_u32 s8, s8, s9
    s_add_u32 s8, s8, 0x180000
    s_add_u32 s9, s2, s5
    s_mul_i32 s9, s9, {rotm}
    s_add_u32 s9, s9, s15
    s_lshl_b32 s11, s15, 2
    v_add_u32 v{VFW}, s11, v{VFL}
    """)
    for i in range(4):
        g(f"s_add_u32 s{64+i}, s9, {4*i}\ns_and_b32 s{64+i}, s{64+i}, 15\ns_lshl_b32 s{64+i}, s{64+i}, {15 if strided else 12}\ns_add_u32 s{64+i}, s{64+i}, s8")
    g("s_waitcnt lgkmcnt(0)")
    srd(44, 40, 0x10000000)
    g(f"s_load_dword s94, s[40:41], {WS_E}")
    g("s_getreg_b32 s0, hwreg(HW_REG_XCC_ID)\ns_and_b32 s0, s0, 7")
    g("""
    s_cmp_ge_u32 s3, 8
    s_cbranch_scc1 L_V
    s_cmp_ge_u32 s3, 4
    s_cbranch_scc1 L_K
    """)
    srd(60, 34, 2)
    g(f"buffer_load_ushort v{VB2}, v{VZ}, s[60:63], 0 offen")
    g("s_cmp_lg_u32 s3, 0\ns_cbranch_scc1 L_C123")
    srd(48, 16, 4096)
    srd(52, 22, 0x400000)
    g("""
    v_and_b32 v4, 3, v1
    v_lshlrev_b32 v5, 10, v4
    v_lshrrev_b32 v6, 2, v1
    v_lshl_add_u32 v6, v6, 6, v5
    """)
    for i in range(4):
        g(f"buffer_load_dwordx4 v[{16+4*i}:{19+4*i}], v6, s[48:51], 0 offen offset:{16*i}")
    g("""
    v_lshrrev_b32 v7, 2, v2
    v_lshl_add_u32 v5, v7, 6, v5
    v_lshl_add_u32 v5, v3, 3, v5
    s_lshl_b32 s8, s6, 8
    buffer_load_dwordx2 v[32:33], v5, s[48:51], s8 offen
    buffer_load_dwordx2 v[34:35], v5, s[48:51], s8 offen offset:32
    v_lshrrev_b32 v6, 3, v1
    v_lshlrev_b32 v6, 13, v6
    v_and_b32 v8, 7, v1
    v_lshlrev_b32 v9, 1, v3
    v_xor_b32 v8, v8, v9
    v_lshl_add_u32 v6, v8, 4, v6
    s_lshl_b32 s8, s6, 20
    s_lshl_b32 s9, s4, 10
    s_add_u32 s8, s8, s9
    s_lshl_b32 s9, s7, 7
    s_add_u32 s8, s8, s9
    """)
    for i in range(16):
        g(f"s_mov_b32 m0, {L_WQT + 1024*i}")
        g(f"buffer_load_dwordx4 v6, s[52:55], s8 offen {wflags} lds")
        if i < 15:
            g("s_add_u32 s8, s8, 0x10000")
    g("s_barrier")
    TS(1)
    g("s_branch L_Q2")

    g("L_K:")
    srd(48, 18, 0x4000000)
    g("v_xor_b32 v4, v2, v3\nv_lshlrev_b32 v7, 8, v3\nv_lshlrev_b32 v9, 8, v2")
    g(f"s_lshl_b32 s63, s15, 14\ns_add_u32 s63, s63, {L_KL}\nv_add_u32 v9, s63, v9")
    for u in range(4):
        g(f"v_xor_b32 v8, {4*u}, v4\nv_lshl_add_u32 v{132+u}, v8, 4, v7\nv_lshl_add_u32 v{136+u}, v8, 4, v9")
    g("""
    s_lshl_b32 s8, s4, 16
    s_lshl_b32 s9, s6, 14
    s_add_u32 s8, s8, s9
    s_lshl_b32 s9, s15, 10
    s_add_u32 s8, s8, s9
    """)
    g(f"s_add_u32 s12, s8, {WS_QS:#x}\ns_add_u32 s13, s12, 0x1000\ns_add_u32 s14, s12, 0x2000\ns_add_u32 s43, s12, 0x3000")
    g(f"s_lshl_b32 s68, s15, 9\ns_add_u32 s68, s68, {WS_T:#x}")
    g(f"v_lshlrev_b32 v5, 4, v1\nv_add_u32 v5, {QSL:#x}, v5\nv_lshlrev_b32 v6, 3, v1")
    g("s_setprio 2")
    if kearly == 0: g("s_barrier")
    KR, QF, SA, PR, TM = 16, 80, 96, 112, 120
    qso = ["s12", "s13", "s14", "s43"] if not g1 else ["s12", "s12", "s12", "s12"]

    def kload(n):
        T, t = n >> 2, n & 3
        if t == 0:
            g(f"s_add_u32 m0, s63, {4096*T}")
        g(f"buffer_load_dwordx4 v{132+t}, s[48:51], s{64+T} offen offset:{1024*t} {kvflags} lds")
    for n in range(0, 16):
        if n == gpos:
            for ks in range(4):
                g(f"buffer_load_dwordx4 v[{QF+4*ks}:{QF+4*ks+3}], v5, s[44:47], {qso[ks]} offen sc1")
        if n >= lim:
            extra = 4 if (n >= gpos and n - lim < gpos) else 0
            g(f"s_waitcnt vmcnt({lim-1+extra})")
        kload(n)
        if kearly and n == kearly - 1: g("s_barrier")
        if n == ksig:
            signal(F_K, VFW if not kneed else VFL)
    if gpos >= 16:
        for ks in range(4):
            g(f"buffer_load_dwordx4 v[{QF+4*ks}:{QF+4*ks+3}], v5, s[44:47], {qso[ks]} offen sc1")
    TS(1)
    g("s_waitcnt lgkmcnt(0)")
    tags()
    g("s_mov_b32 s71, 0")
    g(f"s_waitcnt vmcnt({max(16-gpos,0)})")
    g("s_branch L_qchk")
    g("L_qpoll:")
    g(f"s_cmp_lg_u32 s71, {nloc}\ns_cbranch_scc1 L_qnl")
    g("v_lshlrev_b32 v5, 4, v1")
    g("L_qnl:")
    for ks in range(4):
        g(f"s_mov_b64 exec, s[{52+2*ks}:{53+2*ks}]")
        g(f"s_cbranch_execz L_qs{ks}")
        g(f"buffer_load_dwordx4 v[{QF+4*ks}:{QF+4*ks+3}], v5, s[44:47], {qso[ks]} offen sc1")
        g(f"L_qs{ks}:")
    g("s_mov_b64 exec, -1")
    g("s_waitcnt vmcnt(0)")
    g("L_qchk:")
    for ks in range(4):
        r = QF + 4 * ks
        g(f"v_xor_b32 v8, v{r+2}, v{r+1}")
        g(f"v_xor_b32 v9, v{r+3}, v{r}")
        g("v_xor_b32 v8, s92, v8")
        g(f"v_subrev_u32 v{128+ks}, s93, v9")
        g(f"v_lshrrev_b32 v9, 3, v{128+ks}")
        g("v_or_b32 v8, v8, v9")
        g(f"v_cmp_ne_u32_e64 s[{52+2*ks}:{53+2*ks}], 0, v8")
    g(f"s_add_u32 s71, s71, 1\ns_cmp_ge_u32 s71, {maxpoll}\ns_cbranch_scc1 L_qdone")
    g("s_or_b64 s[8:9], s[52:53], s[54:55]\ns_or_b64 s[10:11], s[56:57], s[58:59]\ns_or_b64 s[8:9], s[8:9], s[10:11]")
    g("s_cbranch_scc1 L_qpoll")
    g("L_qdone:")
    g("v_xor_b32 v128, s0, v128\nv_xor_b32 v129, s0, v129\nv_xor_b32 v130, s0, v130\nv_xor_b32 v131, s0, v131")
    g("v_or3_b32 v128, v128, v129, v130\nv_or_b32 v128, v128, v131")
    g("v_cmp_ne_u32 vcc, 0, v128")
    g("s_cmp_eq_u64 vcc, 0\ns_cbranch_scc1 L_alllocal")
    signal(F_NL)
    g("L_alllocal:")
    g(f"v_pk_add_f32 v[{QF}:{QF+1}], v[{QF}:{QF+1}], v[{QF+4}:{QF+5}]")
    g(f"v_pk_add_f32 v[{QF+8}:{QF+9}], v[{QF+8}:{QF+9}], v[{QF+12}:{QF+13}]")
    g(f"v_pk_add_f32 v[{QF}:{QF+1}], v[{QF}:{QF+1}], v[{QF+8}:{QF+9}]")
    g(f"v_cvt_pk_bf16_f32 v8, v{QF}, v{QF+1}")
    g("v_lshlrev_b32 v9, 2, v1\ns_lshl_b32 s8, s15, 8\nv_add_u32 v9, s8, v9")
    g(f"ds_write_b32 v9, v8 offset:{L_QL}")
    signal(F_Q)
    g("""
    v_and_b32 v10, 3, v2
    v_lshlrev_b32 v7, 8, v10
    v_lshl_add_u32 v7, v3, 4, v7
    v_lshlrev_b32 v12, 5, v10
    s_lshl_b32 s11, s15, 3
    v_add_u32 v13, s11, v12
    v_lshlrev_b32 v14, 4, v1
    s_lshl_b32 s11, s15, 11
    v_add_u32 v14, s11, v14
    """)
    spin(F_Q, 4)
    TS(2)
    for t in range(4):
        g(f"ds_read_b128 v[{QF+4*t}:{QF+4*t+3}], v7 offset:{L_QL + 64*t}")
    SC = 128 ** -0.5
    g(f"s_mov_b32 s8, {f2u(SC):#x}\ns_mov_b32 s9, {f2u(SC):#x}\ns_mov_b32 s10, {f2u(LOG2E):#x}")
    g("s_waitcnt lgkmcnt(0)")
    for T in range(4):
        g(f"s_waitcnt vmcnt({12-4*T})")
        for t in range(4):
            r = KR + 16 * T + 4 * t
            g(f"ds_read_b128 v[{r}:{r+3}], v{136+t} offset:{4096*T}")
    g("s_waitcnt lgkmcnt(0)")
    for T in range(4):
        for t in range(4):
            r = KR + 16 * T + 4 * t
            c = "0" if t == 0 else f"v[{SA+4*T}:{SA+4*T+3}]"
            g(f"v_mfma_f32_16x16x32_bf16 v[{SA+4*T}:{SA+4*T+3}], v[{r}:{r+3}], v[{QF+4*t}:{QF+4*t+3}], {c}")
    for rep in range(2):
        for p in range(8):
            a = SA + 2 * p
            g(f"v_cvt_pk_bf16_f32 v{TM+p}, v{a}, v{a+1}")
        for p in range(8):
            a = SA + 2 * p
            g(f"v_lshlrev_b32 v{a}, 16, v{TM+p}")
            g(f"v_and_b32 v{a+1}, s42, v{TM+p}")
        if rep == 0:
            for p in range(8):
                a = SA + 2 * p
                g(f"v_pk_mul_f32 v[{a}:{a+1}], v[{a}:{a+1}], s[8:9]")
    g(f"v_max3_f32 v8, v{SA}, v{SA+1}, v{SA+2}")
    g(f"v_max3_f32 v9, v{SA+3}, v{SA+4}, v{SA+5}")
    g(f"v_max3_f32 v10, v{SA+6}, v{SA+7}, v{SA+8}")
    g(f"v_max3_f32 v11, v{SA+9}, v{SA+10}, v{SA+11}")
    g(f"v_max3_f32 v8, v8, v{SA+12}, v{SA+13}")
    g(f"v_max3_f32 v9, v9, v{SA+14}, v{SA+15}")
    g("v_max3_f32 v8, v8, v9, v10\nv_max_f32 v8, v8, v11")
    g("v_mov_b32 v9, v8\nv_permlane32_swap_b32 v8, v9\nv_max_f32 v8, v8, v9")
    g("v_mov_b32 v9, v8\nv_permlane16_swap_b32 v8, v9\nv_max_f32 v8, v8, v9")
    g("v_mul_f32 v10, s10, v8")
    for e in range(16):
        g(f"v_fma_f32 v{SA+e}, v{SA+e}, s10, -v10")
    for e in range(16):
        g(f"v_exp_f32 v{SA+e}, v{SA+e}")
    for p in range(8):
        g(f"v_cvt_pk_bf16_f32 v{PR+p}, v{SA+2*p}, v{SA+2*p+1}")
    g(f"ds_write_b128 v14, v[{PR}:{PR+3}] offset:{L_PL}")
    g(f"ds_write_b128 v14, v[{PR+4}:{PR+7}] offset:{L_PL+1024}")
    signal(F_P, VFW)
    for p in range(4):
        g(f"v_pk_add_f32 v[{SA+2*p}:{SA+2*p+1}], v[{SA+2*p}:{SA+2*p+1}], v[{SA+8+2*p}:{SA+9+2*p}]")
    for p in range(2):
        g(f"v_pk_add_f32 v[{SA+2*p}:{SA+2*p+1}], v[{SA+2*p}:{SA+2*p+1}], v[{SA+4+2*p}:{SA+5+2*p}]")
    g(f"v_pk_add_f32 v[{SA}:{SA+1}], v[{SA}:{SA+1}], v[{SA+2}:{SA+3}]")
    g(f"v_add_f32 v9, v{SA}, v{SA+1}")
    g("v_mov_b32 v11, v9\nv_permlane32_swap_b32 v9, v11\nv_add_f32 v9, v9, v11")
    g("v_mov_b32 v11, v9\nv_permlane16_swap_b32 v9, v11\nv_add_f32 v9, v9, v11")
    g("s_mov_b64 exec, 15")
    g(f"ds_write_b64 v13, v[8:9] offset:{L_ST}")
    g("s_mov_b64 exec, -1")
    signal(F_ST)
    TS(3)
    spin(F_ST, 4)
    FA = P0
    g("s_lshl_b32 s11, s15, 5\nv_mov_b32 v12, s11")
    g(f"ds_read_b128 v[16:19], v12 offset:{L_ST}")
    g(f"ds_read_b128 v[20:23], v12 offset:{L_ST+16}")
    g(f"ds_read_b32 v27, v{VFL} offset:{F_NL}")
    g("s_waitcnt lgkmcnt(0)")
    g("v_readfirstlane_b32 s1, v27")
    g("v_max3_f32 v24, v16, v18, v20\nv_max_f32 v24, v24, v22")
    for i in range(4):
        g(f"v_sub_f32 v{FA+i}, v{16+2*i}, v24")
        g(f"v_mul_f32 v{FA+i}, s10, v{FA+i}")
        g(f"v_exp_f32 v{FA+i}, v{FA+i}")
    g(f"v_mul_f32 v25, v{FA}, v17")
    for i in range(1, 4):
        g(f"v_fmac_f32 v25, v{FA+i}, v{17+2*i}")
    g("v_rcp_f32 v26, v25\nv_log_f32 v25, v25")
    for i in range(4):
        g(f"v_mul_f32 v{FA+i}, v{FA+i}, v26")
    VOPR, VL4, VLSE = P0 + 4, P0 + 5, P0 + 6
    g(f"v_fma_f32 v25, v24, s10, v25\nv_min_u32 v{VLSE}, -2, v25")
    g(f"v_lshlrev_b32 v{VOPR}, 3, v1\ns_mul_i32 s11, s15, {OPH}\nv_add_u32 v{VOPR}, s11, v{VOPR}")
    g(f"v_lshlrev_b32 v{VL4}, 2, v2\nv_lshl_add_u32 v{VL4}, v3, 11, v{VL4}")
    g("s_cmp_ge_u32 s2, 4\ns_cbranch_scc1 L_tdone")
    g("s_mov_b32 s71, 0")
    g("L_tpoll:")
    g("buffer_load_dwordx2 v[128:129], v6, s[44:47], s68 offen sc1")
    g("s_waitcnt vmcnt(0)")
    g("v_xor_b32 v16, s92, v128\nv_xor_b32 v17, s93, v129\nv_or_b32 v16, v16, v17")
    g("v_cmp_ne_u32 vcc, 0, v16")
    g(f"s_add_u32 s71, s71, 1\ns_cmp_ge_u32 s71, {maxpoll}\ns_cbranch_scc1 L_tdone")
    g("s_cmp_lg_u64 vcc, 0\ns_cbranch_scc1 L_tpoll")
    g("L_tdone:")
    g(f"s_lshl_b32 s11, s4, 15\ns_lshr_b32 s13, s7, 2\ns_lshl_b32 s13, s13, 10\ns_add_u32 s11, s11, s13\ns_lshl_b32 s13, s6, 8\ns_add_u32 s11, s11, s13\ns_and_b32 s13, s7, 3\ns_lshl_b32 s13, s13, 6\ns_add_u32 s11, s11, s13\ns_add_u32 s11, s11, {WS_O:#x}")
    g("s_lshl_b32 s13, s15, 13\ns_add_u32 s68, s11, s13")
    g(f"s_lshl_b32 s62, s4, 9\ns_lshl_b32 s13, s6, 5\ns_add_u32 s62, s62, s13\ns_and_b32 s13, s7, 3\ns_lshl_b32 s13, s13, 3\ns_add_u32 s62, s62, s13\ns_lshr_b32 s13, s7, 2\ns_lshl_b32 s13, s13, 2\ns_add_u32 s62, s62, s13\ns_add_u32 s62, s62, {WS_LSE:#x}")
    g("s_lshl_b32 s13, s15, 7\ns_add_u32 s62, s62, s13")
    g("s_call_b64 s[100:101], L_fsetup")
    g("s_mov_b64 exec, 1")
    if local:
        g("s_cmp_lg_u32 s1, 0\ns_cbranch_scc1 L_lstg")
        g(f"buffer_store_dword v{VLSE}, v{VZ}, s[44:47], s62 offen")
        g("s_branch L_lsd")
        g("L_lstg:")
    g(f"buffer_store_dword v{VLSE}, v{VZ}, s[44:47], s62 offen sc1")
    g("L_lsd:")
    g("s_mov_b64 exec, -1")
    g("s_waitcnt lgkmcnt(0)")
    TS(4)
    g("s_barrier")
    TS(5)
    for w in range(4):
        g(f"ds_read_b64 v[{16+2*w}:{17+2*w}], v{VOPR} offset:{L_OP + OPW*w}")
    g("s_waitcnt lgkmcnt(0)")
    g(f"v_pk_mul_f32 v[16:17], v[16:17], v[{FA}:{FA+1}] op_sel:[0,0] op_sel_hi:[1,0]")
    g(f"v_pk_mul_f32 v[20:21], v[20:21], v[{FA+2}:{FA+3}] op_sel:[0,0] op_sel_hi:[1,0]")
    g(f"v_pk_fma_f32 v[16:17], v[18:19], v[{FA}:{FA+1}], v[16:17] op_sel:[0,1,0] op_sel_hi:[1,1,1]")
    g(f"v_pk_fma_f32 v[20:21], v[22:23], v[{FA+2}:{FA+3}], v[20:21] op_sel:[0,1,0] op_sel_hi:[1,1,1]")
    g("v_pk_add_f32 v[16:17], v[16:17], v[20:21]")
    g("v_cvt_pk_bf16_f32 v16, v16, v17\nv_min_u32 v16, -2, v16")
    if local:
        g("s_cmp_lg_u32 s1, 0\ns_cbranch_scc1 L_ostg")
        g(f"buffer_store_dword v16, v{VL4}, s[44:47], s68 offen")
        TS(6)
        g("s_branch L_B5")
        g("L_ostg:")
    g(f"buffer_store_dword v16, v{VL4}, s[44:47], s68 offen sc1")
    TS(6)
    g("s_branch L_B5")

    g("L_fsetup:")
    g(f"""
    s_sub_u32 s63, s3, 4
    s_lshr_b32 s13, s5, 4
    s_lshl_b32 s14, s4, 1
    s_add_u32 s13, s13, s14
    s_lshl_b32 s13, s13, 11
    s_and_b32 s14, s5, 15
    s_lshl_b32 s14, s14, 7
    s_add_u32 s13, s13, s14
    v_lshlrev_b32 v{VH2S}, 15, v3
    v_lshl_add_u32 v{VH2S}, v2, 3, v{VH2S}
    v_lshlrev_b32 v{VGP}, 3, v1
    """)
    g(f"s_add_u32 s69, s13, {WS_H2:#x}")
    srd(56, 16, 4096)
    g(f"""
    v_and_b32 v8, 1, v3
    v_lshlrev_b32 v8, 1, v8
    v_lshrrev_b32 v9, 1, v3
    v_or_b32 v8, v8, v9
    v_lshl_add_u32 v8, v2, 2, v8
    s_lshl_b32 s8, s63, 6
    v_add_u32 v8, s8, v8
    v_lshlrev_b32 v{VCOL}, 1, v8
    s_and_b32 s8, s2, 3
    s_lshl_b32 s43, s8, 10
    v_lshlrev_b32 v{VH2}, 11, v3
    v_lshl_add_u32 v{VH2}, v2, 4, v{VH2}
    s_lshl_b32 s11, s63, 3
    v_lshrrev_b32 v{VST}, 5, v1
    v_lshlrev_b32 v{VST}, 2, v{VST}
    v_add_u32 v{VST}, s11, v{VST}
    s_cmp_ge_u32 s2, 4
    s_cbranch_scc1 L_fs1
    buffer_load_ushort v{VX}, v{VCOL}, s[56:59], s43 offen
    L_fs1:
    s_setpc_b64 s[100:101]
    """)

    g("L_Q2:")
    g("s_setprio 1")
    g("s_waitcnt vmcnt(18)")
    g("s_mov_b32 s8, 0x3f803f80\nv_mov_b32 v10, 0\nv_mov_b32 v11, 0\nv_mov_b32 v12, 0\nv_mov_b32 v13, 0")
    for i in range(0, 16, 2):
        g(f"v_dot2_f32_bf16 v10, v{16+i}, s8, v10")
        g(f"v_dot2_f32_bf16 v11, v{16+i}, v{16+i}, v11")
        g(f"v_dot2_f32_bf16 v12, v{17+i}, s8, v12")
        g(f"v_dot2_f32_bf16 v13, v{17+i}, v{17+i}, v13")
    g("s_nop 2")
    g("v_pk_add_f32 v[10:11], v[10:11], v[12:13]")
    for m in ("row_ror:4", "row_ror:8"):
        g(f"v_add_f32_dpp v10, v10, v10 {m} row_mask:0xf bank_mask:0xf")
        g(f"v_add_f32_dpp v11, v11, v11 {m} row_mask:0xf bank_mask:0xf")
    for sw in ("v_permlane32_swap_b32", "v_permlane16_swap_b32"):
        g("v_mov_b32 v12, v10\nv_mov_b32 v13, v11")
        g(f"{sw} v10, v12\n{sw} v11, v13")
        g("v_pk_add_f32 v[10:11], v[10:11], v[12:13]")
    g(f"s_mov_b32 s8, {f2u(1.0/512):#x}\ns_mov_b32 s9, {f2u(1.0/512):#x}\ns_mov_b32 s10, {f2u(1e-5):#x}")
    ln_scalar(10, 11, 12)
    g("s_waitcnt vmcnt(16)")
    for d in range(4):
        a = 16 + 2 * d
        g(f"v_lshlrev_b32 v{a}, 16, v{32+d}\nv_and_b32 v{a+1}, s42, v{32+d}")
    for d in range(4):
        a = 16 + 2 * d
        g(f"v_pk_add_f32 v[{a}:{a+1}], v[{a}:{a+1}], v[10:11] op_sel:[0,0] op_sel_hi:[1,0] neg_lo:[0,1] neg_hi:[0,1]")
    for d in range(4):
        a = 16 + 2 * d
        g(f"v_cvt_pk_bf16_f32 v{32+d}, v{a}, v{a+1}")
    for d in range(4):
        a = 16 + 2 * d
        g(f"v_lshlrev_b32 v{a}, 16, v{32+d}\nv_and_b32 v{a+1}, s42, v{32+d}")
    for d in range(4):
        a = 16 + 2 * d
        g(f"v_pk_mul_f32 v[{a}:{a+1}], v[{a}:{a+1}], v[10:11] op_sel:[0,1] op_sel_hi:[1,1]")
    for d in range(4):
        a = 16 + 2 * d
        g(f"v_cvt_pk_bf16_f32 v{32+d}, v{a}, v{a+1}")
    g("""
    v_lshlrev_b32 v8, 8, v4
    v_lshl_add_u32 v8, v3, 4, v8
    v_lshl_add_u32 v9, v7, 6, v8
    """)
    g(f"ds_write_b128 v9, v[32:35] offset:{L_XN}")
    for kb in range(4):
        g(f"ds_read_b128 v[{36+4*kb}:{39+4*kb}], v8 offset:{L_XN + 64*kb}")
    g("""
    v_lshrrev_b32 v9, 2, v2
    v_lshl_add_u32 v9, v3, 2, v9
    v_bfe_u32 v14, v9, 1, 2
    v_lshlrev_b32 v9, 7, v9
    v_lshl_add_u32 v9, v4, 3, v9
    """)
    for mt in range(4):
        g(f"v_xor_b32 v15, {mt}, v14")
        g(f"v_lshl_add_u32 v{10+mt}, v15, 5, v9")
    g("s_waitcnt lgkmcnt(0)")
    tags()
    AF = 52
    for kb in range(4):
        g(f"s_waitcnt vmcnt({12-4*kb})")
        for mt in range(4):
            r = AF + 16 * kb + 4 * mt
            g(f"ds_read_b64_tr_b16 v[{r}:{r+1}], v{10+mt} offset:{L_WQT + 4096*kb}")
            g(f"ds_read_b64_tr_b16 v[{r+2}:{r+3}], v{10+mt} offset:{L_WQT + 4096*kb + 2048}")
    for z in (1, 2, 3):
        g(f"v_cmp_eq_u32_e64 s[{50+2*z}:{51+2*z}], {z}, v7")
    g("""
    v_lshlrev_b32 v8, 14, v4
    v_lshl_add_u32 v8, v7, 7, v8
    v_lshl_add_u32 v8, v3, 5, v8
    s_lshl_b32 s8, s4, 16
    s_lshl_b32 s9, s6, 12
    s_add_u32 s8, s8, s9
    s_lshl_b32 s9, s7, 9
    s_add_u32 s8, s8, s9
    """)
    g(f"s_add_u32 s8, s8, {WS_QS:#x}")
    g("s_add_u32 s93, s93, s0")
    g("s_waitcnt lgkmcnt(0)")
    QD = 116
    for kb in range(4):
        for mt in range(4):
            r = AF + 16 * kb + 4 * mt
            c = "0" if kb == 0 else f"v[{QD+4*mt}:{QD+4*mt+3}]"
            g(f"v_mfma_f32_16x16x32_bf16 v[{QD+4*mt}:{QD+4*mt+3}], v[{r}:{r+3}], v[{36+4*kb}:{39+4*kb}], {c}")
    for z in (1, 2, 3):
        for i in range(4):
            g(f"v_cndmask_b32_e64 v{QD+i}, v{QD+i}, v{QD+4*z+i}, s[{50+2*z}:{51+2*z}]")
    spin(F_CL, 1)
    g(f"""
    v_mov_b32 v136, v{QD}
    v_mov_b32 v137, v{QD+1}
    v_xor_b32 v138, s92, v{QD+1}
    v_xor_b32 v139, s93, v{QD}
    v_mov_b32 v140, v{QD+2}
    v_mov_b32 v141, v{QD+3}
    v_xor_b32 v142, s92, v{QD+3}
    v_xor_b32 v143, s93, v{QD+2}
    s_add_u32 s9, s8, {QSL:#x}
    s_setprio 3
    buffer_store_dwordx4 v[136:139], v8, s[44:47], s9 offen
    buffer_store_dwordx4 v[140:143], v8, s[44:47], s9 offen offset:16
    buffer_store_dwordx4 v[136:139], v8, s[44:47], s8 offen sc1
    buffer_store_dwordx4 v[140:143], v8, s[44:47], s8 offen offset:16 sc1
    s_setprio 0
    """)
    TS(2)
    g("s_branch L_C")

    g("L_C123:")
    g("s_cmp_lg_u32 s3, 1\ns_cbranch_scc1 L_C23")
    g("v_lshlrev_b32 v4, 2, v2")
    g(f"ds_write_b32 v4, v{VZ} offset:{L_FL}")
    srd(48, 28, 3584)
    srd(52, 30, 3584)
    srd(56, 32, 3584)
    g("v_lshlrev_b32 v6, 4, v1")
    g("s_waitcnt lgkmcnt(0)")
    if not mwearly: g("s_barrier")
    for a in range(3):
        g(f"s_mov_b32 m0, {L_MW + 4096*a}")
        for i in range(4):
            if not nomw: g(f"buffer_load_dwordx4 v6, s[{48+4*a}:{51+4*a}], 0 offen offset:{1024*i} lds")
    if mwearly: g("s_barrier")
    g("s_waitcnt vmcnt(0)")
    signal(F_MW)
    g("s_branch L_C")
    g("L_C23:")
    g("s_cmp_eq_u32 s3, 2\ns_cbranch_scc1 L_C2")
    g("s_barrier")
    g("s_waitcnt vmcnt(0)")
    g("s_branch L_C")
    g("L_C2:")
    g("""
    s_lshl_b32 s11, s4, 5
    s_add_u32 s11, s11, s5
    v_mov_b32 v8, -1
    v_mov_b32 v9, -1
    v_mov_b32 v10, -1
    v_mov_b32 v11, -1
    v_lshlrev_b32 v4, 4, v1
    """)
    g(f"s_lshl_b32 s11, s4, 15\ns_lshr_b32 s13, s7, 2\ns_lshl_b32 s13, s13, 10\ns_add_u32 s11, s11, s13\ns_lshl_b32 s13, s6, 8\ns_add_u32 s11, s11, s13\ns_and_b32 s13, s7, 3\ns_lshl_b32 s13, s13, 6\ns_add_u32 s11, s11, s13\ns_add_u32 s11, s11, {WS_O:#x}")
    g(f"s_lshl_b32 s62, s4, 9\ns_lshl_b32 s13, s6, 5\ns_add_u32 s62, s62, s13\ns_and_b32 s13, s7, 3\ns_lshl_b32 s13, s13, 3\ns_add_u32 s62, s62, s13\ns_lshr_b32 s13, s7, 2\ns_lshl_b32 s13, s13, 2\ns_add_u32 s62, s62, s13\ns_add_u32 s62, s62, {WS_LSE:#x}")
    g("s_mov_b32 s12, s11")
    g("v_lshrrev_b32 v12, 2, v1\nv_lshlrev_b32 v12, 11, v12\nv_and_b32 v13, 3, v1\nv_lshl_add_u32 v12, v13, 4, v12\nv_lshlrev_b32 v13, 7, v1")
    g("buffer_store_dwordx4 v[8:11], v12, s[44:47], s12 offen sc1")
    g("""
    v_lshlrev_b32 v5, 15, v3
    v_lshl_add_u32 v5, v2, 3, v5
    s_lshr_b32 s13, s5, 4
    s_lshl_b32 s14, s4, 1
    s_add_u32 s13, s13, s14
    s_lshl_b32 s13, s13, 11
    s_and_b32 s14, s5, 15
    s_lshl_b32 s14, s14, 7
    s_add_u32 s13, s13, s14
    """)
    g(f"s_add_u32 s13, s13, {WS_H2:#x}")
    g("buffer_store_dwordx2 v[8:9], v5, s[44:47], s13 offen sc1")
    g("s_mov_b64 exec, 15")
    g("buffer_store_dword v8, v13, s[44:47], s62 offen sc1")
    g(f"s_mul_i32 s14, s2, 48\ns_add_u32 s14, s14, {WS_TAB:#x}")
    g("s_mov_b64 exec, 7")
    g("buffer_store_dwordx4 v[8:11], v4, s[44:47], s14 offen sc1")
    g("s_mov_b64 exec, -1")
    g("s_barrier")
    g("s_waitcnt vmcnt(0) lgkmcnt(0)")
    tags()
    signal(F_CL)
    if pretouch:
        g("s_setprio 3")
        g("buffer_load_dwordx4 v[152:155], v12, s[44:47], s12 offen sc1")
    g("v_mov_b32 v8, s92\nv_mov_b32 v9, s93")
    g(f"s_lshl_b32 s9, s2, 3\ns_add_u32 s9, s9, {WS_T:#x}")
    g("s_mov_b64 exec, 1")
    g(f"buffer_store_dwordx2 v[8:9], v{VZ}, s[44:47], s9 offen sc1")
    g("s_mov_b64 exec, -1")
    g("s_setprio 0")
    signal(F_MW)

    MWB, EH, EA, ES = 16, 100, 102, 108
    g("L_C:")
    spin(F_MW, 2)
    TS(3)
    if dbg: g("s_memtime s[82:83]")
    g(f"v_lshlrev_b32 v4, 2, v1")
    for a in range(3):
        for k in range(14):
            g(f"ds_read_b32 v{MWB+28*a+2*k+1}, v4 offset:{L_MW + 4096*a + 256*k}")
    g(f"s_mov_b32 s8, {f2u(ALPHA):#x}\ns_mov_b32 s9, {f2u(ALPHA):#x}\ns_mov_b32 s10, {f2u(1.0/ALPHA):#x}\ns_mov_b32 s11, {f2u(1.0/ALPHA):#x}")
    g("s_waitcnt lgkmcnt(0)")
    for a in range(3):
        for k in range(14):
            r = MWB + 28 * a + 2 * k
            g(f"v_lshlrev_b32 v{r}, 16, v{r+1}")
            g(f"v_and_b32 v{r+1}, s42, v{r+1}")
    for a in range(3):
        for k in range(14):
            r = MWB + 28 * a + 2 * k
            g(f"v_pk_mul_f32 v[{r}:{r+1}], v[{r}:{r+1}], s[{8 if a < 2 else 10}:{9 if a < 2 else 11}]")
    g(f"s_mov_b32 s62, {f2u(BETA):#x}\ns_mov_b32 s63, {f2u(BETA):#x}")
    g("s_mul_i32 s95, s2, 24\ns_mul_i32 s96, s3, 6\ns_add_u32 s95, s95, s96\ns_add_u32 s96, s95, 6")
    g(f"v_lshlrev_b32 v{VB2}, 16, v{VB2}")
    g("L_tab1:")
    g(f"s_cmp_ge_u32 s95, {NBIN*128}\ns_cselect_b32 s97, {0x8000 - NBIN*128}, 0")
    g(f"s_add_u32 s97, s97, s95\ns_add_u32 s97, s97, {EXP0 << 7}\ns_lshl_b32 s97, s97, 16\nv_mov_b32 v{EH}, s97")
    if not notab: g("s_call_b64 s[100:101], L_eval")
    g(f"v_alignbit_b32 v136, v137, v136, 16\nv_alignbit_b32 v137, v138, v137, 16\nv_alignbit_b32 v138, v{EA}, v138, 16")
    g("s_add_u32 s95, s95, 1\ns_cmp_lt_u32 s95, s96\ns_cbranch_scc1 L_tab1")
    g(f"s_lshl_b32 s97, s96, 1\ns_add_u32 s97, s97, {WS_TAB - 12:#x}")
    g("s_mov_b32 exec_lo, 0\ns_mov_b32 exec_hi, 0x80000000")
    g("s_setprio 3")
    g(f"buffer_store_dwordx3 v[136:138], v{VZ}, s[44:47], s97 offen sc1")
    g("s_mov_b64 exec, -1")
    TS(4)
    if dbg: g("s_memtime s[84:85]")
    g("s_cmp_ge_u32 s2, 4\ns_cbranch_scc1 L_fin")
    if dry:
        g("s_cmp_lg_u32 s3, 0\ns_cbranch_scc1 L_dry_ret")
        g("s_mov_b64 s[98:99], 0\ns_mov_b64 exec, 0\ns_branch L_fseg")
    g("L_dry_ret:")
    g("s_mov_b64 s[98:99], -1\ns_mov_b64 exec, -1")
    srd(48, 36, 4096)
    g(f"v_lshlrev_b32 v4, 4, v1\ns_mul_i32 s12, s3, 3072\ns_add_u32 m0, s12, {L_TAB}\ns_add_u32 s12, s12, {WS_TAB:#x}")
    g("s_barrier\ns_barrier")
    g(f"s_mov_b32 s71, 0\ns_mul_i32 s13, s3, 3072\nv_add_u32 v5, s13, v4")
    g("L_tfetch:")
    for i in range(3):
        g(f"buffer_load_dwordx4 v4, s[44:47], s12 offen offset:{1024*i} sc1 lds")
    g("s_waitcnt vmcnt(0)")
    for i in range(3):
        g(f"ds_read_b128 v[{108+4*i}:{111+4*i}], v5 offset:{L_TAB + 1024*i}")
    g("s_waitcnt lgkmcnt(0)")
    g("v_max3_u32 v108, v108, v109, v110\nv_max3_u32 v111, v111, v112, v113\nv_max3_u32 v114, v114, v115, v116\nv_max3_u32 v117, v117, v118, v119")
    g("v_max3_u32 v108, v108, v111, v114\nv_max_u32 v108, v108, v117")
    g("v_cmp_eq_u32 vcc, -1, v108")
    g("s_add_u32 s71, s71, 1\ns_cmp_ge_u32 s71, 4\ns_cbranch_scc1 L_tfd")
    g("s_cmp_lg_u64 vcc, 0\ns_cbranch_scc1 L_tfetch")
    g("L_tfd:")
    g("s_barrier\ns_barrier\ns_barrier")
    g(f"ds_read_b32 v4, v{VFL} offset:{F_MISS}")
    g("s_waitcnt lgkmcnt(0)")
    g("v_readfirstlane_b32 s96, v4")
    g("s_mov_b32 s95, s3")
    g("s_lshl_b32 s43, s2, 10")
    g("L_fb:")
    g("s_cmp_ge_u32 s95, s96\ns_cbranch_scc1 L_fin")
    g("s_lshl_b32 s8, s95, 3\nv_mov_b32 v4, s8")
    g(f"ds_read_b64 v[6:7], v4 offset:{L_MISS}")
    g("s_waitcnt lgkmcnt(0)")
    g(f"v_and_b32 v{EH}, s42, v6\nv_and_b32 v6, 0xffff, v6")
    g("s_call_b64 s[100:101], L_eval")
    g(f"v_and_b32 v8, s42, v{EA}\nv_add_f32 v8, v8, v7\nv_cvt_pk_bf16_f32 v8, v8, v8")
    g("s_mov_b32 exec_lo, 0\ns_mov_b32 exec_hi, 0x80000000")
    g("buffer_store_short v8, v6, s[48:51], s43 offen")
    g("s_mov_b64 exec, -1")
    g("s_add_u32 s95, s95, 4\ns_branch L_fb")

    g("L_eval:")
    NB = 7
    for b0 in range(0, 14, NB):
        ks = list(range(b0, b0 + NB))
        S_ = lambda i: ES + 4 * i
        Z = lambda i: ES + 2 + 4 * i
        for i, k in enumerate(ks):
            w_ = MWB + 2 * k
            bb = MWB + 28 + 2 * k
            g(f"v_pk_fma_f32 v[{S_(i)}:{S_(i)+1}], v[{w_}:{w_+1}], v[{EH}:{EH+1}], v[{bb}:{bb+1}] op_sel:[0,0,0] op_sel_hi:[1,0,1]")
        for i, k in enumerate(ks):
            g(f"v_pk_fma_f32 v[{Z(i)}:{Z(i)+1}], v[{S_(i)}:{S_(i)+1}], v[{S_(i)}:{S_(i)+1}], s[62:63]")
        for i, k in enumerate(ks):
            g(f"v_pk_mul_f32 v[{Z(i)}:{Z(i)+1}], v[{Z(i)}:{Z(i)+1}], v[{S_(i)}:{S_(i)+1}]")
        for i, k in enumerate(ks):
            g(f"v_exp_f32 v{Z(i)}, v{Z(i)}\nv_exp_f32 v{Z(i)+1}, v{Z(i)+1}")
            vv = MWB + 56 + 2 * k
            g(f"v_pk_mul_f32 v[{S_(i)}:{S_(i)+1}], v[{S_(i)}:{S_(i)+1}], v[{vv}:{vv+1}]")
        for i, k in enumerate(ks):
            g(f"v_pk_add_f32 v[{Z(i)}:{Z(i)+1}], v[{Z(i)}:{Z(i)+1}], 1.0 op_sel_hi:[1,0]")
        for i, k in enumerate(ks):
            g(f"v_rcp_f32 v{Z(i)}, v{Z(i)}\nv_rcp_f32 v{Z(i)+1}, v{Z(i)+1}")
        for i, k in enumerate(ks):
            acc = EA + 2 * (i & 1)
            if b0 == 0 and i < 2:
                g(f"v_pk_mul_f32 v[{acc}:{acc+1}], v[{S_(i)}:{S_(i)+1}], v[{Z(i)}:{Z(i)+1}]")
            else:
                g(f"v_pk_fma_f32 v[{acc}:{acc+1}], v[{S_(i)}:{S_(i)+1}], v[{Z(i)}:{Z(i)+1}], v[{acc}:{acc+1}]")
    g(f"v_pk_add_f32 v[{EA}:{EA+1}], v[{EA}:{EA+1}], v[{EA+2}:{EA+3}]\nv_add_f32 v{EA}, v{EA}, v{EA+1}")
    for m in DPP6:
        g(f"v_add_f32_dpp v{EA}, v{EA}, v{EA} {m}")
    g(f"""
    v_cvt_pk_bf16_f32 v{EA}, v{EA}, v{EA}
    v_and_b32 v{EA}, s42, v{EA}
    v_add_f32 v{EA}, v{EA}, v{VB2}
    v_cvt_pk_bf16_f32 v{EA}, v{EA}, v{EA}
    s_setpc_b64 s[100:101]
    """)

    g("L_V:")
    g("s_setprio 2")
    g("s_barrier")
    g("s_call_b64 s[100:101], L_fsetup")
    srd(48, 20, 0x4000000)
    srd(52, 24, 0x400000)
    VPAY, VW0, VW1, VWT, VGW = P0, P0 + 1, P0 + 2, P0 + 3, P0 + 4
    g("""
    v_lshlrev_b32 v5, 4, v2
    v_lshl_add_u32 v5, v3, 10, v5
    v_lshlrev_b32 v14, 4, v1
    s_lshl_b32 s11, s15, 11
    v_add_u32 v14, s11, v14
    """)
    g(f"v_mul_u32_u24 v15, {OPH}, v2")
    g("v_lshl_add_u32 v15, v3, 4, v15")
    g(f"s_mul_i32 s11, s15, {OPW}\nv_add_u32 v15, s11, v15")
    g("""
    v_and_b32 v7, 1, v3
    v_lshlrev_b32 v8, 6, v7
    v_bfe_u32 v9, v1, 2, 2
    v_lshl_add_u32 v8, v9, 3, v8
    v_lshrrev_b32 v9, 5, v1
    v_add_u32 v8, v8, v9
    v_lshlrev_b32 v8, 10, v8
    v_and_b32 v9, 3, v1
    v_lshlrev_b32 v7, 1, v7
    v_xor_b32 v9, v9, v7
    v_lshl_add_u32 v8, v9, 4, v8
    s_lshl_b32 s8, s4, 19
    s_lshr_b32 s9, s5, 4
    s_lshl_b32 s9, s9, 18
    s_add_u32 s8, s8, s9
    s_and_b32 s9, s5, 15
    s_lshl_b32 s9, s9, 6
    s_add_u32 s8, s8, s9
    s_lshr_b32 s9, s15, 1
    s_lshl_b32 s9, s9, 17
    s_add_u32 s8, s8, s9
    s_and_b32 s9, s15, 1
    s_lshl_b32 s9, s9, 12
    s_add_u32 s8, s8, s9
    s_lshl_b32 s14, s15, 12
    """)
    g(f"s_add_u32 s14, s14, {L_WOT}")
    g("""
    s_lshr_b32 s9, s5, 4
    s_lshl_b32 s9, s9, 1
    s_lshr_b32 s10, s15, 1
    s_add_u32 s9, s9, s10
    """)
    g(f"s_lshl_b32 s10, s4, 15\ns_add_u32 s10, s10, {WS_O:#x}")
    g("s_lshl_b32 s11, s9, 13\ns_add_u32 s10, s10, s11\ns_and_b32 s11, s15, 1\ns_lshl_b32 s11, s11, 12\ns_add_u32 s60, s10, s11")
    g(f"s_lshl_b32 s10, s4, 9\ns_lshl_b32 s11, s9, 7\ns_add_u32 s58, s10, s11\ns_add_u32 s58, s58, {WS_LSE:#x}")
    g(f"""
    v_lshrrev_b32 v6, 2, v2
    v_and_b32 v7, 3, v2
    v_lshlrev_b32 v{VWT}, 3, v2
    v_lshlrev_b32 v{VPAY}, 6, v2
    v_lshl_add_u32 v{VPAY}, v3, 4, v{VPAY}
    v_lshrrev_b32 v7, 2, v2
    v_lshl_add_u32 v7, v3, 2, v7
    v_lshlrev_b32 v7, 6, v7
    v_and_b32 v9, 3, v2
    v_lshl_add_u32 v7, v9, 3, v7
    v_and_b32 v9, 1, v3
    v_lshl_add_u32 v{VW0}, v9, 5, v7
    v_xor_b32 v9, 1, v9
    v_lshl_add_u32 v{VW1}, v9, 5, v7
    v_add_u32 v{VW0}, s14, v{VW0}
    v_add_u32 v{VW1}, s14, v{VW1}
    v_lshlrev_b32 v{VGW}, 7, v6
    v_lshl_add_u32 v{VGW}, v3, 4, v{VGW}
    s_lshl_b32 s10, s15, 9
    v_add_u32 v{VGW}, s10, v{VGW}
    s_mov_b32 s96, 0x11111111
    s_mov_b32 s97, 0x11111111
    s_mov_b32 s12, 0x05040100
    s_mov_b32 s13, 0x07060302
    s_mov_b32 s56, 0x000f000f
    s_mov_b32 s57, 0x000f000f
    """)
    if kneed:
        spin(F_K, kneed, sl=1)
    else:
        spin(F_K, 1, vaddr=VFW, sl=slp)
    TS(4)
    VR, AO, AT, PA = 16, 80, 112, 6
    n = 0
    for T in range(4):
        for i in range(4):
            r = VR + 16 * T + 4 * i
            if n >= limv:
                g(f"s_waitcnt vmcnt({limv-1})")
            g(f"buffer_load_dwordx4 v[{r}:{r+3}], v5, s[48:51], s{64+T} offen offset:{256*i} {kvflags}")
            n += 1
    if wolast:
        signal(F_VI)
        spin(F_VI, 4)
    for i in range(4):
        dI = 32 * (i & 1) + 2 * (i >> 1)
        g(f"s_add_u32 s9, s8, {dI*1024:#x}")
        g(f"s_add_u32 m0, s14, {1024*i}")
        g(f"buffer_load_dwordx4 v8, s[52:55], s9 offen {wflags} lds")
    TS(5)
    spin(F_P, 1, vaddr=VFW)
    g(f"ds_read_b128 v[{PA}:{PA+3}], v14 offset:{L_PL}")
    g(f"ds_read_b128 v[{PA+4}:{PA+7}], v14 offset:{L_PL+1024}")
    g("s_waitcnt lgkmcnt(0)")
    tb = lambda j: AT + 4 * j
    for u_ in range(2):
        for q in range(4):
            T = 2 * u_ + (q >> 1)
            i0 = 2 * (q & 1)
            done = 4 * T + i0 + 2
            g(f"s_waitcnt vmcnt({20-done})")
            a = VR + 16 * T + 4 * i0
            b_ = a + 4
            for dw in range(4):
                g(f"v_perm_b32 v{tb(2*dw)+q}, v{b_+dw}, v{a+dw}, s12")
                g(f"v_perm_b32 v{tb(2*dw+1)+q}, v{b_+dw}, v{a+dw}, s13")
        for j in range(8):
            c = "0" if u_ == 0 else f"v[{AO+4*j}:{AO+4*j+3}]"
            g(f"v_mfma_f32_16x16x32_bf16 v[{AO+4*j}:{AO+4*j+3}], v[{tb(j)}:{tb(j)+3}], v[{PA+4*u_}:{PA+4*u_+3}], {c}")
    g("s_mov_b64 exec, s[56:57]")
    for j in range(8):
        g(f"ds_write_b128 v15, v[{AO+4*j}:{AO+4*j+3}] offset:{L_OP + 64*j}")
    g("s_mov_b64 exec, -1")
    TS(6)
    g("s_waitcnt lgkmcnt(0)")
    g("s_barrier")
    PAY, WF, DD = 16, 32, 48

    def h1loads(hf):
        for kb in range(2):
            r = PAY + 8 * hf + 4 * kb
            g(f"buffer_load_dwordx4 v[{r}:{r+3}], v{VPAY}, s[44:47], s60 offen offset:{2048*kb + 1024*hf} sc1")
        g(f"buffer_load_dword v{64+hf}, v{VWT}, s[44:47], s58 offen offset:{4*hf} sc1")
    TS(2)
    h1loads(0)
    h1loads(1)
    g("s_waitcnt vmcnt(6)")
    TS(3)
    for kb in range(2):
        for mt in range(2):
            r = WF + 8 * kb + 4 * mt
            g(f"ds_read_b64_tr_b16 v[{r}:{r+1}], v{VW0+mt} offset:{2048*kb}")
            g(f"ds_read_b64_tr_b16 v[{r+2}:{r+3}], v{VW0+mt} offset:{2048*kb+1024}")
    if dbg:
        g("s_waitcnt vmcnt(0)")
        TS(4)
    g("s_mov_b32 s71, 0")
    g("L_h1chk:")
    g("""
    s_waitcnt vmcnt(0)
    v_max3_u32 v8, v16, v17, v18
    v_max3_u32 v9, v24, v25, v26
    v_max3_u32 v8, v8, v19, v20
    v_max3_u32 v9, v9, v27, v28
    v_max3_u32 v8, v8, v21, v22
    v_max3_u32 v9, v9, v29, v30
    v_max3_u32 v8, v8, v23, v64
    v_max3_u32 v9, v9, v31, v65
    v_cmp_eq_u32_e64 s[52:53], -1, v8
    v_cmp_eq_u32_e64 s[54:55], -1, v9
    s_or_b64 s[56:57], s[52:53], s[54:55]
    s_cbranch_scc0 L_h1done
    """)
    g(f"s_add_u32 s71, s71, 1\ns_cmp_ge_u32 s71, {maxpoll}\ns_cbranch_scc1 L_h1done")
    for hf in range(2):
        g(f"s_mov_b64 exec, s[{52+2*hf}:{53+2*hf}]")
        g(f"s_cbranch_execz L_h1s{hf}")
        h1loads(hf)
        g(f"L_h1s{hf}:")
    g("s_mov_b64 exec, -1\ns_branch L_h1chk")
    g("L_h1done:")
    g("s_waitcnt lgkmcnt(0)")
    TS(7)
    if dbg:
        g("s_mov_b32 s74, s71\ns_mov_b32 s75, 0")
    wts = ["v_max_f32 v8, v64, v65",
           "v_max_f32_dpp v8, v8, v8 quad_perm:[1,0,3,2] row_mask:0xf bank_mask:0xf",
           "v_max_f32_dpp v8, v8, v8 quad_perm:[2,3,0,1] row_mask:0xf bank_mask:0xf",
           "v_sub_f32 v64, v64, v8\nv_sub_f32 v65, v65, v8",
           "v_exp_f32 v64, v64\nv_exp_f32 v65, v65",
           "v_add_f32 v8, v64, v65",
           "v_add_f32_dpp v8, v8, v8 quad_perm:[1,0,3,2] row_mask:0xf bank_mask:0xf",
           "v_add_f32_dpp v8, v8, v8 quad_perm:[2,3,0,1] row_mask:0xf bank_mask:0xf"]
    wi = 0
    for kb in range(2):
        for mt in range(2):
            for hf in range(2):
                d = DD + 8 * mt + 4 * hf
                b_ = PAY + 8 * hf + 4 * kb
                a_ = WF + 8 * kb + 4 * mt
                c = "0" if kb == 0 else f"v[{d}:{d+3}]"
                g(f"v_mfma_f32_16x16x32_bf16 v[{d}:{d+3}], v[{a_}:{a_+3}], v[{b_}:{b_+3}], {c}")
                g(wts[wi]); wi += 1
    g("v_rcp_f32 v8, v8")
    g("v_pk_mul_f32 v[64:65], v[64:65], v[8:9] op_sel:[0,0] op_sel_hi:[1,0]")
    for mt in range(2):
        for h_ in range(2):
            d = DD + 8 * mt + 2 * h_
            g(f"v_pk_mul_f32 v[{d}:{d+1}], v[{d}:{d+1}], v[64:65] op_sel:[0,0] op_sel_hi:[1,0]")
    for mt in range(2):
        for h_ in range(2):
            d = DD + 8 * mt + 2 * h_
            g(f"v_pk_fma_f32 v[{d}:{d+1}], v[{d+4}:{d+5}], v[64:65], v[{d}:{d+1}] op_sel:[0,1,0] op_sel_hi:[1,1,1]")
    for m in ("quad_perm:[1,0,3,2]", "quad_perm:[2,3,0,1]"):
        for mt in range(2):
            for i in range(4):
                d = DD + 8 * mt + i
                g(f"v_add_f32_dpp v{d}, v{d}, v{d} {m} row_mask:0xf bank_mask:0xf")
    g("s_mov_b64 exec, s[96:97]")
    g(f"ds_write_b128 v{VGW}, v[{DD}:{DD+3}] offset:{L_GP}")
    g(f"ds_write_b128 v{VGW}, v[{DD+8}:{DD+11}] offset:{L_GP+64}")
    g("s_mov_b64 exec, -1")
    g("s_waitcnt lgkmcnt(0)")

    g("L_B5:")
    g("s_barrier")
    TS(8, 'V')
    TS(7, 'K')
    g("s_cmp_lg_u32 s3, 4\ns_cbranch_scc1 L_H2")
    for w in range(4):
        g(f"ds_read_b64 v[{16+2*w}:{17+2*w}], v{VGP} offset:{L_GP + 512*w}")
    g("s_waitcnt lgkmcnt(0)")
    g("v_pk_add_f32 v[16:17], v[16:17], v[18:19]\nv_pk_add_f32 v[20:21], v[20:21], v[22:23]\nv_pk_add_f32 v[32:33], v[16:17], v[20:21]")
    g("v_min_u32 v32, -2, v32\nv_min_u32 v33, -2, v33")
    g(f"buffer_store_dwordx2 v[32:33], v{VH2S}, s[44:47], s69 offen sc1")
    g("L_H2:")
    g("s_cmp_ge_u32 s2, 4\ns_cbranch_scc1 L_fin")
    g("L_fseg:")
    g("s_lshl_b32 s8, s2, 15\ns_lshl_b32 s9, s63, 8\ns_add_u32 s8, s8, s9")
    g(f"s_add_u32 s64, s8, {WS_H2:#x}\ns_add_u32 s65, s64, 0x2000\ns_add_u32 s66, s64, 0x4000\ns_add_u32 s67, s64, 0x6000")
    g("s_cbranch_execz L_fs_a")
    for i in range(4):
        g(f"buffer_load_dwordx4 v[{16+4*i}:{19+4*i}], v{VH2}, s[44:47], s{64+i} offen sc1")
    g("L_fs_a:")
    g(f"s_mov_b32 s8, {f2u(1.0/512):#x}\ns_mov_b32 s9, {f2u(1.0/512):#x}\ns_mov_b32 s10, {f2u(1e-5):#x}")
    g("s_mov_b32 s60, 0x80000000\ns_mov_b32 s61, 0x80000000")
    srd(48, 36, 4096)
    g("s_mov_b32 s71, 0")
    g("L_h2chk:")
    g("s_waitcnt vmcnt(0)")
    for i in range(4):
        g(f"v_max3_u32 v{8+i}, v{16+4*i}, v{17+4*i}, v{18+4*i}")
    for i in range(4):
        g(f"v_max_u32 v{8+i}, v{8+i}, v{19+4*i}")
    g("v_max3_u32 v12, v8, v9, v10\nv_max_u32 v12, v12, v11")
    g("v_cmp_eq_u32 vcc, -1, v12")
    g("s_cmp_eq_u64 vcc, 0\ns_cbranch_scc1 L_h2done")
    g(f"s_add_u32 s71, s71, 1\ns_cmp_ge_u32 s71, {maxpoll}\ns_cbranch_scc1 L_h2done")
    for i in range(4):
        g(f"v_cmp_eq_u32_e64 s[{52+2*i}:{53+2*i}], -1, v{8+i}")
    for i in range(4):
        g(f"s_mov_b64 exec, s[{52+2*i}:{53+2*i}]")
        g(f"s_cbranch_execz L_h2s{i}")
        g(f"buffer_load_dwordx4 v[{16+4*i}:{19+4*i}], v{VH2}, s[44:47], s{64+i} offen sc1")
        g(f"L_h2s{i}:")
    g("s_mov_b64 exec, -1\ns_branch L_h2chk")
    g("L_h2done:")
    TS(9, 'V')
    TS(8, 'K')
    g(f"""
    v_lshlrev_b32 v{VX}, 16, v{VX}
    v_pk_add_f32 v[16:17], v[16:17], v[20:21]
    v_pk_add_f32 v[18:19], v[18:19], v[22:23]
    v_pk_add_f32 v[24:25], v[24:25], v[28:29]
    v_pk_add_f32 v[26:27], v[26:27], v[30:31]
    v_pk_add_f32 v[16:17], v[16:17], v[24:25]
    v_pk_add_f32 v[18:19], v[18:19], v[26:27]
    v_permlane32_swap_b32 v16, v17
    v_permlane32_swap_b32 v18, v19
    v_add_f32 v16, v16, v17
    v_add_f32 v18, v18, v19
    v_permlane16_swap_b32 v16, v18
    v_add_f32 v16, v16, v18
    v_cvt_pk_bf16_f32 v16, v16, v16
    v_and_b32 v16, s42, v16
    v_add_f32 v16, v16, v{VX}
    v_cvt_pk_bf16_f32 v16, v16, v16
    v_and_b32 v13, s42, v16
    """)

    def wave_stats(x, st_off, vmwait=False):
        g(f"v_mul_f32 v19, v{x}, v{x}\nv_mov_b32 v18, v{x}")
        g("v_permlane32_swap_b32 v18, v19\nv_add_f32 v18, v18, v19")
        for m in DPP6[:5]:
            g(f"v_add_f32_dpp v18, v18, v18 {m}")
        g("s_and_b64 exec, s[60:61], s[98:99]")
        g(f"ds_write_b32 v{VST}, v18 offset:{st_off}")
        g("s_mov_b64 exec, s[98:99]")
        g("s_waitcnt lgkmcnt(0)")
        g(f"s_cbranch_execz L_fs_b{st_off}")
        g("s_barrier")
        g(f"L_fs_b{st_off}:")
        for i in range(4):
            g(f"ds_read_b128 v[{20+4*i}:{23+4*i}], v{VZ} offset:{st_off + 16*i}")
        g("s_waitcnt lgkmcnt(0)")
        g("""
        v_pk_add_f32 v[20:21], v[20:21], v[22:23]
        v_pk_add_f32 v[24:25], v[24:25], v[26:27]
        v_pk_add_f32 v[28:29], v[28:29], v[30:31]
        v_pk_add_f32 v[32:33], v[32:33], v[34:35]
        v_pk_add_f32 v[20:21], v[20:21], v[24:25]
        v_pk_add_f32 v[28:29], v[28:29], v[32:33]
        v_pk_add_f32 v[20:21], v[20:21], v[28:29]
        """)
        ln_scalar(20, 21, 22)

    wave_stats(13, L_ST2)
    g("v_sub_f32 v16, v13, v20")
    g("v_cvt_pk_bf16_f32 v16, v16, v16\nv_and_b32 v16, s42, v16")
    g("v_mul_f32 v16, v16, v21")
    g("v_cvt_pk_bf16_f32 v16, v16, v16\nv_and_b32 v16, s42, v16")
    wave_stats(16, L_ST3)
    TS(9, 'K')
    g("v_sub_f32 v16, v16, v20")
    g("v_cvt_pk_bf16_f32 v16, v16, v16\nv_and_b32 v16, s42, v16")
    g("v_mul_f32 v16, v16, v21")
    g("v_cvt_pk_bf16_f32 v16, v16, v16")
    g(f"v_and_b32 v17, 0x7fff, v16\nv_subrev_u32 v17, {EXP0 << 7}, v17")
    g("v_bfe_u32 v18, v16, 15, 1")
    g(f"s_movk_i32 s11, {NBIN*128}")
    g("v_cmp_gt_u32 vcc, s11, v17")
    g("v_mad_u32_u24 v18, v18, s11, v17")
    g("v_lshlrev_b32 v18, 1, v18")
    g("v_cndmask_b32 v18, 0, v18, vcc")
    g(f"ds_read_u16 v19, v18 offset:{L_TAB}")
    g("s_mov_b32 s12, 0xffff")
    g("s_waitcnt lgkmcnt(0)")
    g("v_cmp_ne_u32_e64 s[52:53], s12, v19")
    g("v_lshlrev_b32 v19, 16, v19\nv_add_f32 v19, v19, v13\nv_cvt_pk_bf16_f32 v19, v19, v19")
    g("s_and_b64 s[52:53], s[52:53], vcc")
    if force_fb:
        g("s_and_b32 s52, s52, 0xfffffff0")
    g("s_mov_b64 exec, s[52:53]")
    g("s_cbranch_execz L_nost")
    g(f"buffer_store_short v19, v{VCOL}, s[48:51], s43 offen")
    g("L_nost:")
    g("s_andn2_b64 exec, s[98:99], s[52:53]")
    g("s_cbranch_execz L_nomiss")
    g(f"ds_add_rtn_u32 v17, v{VFL}, v{VONE} offset:{F_MISS}")
    g(f"v_and_b32 v12, s42, v16\nv_or_b32 v12, v12, v{VCOL}")
    g("s_waitcnt lgkmcnt(0)")
    g("v_lshlrev_b32 v17, 3, v17")
    g(f"ds_write_b64 v17, v[12:13] offset:{L_MISS}")
    g("s_waitcnt lgkmcnt(0)")
    g("L_nomiss:")
    g("s_mov_b64 exec, s[98:99]")
    g("s_cbranch_execz L_dry_ret")
    g("s_barrier")
    g("s_cmp_lg_u32 s2, 0\ns_cbranch_scc1 L_fin\ns_cmp_lg_u32 s3, 4\ns_cbranch_scc1 L_fin")
    g("s_add_u32 s94, s94, 1\nv_mov_b32 v4, s94")
    g("s_mov_b64 exec, 1")
    g(f"buffer_store_dword v4, v{VZ}, s[44:47], 0 offen offset:{WS_E}")
    g("L_fin:")
    if dbg:
        g("s_mov_b64 exec, -1")
        g("s_memrealtime s[92:93]")
        g("s_waitcnt lgkmcnt(0)")
        g(f"s_lshl_b32 s8, s2, 11\ns_lshl_b32 s9, s3, 7\ns_add_u32 s8, s8, s9\ns_add_u32 s8, s8, {WS_DBG:#x}")
        g("s_mov_b64 exec, 1")
        for i in range(0, 22, 2):
            g(f"v_mov_b32 v8, s{72+i}\nv_mov_b32 v9, s{73+i}")
            g(f"buffer_store_dwordx2 v[8:9], v{VZ}, s[44:47], s8 offen offset:{4*i}")
            g("s_nop 1")
    g("L_end:")
    g("s_endpgm")
    g('.section .rodata,"a"')
    g(".p2align 6")
    g(f".amdhsa_kernel {KN}")
    for d in ["next_free_vgpr 168", "next_free_sgpr 102", "accum_offset 168", "group_segment_fixed_size 0", "kernarg_size 104",
              "user_sgpr_count 2", "user_sgpr_kernarg_segment_ptr 1", "system_sgpr_workgroup_id_x 1", "float_denorm_mode_32 3"]:
        g(f".amdhsa_{d}")
    g(".end_amdhsa_kernel")
    open(path, "w").write(g.text())


if __name__ == "__main__":
    kw = eval("dict(%s)" % (sys.argv[2] if len(sys.argv) > 2 else ""))
    gen(sys.argv[1], **kw)
```

```python
import sys, struct, math
from asmlib import Gen

KN = "sequential_preLN__sliding_block_cached__mixer_token_mlp__decode_kernel"

def f2u(x):
    return struct.unpack("<I", struct.pack("<f", x))[0]

WS_E = 0
WS_T = 0x1000
WS_LSE = 0x2000
WS_TAB = 0x4000
WS_H2 = 0x10000
WS_O = 0x40000
OSTR = 1152
WS_QS = 0x90000
QSL = 0x80000
WS_DBG = 0x200000
L_WQT = 0
L_OP = 0
OPW = 2304
OPH = 576
L_GP = 9216
L_MISS = 11264
L_ST2 = 15360
L_ST3 = 15424
L_WOT = 16384
L_TAB = 16384
L_XN = 32768
L_QL = 33792
L_PL = 34816
L_ST = 43008
L_WT = 43200
L_FL = 43456
L_MW = 43520
L_KL = 57344
L_TOTAL = 57344 + 65536
F_NL, F_Q, F_MW, F_ST, F_K, F_P, F_MISS, F_CL, F_VI = 0, 4, 8, 12, 16, 32, 48, 52, 56
EXP0 = 108
NBIN = 24
NW = 12

LOG2E = 1.4426950408889634
K0 = -2.0 * math.sqrt(2.0 / math.pi) * LOG2E
K1 = K0 * 0.044715
ALPHA = -((-K1) ** (1.0 / 3.0))
BETA = K0 / ALPHA
HEADER = open("sequential_preLN__sliding_block_cached__mixer_token_mlp__decode.s.ref").read().split("; Override launch")[0]

names_c = ["start", "B0", "q pub", "mw rdy", "tabdone", "-", "-", "-", "-", "-", "end"]
names_k = ["start", "Kissued", "q got", "P rdy", "preB3", "B3", "O pub", "B5", "h2 done", "B6b", "end"]
names_v = ["start", "rounds", "B3", "wo in", "rnd1", "Vissued", "PVdone", "h1 done", "B5", "h2 done", "end"]

DPP6 = ["row_shr:1 row_mask:0xf bank_mask:0xf bound_ctrl:0", "row_shr:2 row_mask:0xf bank_mask:0xf bound_ctrl:0",
        "row_shr:4 row_mask:0xf bank_mask:0xf bound_ctrl:0", "row_shr:8 row_mask:0xf bank_mask:0xf bound_ctrl:0",
        "row_bcast:15 row_mask:0xa bank_mask:0xf", "row_bcast:31 row_mask:0xc bank_mask:0xf"]

VZ, VT, VONE, VFL, VFW = 160, 161, 162, 163, 164
VX, VB2, VH2, VCOL, VH2S, VGP, VST = 144, 145, 146, 147, 148, 149, 150
P0 = 152


def gen(path, dbg=False, kvflags="nt", wflags="nt", maxpoll=1 << 18, lim=4, limv=6, dry=False, aln2=True, ksig=13, gpos=11, wolast=True, strided=True, rotm=1, kneed=0, kearly=0, nloc=8, pretouch=True, force_fb=False, local=True, mwearly=True, slp=2, notab=False, nomw=False, g1=False):
    g = Gen()
    uid = [0]

    def TS(k, cond=None):
        if dbg:
            if cond:
                uid[0] += 1
                g(f"s_cmp_{'lt' if cond == 'V' else 'ge'}_u32 s3, 8\ns_cbranch_scc1 L_ts{uid[0]}")
            g(f"s_memrealtime s[{72+2*k}:{73+2*k}]")
            if cond:
                g(f"L_ts{uid[0]}:")

    def srd(d, lo, nbytes):
        g(f"s_mov_b32 s{d}, s{lo}\ns_and_b32 s{d+1}, s{lo+1}, 0xffff\ns_mov_b32 s{d+2}, {nbytes:#x}\ns_mov_b32 s{d+3}, 0x20000")

    def signal(off, vaddr=VFL):
        g("s_mov_b64 exec, 1")
        g(f"ds_add_u32 v{vaddr}, v{VONE} offset:{off}")
        g("s_mov_b64 exec, -1")

    def spin(off, target, sl=1, vaddr=VFL):
        uid[0] += 1
        u = uid[0]
        g("s_mov_b32 s71, 0")
        g(f"L_sp{u}:")
        g(f"ds_read_b32 v{VT}, v{vaddr} offset:{off}")
        g(f"s_add_u32 s71, s71, 1\ns_cmp_ge_u32 s71, {maxpoll*4}\ns_cbranch_scc1 L_spx{u}")
        g("s_waitcnt lgkmcnt(0)")
        g(f"v_readfirstlane_b32 s70, v{VT}")
        g(f"s_cmp_ge_u32 s70, {target}\ns_cbranch_scc1 L_spx{u}")
        g(f"s_sleep {sl}")
        g(f"s_branch L_sp{u}")
        g(f"L_spx{u}:")

    def tags():
        g("s_mul_i32 s92, s94, 0x85ebca6b\ns_add_u32 s92, s92, 0x7f4a7c15\ns_mul_i32 s93, s94, 0x9e3779b1\ns_add_u32 s93, s93, 0x1b873593")

    def ln_scalar(m, v, t, pre=True, save=None):
        if pre:
            g(f"v_pk_mul_f32 v[{m}:{v}], v[{m}:{v}], s[8:9]")
            g(f"v_fma_f32 v{v}, -v{m}, v{m}, v{v}")
            g(f"v_max_f32 v{v}, 0, v{v}")
        if save is not None:
            g(f"v_mov_b32 v{save}, v{m}\nv_mov_b32 v{save+1}, v{v}")
        g(f"v_cvt_pk_bf16_f32 v{t}, v{m}, v{v}")
        g(f"v_and_b32 v{v}, s42, v{t}")
        g(f"v_lshlrev_b32 v{m}, 16, v{t}")
        g(f"v_add_f32 v{v}, s10, v{v}")
        g(f"v_cvt_pk_bf16_f32 v{t}, v{v}, v{v}")
        g(f"v_and_b32 v{v}, s42, v{t}")
        g(f"v_sqrt_f32 v{v}, v{v}")
        g(f"v_cvt_pk_bf16_f32 v{t}, v{v}, v{v}")
        g(f"v_and_b32 v{v}, s42, v{t}")
        g(f"v_rcp_f32 v{v}, v{v}")

    g(HEADER.rstrip())
    g(f"; @launch grid=(256,1,1) block=({NW*64},1,1) lds={L_TOTAL}")
    g('.amdgcn_target "amdgcn-amd-amdhsa--gfx950"')
    g(".text")
    g(f".globl {KN}")
    g(".p2align 8")
    g(f".type {KN},@function")
    g(f"{KN}:")
    TS(0)
    g("""
    s_cmp_ge_u32 s2, 256
    s_cbranch_scc1 L_end
    s_load_dwordx16 s[16:31], s[0:1], 0
    s_load_dwordx8 s[32:39], s[0:1], 64
    s_load_dwordx2 s[40:41], s[0:1], 96
    v_lshrrev_b32 v4, 6, v0
    v_and_b32 v1, 63, v0
    v_readfirstlane_b32 s3, v4
    v_and_b32 v2, 15, v1
    v_lshrrev_b32 v3, 4, v1
    s_and_b32 s4, s2, 7
    s_lshr_b32 s5, s2, 3
    s_lshr_b32 s6, s5, 3
    s_and_b32 s7, s5, 7
    s_mov_b32 s42, 0xffff0000
    s_mov_b64 s[98:99], -1
    """)
    g(f"v_mov_b32 v{VFL}, {L_FL}\nv_mov_b32 v{VONE}, 1\nv_mov_b32 v{VZ}, 0")
    g(f"""
    s_and_b32 s15, s3, 3
    s_lshl_b32 s8, s6, 3
    s_add_u32 s8, s8, s4
    s_lshl_b32 s8, s8, 21
    s_lshl_b32 s9, s7, {12 if strided else 16}
    s_add_u32 s8, s8, s9
    s_add_u32 s8, s8, 0x180000
    s_add_u32 s9, s2, s5
    s_mul_i32 s9, s9, {rotm}
    s_add_u32 s9, s9, s15
    s_lshl_b32 s11, s15, 2
    v_add_u32 v{VFW}, s11, v{VFL}
    """)
    for i in range(4):
        g(f"s_add_u32 s{64+i}, s9, {4*i}\ns_and_b32 s{64+i}, s{64+i}, 15\ns_lshl_b32 s{64+i}, s{64+i}, {15 if strided else 12}\ns_add_u32 s{64+i}, s{64+i}, s8")
    g("s_waitcnt lgkmcnt(0)")
    srd(44, 40, 0x10000000)
    g(f"s_load_dword s94, s[40:41], {WS_E}")
    g("s_getreg_b32 s0, hwreg(HW_REG_XCC_ID)\ns_and_b32 s0, s0, 7")
    g("""
    s_cmp_ge_u32 s3, 8
    s_cbranch_scc1 L_V
    s_cmp_ge_u32 s3, 4
    s_cbranch_scc1 L_K
    """)
    srd(60, 34, 2)
    g(f"buffer_load_ushort v{VB2}, v{VZ}, s[60:63], 0 offen")
    g("s_cmp_lg_u32 s3, 0\ns_cbranch_scc1 L_C123")
    srd(48, 16, 4096)
    srd(52, 22, 0x400000)
    g("""
    v_and_b32 v4, 3, v1
    v_lshlrev_b32 v5, 10, v4
    v_lshrrev_b32 v6, 2, v1
    v_lshl_add_u32 v6, v6, 6, v5
    """)
    for i in range(4):
        g(f"buffer_load_dwordx4 v[{16+4*i}:{19+4*i}], v6, s[48:51], 0 offen offset:{16*i}")
    g("""
    v_lshrrev_b32 v7, 2, v2
    v_lshl_add_u32 v5, v7, 6, v5
    v_lshl_add_u32 v5, v3, 3, v5
    s_lshl_b32 s8, s6, 8
    buffer_load_dwordx2 v[32:33], v5, s[48:51], s8 offen
    buffer_load_dwordx2 v[34:35], v5, s[48:51], s8 offen offset:32
    v_lshrrev_b32 v6, 3, v1
    v_lshlrev_b32 v6, 13, v6
    v_and_b32 v8, 7, v1
    v_lshlrev_b32 v9, 1, v3
    v_xor_b32 v8, v8, v9
    v_lshl_add_u32 v6, v8, 4, v6
    s_lshl_b32 s8, s6, 20
    s_lshl_b32 s9, s4, 10
    s_add_u32 s8, s8, s9
    s_lshl_b32 s9, s7, 7
    s_add_u32 s8, s8, s9
    """)
    for i in range(16):
        g(f"s_mov_b32 m0, {L_WQT + 1024*i}")
        g(f"buffer_load_dwordx4 v6, s[52:55], s8 offen {wflags} lds")
        if i < 15:
            g("s_add_u32 s8, s8, 0x10000")
    g("s_barrier")
    TS(1)
    g("s_branch L_Q2")

    g("L_K:")
    srd(48, 18, 0x4000000)
    g("v_xor_b32 v4, v2, v3\nv_lshlrev_b32 v7, 8, v3\nv_lshlrev_b32 v9, 8, v2")
    g(f"s_lshl_b32 s63, s15, 14\ns_add_u32 s63, s63, {L_KL}\nv_add_u32 v9, s63, v9")
    for u in range(4):
        g(f"v_xor_b32 v8, {4*u}, v4\nv_lshl_add_u32 v{132+u}, v8, 4, v7\nv_lshl_add_u32 v{136+u}, v8, 4, v9")
    g("""
    s_lshl_b32 s8, s4, 16
    s_lshl_b32 s9, s6, 14
    s_add_u32 s8, s8, s9
    s_lshl_b32 s9, s15, 10
    s_add_u32 s8, s8, s9
    """)
    g(f"s_add_u32 s12, s8, {WS_QS:#x}\ns_add_u32 s13, s12, 0x1000\ns_add_u32 s14, s12, 0x2000\ns_add_u32 s43, s12, 0x3000")
    g(f"s_lshl_b32 s68, s15, 9\ns_add_u32 s68, s68, {WS_T:#x}")
    g(f"v_lshlrev_b32 v5, 4, v1\nv_add_u32 v5, {QSL:#x}, v5\nv_lshlrev_b32 v6, 3, v1")
    g("s_setprio 2")
    if kearly == 0: g("s_barrier")
    KR, QF, SA, PR, TM = 16, 80, 96, 112, 120
    qso = ["s12", "s13", "s14", "s43"] if not g1 else ["s12", "s12", "s12", "s12"]

    def kload(n):
        T, t = n >> 2, n & 3
        if t == 0:
            g(f"s_add_u32 m0, s63, {4096*T}")
        g(f"buffer_load_dwordx4 v{132+t}, s[48:51], s{64+T} offen offset:{1024*t} {kvflags} lds")
    for n in range(0, 16):
        if n == gpos:
            for ks in range(4):
                g(f"buffer_load_dwordx4 v[{QF+4*ks}:{QF+4*ks+3}], v5, s[44:47], {qso[ks]} offen sc1")
        if n >= lim:
            extra = 4 if (n >= gpos and n - lim < gpos) else 0
            g(f"s_waitcnt vmcnt({lim-1+extra})")
        kload(n)
        if kearly and n == kearly - 1: g("s_barrier")
        if n == ksig:
            signal(F_K, VFW if not kneed else VFL)
    if gpos >= 16:
        for ks in range(4):
            g(f"buffer_load_dwordx4 v[{QF+4*ks}:{QF+4*ks+3}], v5, s[44:47], {qso[ks]} offen sc1")
    TS(1)
    g("s_waitcnt lgkmcnt(0)")
    tags()
    g("s_mov_b32 s71, 0")
    g(f"s_waitcnt vmcnt({max(16-gpos,0)})")
    g("s_branch L_qchk")
    g("L_qpoll:")
    g(f"s_cmp_lg_u32 s71, {nloc}\ns_cbranch_scc1 L_qnl")
    g("v_lshlrev_b32 v5, 4, v1")
    g("L_qnl:")
    for ks in range(4):
        g(f"s_mov_b64 exec, s[{52+2*ks}:{53+2*ks}]")
        g(f"s_cbranch_execz L_qs{ks}")
        g(f"buffer_load_dwordx4 v[{QF+4*ks}:{QF+4*ks+3}], v5, s[44:47], {qso[ks]} offen sc1")
        g(f"L_qs{ks}:")
    g("s_mov_b64 exec, -1")
    g("s_waitcnt vmcnt(0)")
    g("L_qchk:")
    for ks in range(4):
        r = QF + 4 * ks
        g(f"v_xor_b32 v8, v{r+2}, v{r+1}")
        g(f"v_xor_b32 v9, v{r+3}, v{r}")
        g("v_xor_b32 v8, s92, v8")
        g(f"v_subrev_u32 v{128+ks}, s93, v9")
        g(f"v_lshrrev_b32 v9, 3, v{128+ks}")
        g("v_or_b32 v8, v8, v9")
        g(f"v_cmp_ne_u32_e64 s[{52+2*ks}:{53+2*ks}], 0, v8")
    g(f"s_add_u32 s71, s71, 1\ns_cmp_ge_u32 s71, {maxpoll}\ns_cbranch_scc1 L_qdone")
    g("s_or_b64 s[8:9], s[52:53], s[54:55]\ns_or_b64 s[10:11], s[56:57], s[58:59]\ns_or_b64 s[8:9], s[8:9], s[10:11]")
    g("s_cbranch_scc1 L_qpoll")
    g("L_qdone:")
    g("v_xor_b32 v128, s0, v128\nv_xor_b32 v129, s0, v129\nv_xor_b32 v130, s0, v130\nv_xor_b32 v131, s0, v131")
    g("v_or3_b32 v128, v128, v129, v130\nv_or_b32 v128, v128, v131")
    g("v_cmp_ne_u32 vcc, 0, v128")
    g("s_cmp_eq_u64 vcc, 0\ns_cbranch_scc1 L_alllocal")
    signal(F_NL)
    g("L_alllocal:")
    g(f"v_pk_add_f32 v[{QF}:{QF+1}], v[{QF}:{QF+1}], v[{QF+4}:{QF+5}]")
    g(f"v_pk_add_f32 v[{QF+8}:{QF+9}], v[{QF+8}:{QF+9}], v[{QF+12}:{QF+13}]")
    g(f"v_pk_add_f32 v[{QF}:{QF+1}], v[{QF}:{QF+1}], v[{QF+8}:{QF+9}]")
    g(f"v_cvt_pk_bf16_f32 v8, v{QF}, v{QF+1}")
    g("v_lshlrev_b32 v9, 2, v1\ns_lshl_b32 s8, s15, 8\nv_add_u32 v9, s8, v9")
    g(f"ds_write_b32 v9, v8 offset:{L_QL}")
    signal(F_Q)
    g("""
    v_and_b32 v10, 3, v2
    v_lshlrev_b32 v7, 8, v10
    v_lshl_add_u32 v7, v3, 4, v7
    v_lshlrev_b32 v12, 5, v10
    s_lshl_b32 s11, s15, 3
    v_add_u32 v13, s11, v12
    v_lshlrev_b32 v14, 4, v1
    s_lshl_b32 s11, s15, 11
    v_add_u32 v14, s11, v14
    """)
    spin(F_Q, 4)
    TS(2)
    for t in range(4):
        g(f"ds_read_b128 v[{QF+4*t}:{QF+4*t+3}], v7 offset:{L_QL + 64*t}")
    SC = 128 ** -0.5
    g(f"s_mov_b32 s8, {f2u(SC):#x}\ns_mov_b32 s9, {f2u(SC):#x}\ns_mov_b32 s10, {f2u(LOG2E):#x}")
    g("s_waitcnt lgkmcnt(0)")
    for T in range(4):
        g(f"s_waitcnt vmcnt({12-4*T})")
        for t in range(4):
            r = KR + 16 * T + 4 * t
            g(f"ds_read_b128 v[{r}:{r+3}], v{136+t} offset:{4096*T}")
    g("s_waitcnt lgkmcnt(0)")
    for T in range(4):
        for t in range(4):
            r = KR + 16 * T + 4 * t
            c = "0" if t == 0 else f"v[{SA+4*T}:{SA+4*T+3}]"
            g(f"v_mfma_f32_16x16x32_bf16 v[{SA+4*T}:{SA+4*T+3}], v[{r}:{r+3}], v[{QF+4*t}:{QF+4*t+3}], {c}")
    for rep in range(2):
        for p in range(8):
            a = SA + 2 * p
            g(f"v_cvt_pk_bf16_f32 v{TM+p}, v{a}, v{a+1}")
        for p in range(8):
            a = SA + 2 * p
            g(f"v_lshlrev_b32 v{a}, 16, v{TM+p}")
            g(f"v_and_b32 v{a+1}, s42, v{TM+p}")
        if rep == 0:
            for p in range(8):
                a = SA + 2 * p
                g(f"v_pk_mul_f32 v[{a}:{a+1}], v[{a}:{a+1}], s[8:9]")
    g(f"v_max3_f32 v8, v{SA}, v{SA+1}, v{SA+2}")
    g(f"v_max3_f32 v9, v{SA+3}, v{SA+4}, v{SA+5}")
    g(f"v_max3_f32 v10, v{SA+6}, v{SA+7}, v{SA+8}")
    g(f"v_max3_f32 v11, v{SA+9}, v{SA+10}, v{SA+11}")
    g(f"v_max3_f32 v8, v8, v{SA+12}, v{SA+13}")
    g(f"v_max3_f32 v9, v9, v{SA+14}, v{SA+15}")
    g("v_max3_f32 v8, v8, v9, v10\nv_max_f32 v8, v8, v11")
    g("v_mov_b32 v9, v8\nv_permlane32_swap_b32 v8, v9\nv_max_f32 v8, v8, v9")
    g("v_mov_b32 v9, v8\nv_permlane16_swap_b32 v8, v9\nv_max_f32 v8, v8, v9")
    g("v_mul_f32 v10, s10, v8")
    for e in range(16):
        g(f"v_fma_f32 v{SA+e}, v{SA+e}, s10, -v10")
    for e in range(16):
        g(f"v_exp_f32 v{SA+e}, v{SA+e}")
    for p in range(8):
        g(f"v_cvt_pk_bf16_f32 v{PR+p}, v{SA+2*p}, v{SA+2*p+1}")
    g(f"ds_write_b128 v14, v[{PR}:{PR+3}] offset:{L_PL}")
    g(f"ds_write_b128 v14, v[{PR+4}:{PR+7}] offset:{L_PL+1024}")
    signal(F_P, VFW)
    for p in range(4):
        g(f"v_pk_add_f32 v[{SA+2*p}:{SA+2*p+1}], v[{SA+2*p}:{SA+2*p+1}], v[{SA+8+2*p}:{SA+9+2*p}]")
    for p in range(2):
        g(f"v_pk_add_f32 v[{SA+2*p}:{SA+2*p+1}], v[{SA+2*p}:{SA+2*p+1}], v[{SA+4+2*p}:{SA+5+2*p}]")
    g(f"v_pk_add_f32 v[{SA}:{SA+1}], v[{SA}:{SA+1}], v[{SA+2}:{SA+3}]")
    g(f"v_add_f32 v9, v{SA}, v{SA+1}")
    g("v_mov_b32 v11, v9\nv_permlane32_swap_b32 v9, v11\nv_add_f32 v9, v9, v11")
    g("v_mov_b32 v11, v9\nv_permlane16_swap_b32 v9, v11\nv_add_f32 v9, v9, v11")
    g("s_mov_b64 exec, 15")
    g(f"ds_write_b64 v13, v[8:9] offset:{L_ST}")
    g("s_mov_b64 exec, -1")
    signal(F_ST)
    TS(3)
    spin(F_ST, 4)
    FA = P0
    g("s_lshl_b32 s11, s15, 5\nv_mov_b32 v12, s11")
    g(f"ds_read_b128 v[16:19], v12 offset:{L_ST}")
    g(f"ds_read_b128 v[20:23], v12 offset:{L_ST+16}")
    g(f"ds_read_b32 v27, v{VFL} offset:{F_NL}")
    g("s_waitcnt lgkmcnt(0)")
    g("v_readfirstlane_b32 s1, v27")
    g("v_max3_f32 v24, v16, v18, v20\nv_max_f32 v24, v24, v22")
    for i in range(4):
        g(f"v_sub_f32 v{FA+i}, v{16+2*i}, v24")
        g(f"v_mul_f32 v{FA+i}, s10, v{FA+i}")
        g(f"v_exp_f32 v{FA+i}, v{FA+i}")
    g(f"v_mul_f32 v25, v{FA}, v17")
    for i in range(1, 4):
        g(f"v_fmac_f32 v25, v{FA+i}, v{17+2*i}")
    g("v_rcp_f32 v26, v25\nv_log_f32 v25, v25")
    for i in range(4):
        g(f"v_mul_f32 v{FA+i}, v{FA+i}, v26")
    VOPR, VL4, VLSE = P0 + 4, P0 + 5, P0 + 6
    g(f"v_fma_f32 v25, v24, s10, v25\nv_min_u32 v{VLSE}, -2, v25")
    g(f"v_lshlrev_b32 v{VOPR}, 3, v1\ns_mul_i32 s11, s15, {OPH}\nv_add_u32 v{VOPR}, s11, v{VOPR}")
    g(f"v_lshlrev_b32 v{VL4}, 2, v2\nv_lshl_add_u32 v{VL4}, v3, 11, v{VL4}")
    g("s_cmp_ge_u32 s2, 4\ns_cbranch_scc1 L_tdone")
    g("s_mov_b32 s71, 0")
    g("L_tpoll:")
    g("buffer_load_dwordx2 v[128:129], v6, s[44:47], s68 offen sc1")
    g("s_waitcnt vmcnt(0)")
    g("v_xor_b32 v16, s92, v128\nv_xor_b32 v17, s93, v129\nv_or_b32 v16, v16, v17")
    g("v_cmp_ne_u32 vcc, 0, v16")
    g(f"s_add_u32 s71, s71, 1\ns_cmp_ge_u32 s71, {maxpoll}\ns_cbranch_scc1 L_tdone")
    g("s_cmp_lg_u64 vcc, 0\ns_cbranch_scc1 L_tpoll")
    g("L_tdone:")
    g(f"s_lshl_b32 s11, s4, 15\ns_lshr_b32 s13, s7, 2\ns_lshl_b32 s13, s13, 10\ns_add_u32 s11, s11, s13\ns_lshl_b32 s13, s6, 8\ns_add_u32 s11, s11, s13\ns_and_b32 s13, s7, 3\ns_lshl_b32 s13, s13, 6\ns_add_u32 s11, s11, s13\ns_add_u32 s11, s11, {WS_O:#x}")
    g("s_lshl_b32 s13, s15, 13\ns_add_u32 s68, s11, s13")
    g(f"s_lshl_b32 s62, s4, 9\ns_lshl_b32 s13, s6, 5\ns_add_u32 s62, s62, s13\ns_and_b32 s13, s7, 3\ns_lshl_b32 s13, s13, 3\ns_add_u32 s62, s62, s13\ns_lshr_b32 s13, s7, 2\ns_lshl_b32 s13, s13, 2\ns_add_u32 s62, s62, s13\ns_add_u32 s62, s62, {WS_LSE:#x}")
    g("s_lshl_b32 s13, s15, 7\ns_add_u32 s62, s62, s13")
    g("s_call_b64 s[100:101], L_fsetup")
    g("s_mov_b64 exec, 1")
    if local:
        g("s_cmp_lg_u32 s1, 0\ns_cbranch_scc1 L_lstg")
        g(f"buffer_store_dword v{VLSE}, v{VZ}, s[44:47], s62 offen")
        g("s_branch L_lsd")
        g("L_lstg:")
    g(f"buffer_store_dword v{VLSE}, v{VZ}, s[44:47], s62 offen sc1")
    g("L_lsd:")
    g("s_mov_b64 exec, -1")
    g("s_waitcnt lgkmcnt(0)")
    TS(4)
    g("s_barrier")
    TS(5)
    for w in range(4):
        g(f"ds_read_b64 v[{16+2*w}:{17+2*w}], v{VOPR} offset:{L_OP + OPW*w}")
    g("s_waitcnt lgkmcnt(0)")
    g(f"v_pk_mul_f32 v[16:17], v[16:17], v[{FA}:{FA+1}] op_sel:[0,0] op_sel_hi:[1,0]")
    g(f"v_pk_mul_f32 v[20:21], v[20:21], v[{FA+2}:{FA+3}] op_sel:[0,0] op_sel_hi:[1,0]")
    g(f"v_pk_fma_f32 v[16:17], v[18:19], v[{FA}:{FA+1}], v[16:17] op_sel:[0,1,0] op_sel_hi:[1,1,1]")
    g(f"v_pk_fma_f32 v[20:21], v[22:23], v[{FA+2}:{FA+3}], v[20:21] op_sel:[0,1,0] op_sel_hi:[1,1,1]")
    g("v_pk_add_f32 v[16:17], v[16:17], v[20:21]")
    g("v_cvt_pk_bf16_f32 v16, v16, v17\nv_min_u32 v16, -2, v16")
    if local:
        g("s_cmp_lg_u32 s1, 0\ns_cbranch_scc1 L_ostg")
        g(f"buffer_store_dword v16, v{VL4}, s[44:47], s68 offen")
        TS(6)
        g("s_branch L_B5")
        g("L_ostg:")
    g(f"buffer_store_dword v16, v{VL4}, s[44:47], s68 offen sc1")
    TS(6)
    g("s_branch L_B5")

    g("L_fsetup:")
    g(f"""
    s_sub_u32 s63, s3, 4
    s_lshr_b32 s13, s5, 4
    s_lshl_b32 s14, s4, 1
    s_add_u32 s13, s13, s14
    s_lshl_b32 s13, s13, 11
    s_and_b32 s14, s5, 15
    s_lshl_b32 s14, s14, 7
    s_add_u32 s13, s13, s14
    v_lshlrev_b32 v{VH2S}, 15, v3
    v_lshl_add_u32 v{VH2S}, v2, 3, v{VH2S}
    v_lshlrev_b32 v{VGP}, 3, v1
    """)
    g(f"s_add_u32 s69, s13, {WS_H2:#x}")
    srd(56, 16, 4096)
    g(f"""
    v_and_b32 v8, 1, v3
    v_lshlrev_b32 v8, 1, v8
    v_lshrrev_b32 v9, 1, v3
    v_or_b32 v8, v8, v9
    v_lshl_add_u32 v8, v2, 2, v8
    s_lshl_b32 s8, s63, 6
    v_add_u32 v8, s8, v8
    v_lshlrev_b32 v{VCOL}, 1, v8
    s_and_b32 s8, s2, 3
    s_lshl_b32 s43, s8, 10
    v_lshlrev_b32 v{VH2}, 11, v3
    v_lshl_add_u32 v{VH2}, v2, 4, v{VH2}
    s_lshl_b32 s11, s63, 3
    v_lshrrev_b32 v{VST}, 5, v1
    v_lshlrev_b32 v{VST}, 2, v{VST}
    v_add_u32 v{VST}, s11, v{VST}
    s_cmp_ge_u32 s2, 4
    s_cbranch_scc1 L_fs1
    buffer_load_ushort v{VX}, v{VCOL}, s[56:59], s43 offen
    L_fs1:
    s_setpc_b64 s[100:101]
    """)

    g("L_Q2:")
    g("s_setprio 1")
    g("s_waitcnt vmcnt(18)")
    g("s_mov_b32 s8, 0x3f803f80\nv_mov_b32 v10, 0\nv_mov_b32 v11, 0\nv_mov_b32 v12, 0\nv_mov_b32 v13, 0")
    for i in range(0, 16, 2):
        g(f"v_dot2_f32_bf16 v10, v{16+i}, s8, v10")
        g(f"v_dot2_f32_bf16 v11, v{16+i}, v{16+i}, v11")
        g(f"v_dot2_f32_bf16 v12, v{17+i}, s8, v12")
        g(f"v_dot2_f32_bf16 v13, v{17+i}, v{17+i}, v13")
    g("s_nop 2")
    g("v_pk_add_f32 v[10:11], v[10:11], v[12:13]")
    for m in ("row_ror:4", "row_ror:8"):
        g(f"v_add_f32_dpp v10, v10, v10 {m} row_mask:0xf bank_mask:0xf")
        g(f"v_add_f32_dpp v11, v11, v11 {m} row_mask:0xf bank_mask:0xf")
    for sw in ("v_permlane32_swap_b32", "v_permlane16_swap_b32"):
        g("v_mov_b32 v12, v10\nv_mov_b32 v13, v11")
        g(f"{sw} v10, v12\n{sw} v11, v13")
        g("v_pk_add_f32 v[10:11], v[10:11], v[12:13]")
    g(f"s_mov_b32 s8, {f2u(1.0/512):#x}\ns_mov_b32 s9, {f2u(1.0/512):#x}\ns_mov_b32 s10, {f2u(1e-5):#x}")
    ln_scalar(10, 11, 12)
    g("s_waitcnt vmcnt(16)")
    for d in range(4):
        a = 16 + 2 * d
        g(f"v_lshlrev_b32 v{a}, 16, v{32+d}\nv_and_b32 v{a+1}, s42, v{32+d}")
    for d in range(4):
        a = 16 + 2 * d
        g(f"v_pk_add_f32 v[{a}:{a+1}], v[{a}:{a+1}], v[10:11] op_sel:[0,0] op_sel_hi:[1,0] neg_lo:[0,1] neg_hi:[0,1]")
    for d in range(4):
        a = 16 + 2 * d
        g(f"v_cvt_pk_bf16_f32 v{32+d}, v{a}, v{a+1}")
    for d in range(4):
        a = 16 + 2 * d
        g(f"v_lshlrev_b32 v{a}, 16, v{32+d}\nv_and_b32 v{a+1}, s42, v{32+d}")
    for d in range(4):
        a = 16 + 2 * d
        g(f"v_pk_mul_f32 v[{a}:{a+1}], v[{a}:{a+1}], v[10:11] op_sel:[0,1] op_sel_hi:[1,1]")
    for d in range(4):
        a = 16 + 2 * d
        g(f"v_cvt_pk_bf16_f32 v{32+d}, v{a}, v{a+1}")
    g("""
    v_lshlrev_b32 v8, 8, v4
    v_lshl_add_u32 v8, v3, 4, v8
    v_lshl_add_u32 v9, v7, 6, v8
    """)
    g(f"ds_write_b128 v9, v[32:35] offset:{L_XN}")
    for kb in range(4):
        g(f"ds_read_b128 v[{36+4*kb}:{39+4*kb}], v8 offset:{L_XN + 64*kb}")
    g("""
    v_lshrrev_b32 v9, 2, v2
    v_lshl_add_u32 v9, v3, 2, v9
    v_bfe_u32 v14, v9, 1, 2
    v_lshlrev_b32 v9, 7, v9
    v_lshl_add_u32 v9, v4, 3, v9
    """)
    for mt in range(4):
        g(f"v_xor_b32 v15, {mt}, v14")
        g(f"v_lshl_add_u32 v{10+mt}, v15, 5, v9")
    g("s_waitcnt lgkmcnt(0)")
    tags()
    AF = 52
    for kb in range(4):
        g(f"s_waitcnt vmcnt({12-4*kb})")
        for mt in range(4):
            r = AF + 16 * kb + 4 * mt
            g(f"ds_read_b64_tr_b16 v[{r}:{r+1}], v{10+mt} offset:{L_WQT + 4096*kb}")
            g(f"ds_read_b64_tr_b16 v[{r+2}:{r+3}], v{10+mt} offset:{L_WQT + 4096*kb + 2048}")
    for z in (1, 2, 3):
        g(f"v_cmp_eq_u32_e64 s[{50+2*z}:{51+2*z}], {z}, v7")
    g("""
    v_lshlrev_b32 v8, 14, v4
    v_lshl_add_u32 v8, v7, 7, v8
    v_lshl_add_u32 v8, v3, 5, v8
    s_lshl_b32 s8, s4, 16
    s_lshl_b32 s9, s6, 12
    s_add_u32 s8, s8, s9
    s_lshl_b32 s9, s7, 9
    s_add_u32 s8, s8, s9
    """)
    g(f"s_add_u32 s8, s8, {WS_QS:#x}")
    g("s_add_u32 s93, s93, s0")
    g("s_waitcnt lgkmcnt(0)")
    QD = 116
    for kb in range(4):
        for mt in range(4):
            r = AF + 16 * kb + 4 * mt
            c = "0" if kb == 0 else f"v[{QD+4*mt}:{QD+4*mt+3}]"
            g(f"v_mfma_f32_16x16x32_bf16 v[{QD+4*mt}:{QD+4*mt+3}], v[{r}:{r+3}], v[{36+4*kb}:{39+4*kb}], {c}")
    for z in (1, 2, 3):
        for i in range(4):
            g(f"v_cndmask_b32_e64 v{QD+i}, v{QD+i}, v{QD+4*z+i}, s[{50+2*z}:{51+2*z}]")
    spin(F_CL, 1)
    g(f"""
    v_mov_b32 v136, v{QD}
    v_mov_b32 v137, v{QD+1}
    v_xor_b32 v138, s92, v{QD+1}
    v_xor_b32 v139, s93, v{QD}
    v_mov_b32 v140, v{QD+2}
    v_mov_b32 v141, v{QD+3}
    v_xor_b32 v142, s92, v{QD+3}
    v_xor_b32 v143, s93, v{QD+2}
    s_add_u32 s9, s8, {QSL:#x}
    s_setprio 3
    buffer_store_dwordx4 v[136:139], v8, s[44:47], s9 offen
    buffer_store_dwordx4 v[140:143], v8, s[44:47], s9 offen offset:16
    buffer_store_dwordx4 v[136:139], v8, s[44:47], s8 offen sc1
    buffer_store_dwordx4 v[140:143], v8, s[44:47], s8 offen offset:16 sc1
    s_setprio 0
    """)
    TS(2)
    g("s_branch L_C")

    g("L_C123:")
    g("s_cmp_lg_u32 s3, 1\ns_cbranch_scc1 L_C23")
    g("v_lshlrev_b32 v4, 2, v2")
    g(f"ds_write_b32 v4, v{VZ} offset:{L_FL}")
    srd(48, 28, 3584)
    srd(52, 30, 3584)
    srd(56, 32, 3584)
    g("v_lshlrev_b32 v6, 4, v1")
    g("s_waitcnt lgkmcnt(0)")
    if not mwearly: g("s_barrier")
    for a in range(3):
        g(f"s_mov_b32 m0, {L_MW + 4096*a}")
        for i in range(4):
            if not nomw: g(f"buffer_load_dwordx4 v6, s[{48+4*a}:{51+4*a}], 0 offen offset:{1024*i} lds")
    if mwearly: g("s_barrier")
    g("s_waitcnt vmcnt(0)")
    signal(F_MW)
    g("s_branch L_C")
    g("L_C23:")
    g("s_cmp_eq_u32 s3, 2\ns_cbranch_scc1 L_C2")
    g("s_barrier")
    g("s_waitcnt vmcnt(0)")
    g("s_branch L_C")
    g("L_C2:")
    g("""
    s_lshl_b32 s11, s4, 5
    s_add_u32 s11, s11, s5
    v_mov_b32 v8, -1
    v_mov_b32 v9, -1
    v_mov_b32 v10, -1
    v_mov_b32 v11, -1
    v_lshlrev_b32 v4, 4, v1
    """)
    g(f"s_lshl_b32 s11, s4, 15\ns_lshr_b32 s13, s7, 2\ns_lshl_b32 s13, s13, 10\ns_add_u32 s11, s11, s13\ns_lshl_b32 s13, s6, 8\ns_add_u32 s11, s11, s13\ns_and_b32 s13, s7, 3\ns_lshl_b32 s13, s13, 6\ns_add_u32 s11, s11, s13\ns_add_u32 s11, s11, {WS_O:#x}")
    g(f"s_lshl_b32 s62, s4, 9\ns_lshl_b32 s13, s6, 5\ns_add_u32 s62, s62, s13\ns_and_b32 s13, s7, 3\ns_lshl_b32 s13, s13, 3\ns_add_u32 s62, s62, s13\ns_lshr_b32 s13, s7, 2\ns_lshl_b32 s13, s13, 2\ns_add_u32 s62, s62, s13\ns_add_u32 s62, s62, {WS_LSE:#x}")
    g("s_mov_b32 s12, s11")
    g("v_lshrrev_b32 v12, 2, v1\nv_lshlrev_b32 v12, 11, v12\nv_and_b32 v13, 3, v1\nv_lshl_add_u32 v12, v13, 4, v12\nv_lshlrev_b32 v13, 7, v1")
    g("buffer_store_dwordx4 v[8:11], v12, s[44:47], s12 offen sc1")
    g("""
    v_lshlrev_b32 v5, 15, v3
    v_lshl_add_u32 v5, v2, 3, v5
    s_lshr_b32 s13, s5, 4
    s_lshl_b32 s14, s4, 1
    s_add_u32 s13, s13, s14
    s_lshl_b32 s13, s13, 11
    s_and_b32 s14, s5, 15
    s_lshl_b32 s14, s14, 7
    s_add_u32 s13, s13, s14
    """)
    g(f"s_add_u32 s13, s13, {WS_H2:#x}")
    g("buffer_store_dwordx2 v[8:9], v5, s[44:47], s13 offen sc1")
    g("s_mov_b64 exec, 15")
    g("buffer_store_dword v8, v13, s[44:47], s62 offen sc1")
    g(f"s_mul_i32 s14, s2, 48\ns_add_u32 s14, s14, {WS_TAB:#x}")
    g("s_mov_b64 exec, 7")
    g("buffer_store_dwordx4 v[8:11], v4, s[44:47], s14 offen sc1")
    g("s_mov_b64 exec, -1")
    g("s_barrier")
    g("s_waitcnt vmcnt(0) lgkmcnt(0)")
    tags()
    signal(F_CL)
    if pretouch:
        g("s_setprio 3")
        g("buffer_load_dwordx4 v[152:155], v12, s[44:47], s12 offen sc1")
    g("v_mov_b32 v8, s92\nv_mov_b32 v9, s93")
    g(f"s_lshl_b32 s9, s2, 3\ns_add_u32 s9, s9, {WS_T:#x}")
    g("s_mov_b64 exec, 1")
    g(f"buffer_store_dwordx2 v[8:9], v{VZ}, s[44:47], s9 offen sc1")
    g("s_mov_b64 exec, -1")
    g("s_setprio 0")
    signal(F_MW)

    MWB, EH, EA, ES = 16, 100, 102, 108
    g("L_C:")
    spin(F_MW, 2)
    TS(3)
    if dbg: g("s_memtime s[82:83]")
    g(f"v_lshlrev_b32 v4, 2, v1")
    for a in range(3):
        for k in range(14):
            g(f"ds_read_b32 v{MWB+28*a+2*k+1}, v4 offset:{L_MW + 4096*a + 256*k}")
    g(f"s_mov_b32 s8, {f2u(ALPHA):#x}\ns_mov_b32 s9, {f2u(ALPHA):#x}\ns_mov_b32 s10, {f2u(1.0/ALPHA):#x}\ns_mov_b32 s11, {f2u(1.0/ALPHA):#x}")
    g("s_waitcnt lgkmcnt(0)")
    for a in range(3):
        for k in range(14):
            r = MWB + 28 * a + 2 * k
            g(f"v_lshlrev_b32 v{r}, 16, v{r+1}")
            g(f"v_and_b32 v{r+1}, s42, v{r+1}")
    for a in range(3):
        for k in range(14):
            r = MWB + 28 * a + 2 * k
            g(f"v_pk_mul_f32 v[{r}:{r+1}], v[{r}:{r+1}], s[{8 if a < 2 else 10}:{9 if a < 2 else 11}]")
    g(f"s_mov_b32 s62, {f2u(BETA):#x}\ns_mov_b32 s63, {f2u(BETA):#x}")
    g("s_mul_i32 s95, s2, 24\ns_mul_i32 s96, s3, 6\ns_add_u32 s95, s95, s96\ns_add_u32 s96, s95, 6")
    g(f"v_lshlrev_b32 v{VB2}, 16, v{VB2}")
    g("L_tab1:")
    g(f"s_cmp_ge_u32 s95, {NBIN*128}\ns_cselect_b32 s97, {0x8000 - NBIN*128}, 0")
    g(f"s_add_u32 s97, s97, s95\ns_add_u32 s97, s97, {EXP0 << 7}\ns_lshl_b32 s97, s97, 16\nv_mov_b32 v{EH}, s97")
    if not notab: g("s_call_b64 s[100:101], L_eval")
    g(f"v_alignbit_b32 v136, v137, v136, 16\nv_alignbit_b32 v137, v138, v137, 16\nv_alignbit_b32 v138, v{EA}, v138, 16")
    g("s_add_u32 s95, s95, 1\ns_cmp_lt_u32 s95, s96\ns_cbranch_scc1 L_tab1")
    g(f"s_lshl_b32 s97, s96, 1\ns_add_u32 s97, s97, {WS_TAB - 12:#x}")
    g("s_mov_b32 exec_lo, 0\ns_mov_b32 exec_hi, 0x80000000")
    g("s_setprio 3")
    g(f"buffer_store_dwordx3 v[136:138], v{VZ}, s[44:47], s97 offen sc1")
    g("s_mov_b64 exec, -1")
    TS(4)
    if dbg: g("s_memtime s[84:85]")
    g("s_cmp_ge_u32 s2, 4\ns_cbranch_scc1 L_fin")
    if dry:
        g("s_cmp_lg_u32 s3, 0\ns_cbranch_scc1 L_dry_ret")
        g("s_mov_b64 s[98:99], 0\ns_mov_b64 exec, 0\ns_branch L_fseg")
    g("L_dry_ret:")
    g("s_mov_b64 s[98:99], -1\ns_mov_b64 exec, -1")
    srd(48, 36, 4096)
    g(f"v_lshlrev_b32 v4, 4, v1\ns_mul_i32 s12, s3, 3072\ns_add_u32 m0, s12, {L_TAB}\ns_add_u32 s12, s12, {WS_TAB:#x}")
    g("s_barrier\ns_barrier")
    g(f"s_mov_b32 s71, 0\ns_mul_i32 s13, s3, 3072\nv_add_u32 v5, s13, v4")
    g("L_tfetch:")
    for i in range(3):
        g(f"buffer_load_dwordx4 v4, s[44:47], s12 offen offset:{1024*i} sc1 lds")
    g("s_waitcnt vmcnt(0)")
    for i in range(3):
        g(f"ds_read_b128 v[{108+4*i}:{111+4*i}], v5 offset:{L_TAB + 1024*i}")
    g("s_waitcnt lgkmcnt(0)")
    g("v_max3_u32 v108, v108, v109, v110\nv_max3_u32 v111, v111, v112, v113\nv_max3_u32 v114, v114, v115, v116\nv_max3_u32 v117, v117, v118, v119")
    g("v_max3_u32 v108, v108, v111, v114\nv_max_u32 v108, v108, v117")
    g("v_cmp_eq_u32 vcc, -1, v108")
    g("s_add_u32 s71, s71, 1\ns_cmp_ge_u32 s71, 4\ns_cbranch_scc1 L_tfd")
    g("s_cmp_lg_u64 vcc, 0\ns_cbranch_scc1 L_tfetch")
    g("L_tfd:")
    g("s_barrier\ns_barrier" if aln2 else "s_barrier\ns_barrier\ns_barrier")
    g(f"ds_read_b32 v4, v{VFL} offset:{F_MISS}")
    g("s_waitcnt lgkmcnt(0)")
    g("v_readfirstlane_b32 s96, v4")
    g("s_mov_b32 s95, s3")
    g("s_lshl_b32 s43, s2, 10")
    g("L_fb:")
    g("s_cmp_ge_u32 s95, s96\ns_cbranch_scc1 L_fin")
    g("s_lshl_b32 s8, s95, 3\nv_mov_b32 v4, s8")
    g(f"ds_read_b64 v[6:7], v4 offset:{L_MISS}")
    g("s_waitcnt lgkmcnt(0)")
    g(f"v_and_b32 v{EH}, s42, v6\nv_and_b32 v6, 0xffff, v6")
    g("s_call_b64 s[100:101], L_eval")
    g(f"v_and_b32 v8, s42, v{EA}\nv_add_f32 v8, v8, v7\nv_cvt_pk_bf16_f32 v8, v8, v8")
    g("s_mov_b32 exec_lo, 0\ns_mov_b32 exec_hi, 0x80000000")
    g("buffer_store_short v8, v6, s[48:51], s43 offen")
    g("s_mov_b64 exec, -1")
    g("s_add_u32 s95, s95, 4\ns_branch L_fb")

    g("L_eval:")
    NB = 7
    for b0 in range(0, 14, NB):
        ks = list(range(b0, b0 + NB))
        S_ = lambda i: ES + 4 * i
        Z = lambda i: ES + 2 + 4 * i
        for i, k in enumerate(ks):
            w_ = MWB + 2 * k
            bb = MWB + 28 + 2 * k
            g(f"v_pk_fma_f32 v[{S_(i)}:{S_(i)+1}], v[{w_}:{w_+1}], v[{EH}:{EH+1}], v[{bb}:{bb+1}] op_sel:[0,0,0] op_sel_hi:[1,0,1]")
        for i, k in enumerate(ks):
            g(f"v_pk_fma_f32 v[{Z(i)}:{Z(i)+1}], v[{S_(i)}:{S_(i)+1}], v[{S_(i)}:{S_(i)+1}], s[62:63]")
        for i, k in enumerate(ks):
            g(f"v_pk_mul_f32 v[{Z(i)}:{Z(i)+1}], v[{Z(i)}:{Z(i)+1}], v[{S_(i)}:{S_(i)+1}]")
        for i, k in enumerate(ks):
            g(f"v_exp_f32 v{Z(i)}, v{Z(i)}\nv_exp_f32 v{Z(i)+1}, v{Z(i)+1}")
            vv = MWB + 56 + 2 * k
            g(f"v_pk_mul_f32 v[{S_(i)}:{S_(i)+1}], v[{S_(i)}:{S_(i)+1}], v[{vv}:{vv+1}]")
        for i, k in enumerate(ks):
            g(f"v_pk_add_f32 v[{Z(i)}:{Z(i)+1}], v[{Z(i)}:{Z(i)+1}], 1.0 op_sel_hi:[1,0]")
        for i, k in enumerate(ks):
            g(f"v_rcp_f32 v{Z(i)}, v{Z(i)}\nv_rcp_f32 v{Z(i)+1}, v{Z(i)+1}")
        for i, k in enumerate(ks):
            acc = EA + 2 * (i & 1)
            if b0 == 0 and i < 2:
                g(f"v_pk_mul_f32 v[{acc}:{acc+1}], v[{S_(i)}:{S_(i)+1}], v[{Z(i)}:{Z(i)+1}]")
            else:
                g(f"v_pk_fma_f32 v[{acc}:{acc+1}], v[{S_(i)}:{S_(i)+1}], v[{Z(i)}:{Z(i)+1}], v[{acc}:{acc+1}]")
    g(f"v_pk_add_f32 v[{EA}:{EA+1}], v[{EA}:{EA+1}], v[{EA+2}:{EA+3}]\nv_add_f32 v{EA}, v{EA}, v{EA+1}")
    for m in DPP6:
        g(f"v_add_f32_dpp v{EA}, v{EA}, v{EA} {m}")
    g(f"""
    v_cvt_pk_bf16_f32 v{EA}, v{EA}, v{EA}
    v_and_b32 v{EA}, s42, v{EA}
    v_add_f32 v{EA}, v{EA}, v{VB2}
    v_cvt_pk_bf16_f32 v{EA}, v{EA}, v{EA}
    s_setpc_b64 s[100:101]
    """)

    g("L_V:")
    g("s_setprio 2")
    g("s_barrier")
    g("s_call_b64 s[100:101], L_fsetup")
    srd(48, 20, 0x4000000)
    srd(52, 24, 0x400000)
    VPAY, VW0, VW1, VWT, VGW = P0, P0 + 1, P0 + 2, P0 + 3, P0 + 4
    g("""
    v_lshlrev_b32 v5, 4, v2
    v_lshl_add_u32 v5, v3, 10, v5
    v_lshlrev_b32 v14, 4, v1
    s_lshl_b32 s11, s15, 11
    v_add_u32 v14, s11, v14
    """)
    g(f"v_mul_u32_u24 v15, {OPH}, v2")
    g("v_lshl_add_u32 v15, v3, 4, v15")
    g(f"s_mul_i32 s11, s15, {OPW}\nv_add_u32 v15, s11, v15")
    g("""
    v_and_b32 v7, 1, v3
    v_lshlrev_b32 v8, 6, v7
    v_bfe_u32 v9, v1, 2, 2
    v_lshl_add_u32 v8, v9, 3, v8
    v_lshrrev_b32 v9, 5, v1
    v_add_u32 v8, v8, v9
    v_lshlrev_b32 v8, 10, v8
    v_and_b32 v9, 3, v1
    v_lshlrev_b32 v7, 1, v7
    v_xor_b32 v9, v9, v7
    v_lshl_add_u32 v8, v9, 4, v8
    s_lshl_b32 s8, s4, 19
    s_lshr_b32 s9, s5, 4
    s_lshl_b32 s9, s9, 18
    s_add_u32 s8, s8, s9
    s_and_b32 s9, s5, 15
    s_lshl_b32 s9, s9, 6
    s_add_u32 s8, s8, s9
    s_lshr_b32 s9, s15, 1
    s_lshl_b32 s9, s9, 17
    s_add_u32 s8, s8, s9
    s_and_b32 s9, s15, 1
    s_lshl_b32 s9, s9, 12
    s_add_u32 s8, s8, s9
    s_lshl_b32 s14, s15, 12
    """)
    g(f"s_add_u32 s14, s14, {L_WOT}")
    g("""
    s_lshr_b32 s9, s5, 4
    s_lshl_b32 s9, s9, 1
    s_lshr_b32 s10, s15, 1
    s_add_u32 s9, s9, s10
    """)
    g(f"s_lshl_b32 s10, s4, 15\ns_add_u32 s10, s10, {WS_O:#x}")
    g("s_lshl_b32 s11, s9, 13\ns_add_u32 s10, s10, s11\ns_and_b32 s11, s15, 1\ns_lshl_b32 s11, s11, 12\ns_add_u32 s60, s10, s11")
    g(f"s_lshl_b32 s10, s4, 9\ns_lshl_b32 s11, s9, 7\ns_add_u32 s58, s10, s11\ns_add_u32 s58, s58, {WS_LSE:#x}")
    g(f"""
    v_lshrrev_b32 v6, 2, v2
    v_and_b32 v7, 3, v2
    v_lshlrev_b32 v{VWT}, 3, v2
    v_lshlrev_b32 v{VPAY}, 6, v2
    v_lshl_add_u32 v{VPAY}, v3, 4, v{VPAY}
    v_lshrrev_b32 v7, 2, v2
    v_lshl_add_u32 v7, v3, 2, v7
    v_lshlrev_b32 v7, 6, v7
    v_and_b32 v9, 3, v2
    v_lshl_add_u32 v7, v9, 3, v7
    v_and_b32 v9, 1, v3
    v_lshl_add_u32 v{VW0}, v9, 5, v7
    v_xor_b32 v9, 1, v9
    v_lshl_add_u32 v{VW1}, v9, 5, v7
    v_add_u32 v{VW0}, s14, v{VW0}
    v_add_u32 v{VW1}, s14, v{VW1}
    v_lshlrev_b32 v{VGW}, 7, v6
    v_lshl_add_u32 v{VGW}, v3, 4, v{VGW}
    s_lshl_b32 s10, s15, 9
    v_add_u32 v{VGW}, s10, v{VGW}
    s_mov_b32 s96, 0x11111111
    s_mov_b32 s97, 0x11111111
    s_mov_b32 s12, 0x05040100
    s_mov_b32 s13, 0x07060302
    s_mov_b32 s56, 0x000f000f
    s_mov_b32 s57, 0x000f000f
    """)
    if kneed:
        spin(F_K, kneed, sl=1)
    else:
        spin(F_K, 1, vaddr=VFW, sl=slp)
    TS(4)
    VR, AO, AT, PA = 16, 80, 112, 6
    n = 0
    for T in range(4):
        for i in range(4):
            r = VR + 16 * T + 4 * i
            if n >= limv:
                g(f"s_waitcnt vmcnt({limv-1})")
            g(f"buffer_load_dwordx4 v[{r}:{r+3}], v5, s[48:51], s{64+T} offen offset:{256*i} {kvflags}")
            n += 1
    if wolast:
        signal(F_VI)
        spin(F_VI, 4)
    for i in range(4):
        dI = 32 * (i & 1) + 2 * (i >> 1)
        g(f"s_add_u32 s9, s8, {dI*1024:#x}")
        g(f"s_add_u32 m0, s14, {1024*i}")
        g(f"buffer_load_dwordx4 v8, s[52:55], s9 offen {wflags} lds")
    TS(5)
    spin(F_P, 1, vaddr=VFW)
    g(f"ds_read_b128 v[{PA}:{PA+3}], v14 offset:{L_PL}")
    g(f"ds_read_b128 v[{PA+4}:{PA+7}], v14 offset:{L_PL+1024}")
    g("s_waitcnt lgkmcnt(0)")
    tb = lambda j: AT + 4 * j
    for u_ in range(2):
        for q in range(4):
            T = 2 * u_ + (q >> 1)
            i0 = 2 * (q & 1)
            done = 4 * T + i0 + 2
            g(f"s_waitcnt vmcnt({20-done})")
            a = VR + 16 * T + 4 * i0
            b_ = a + 4
            for dw in range(4):
                g(f"v_perm_b32 v{tb(2*dw)+q}, v{b_+dw}, v{a+dw}, s12")
                g(f"v_perm_b32 v{tb(2*dw+1)+q}, v{b_+dw}, v{a+dw}, s13")
        for j in range(8):
            c = "0" if u_ == 0 else f"v[{AO+4*j}:{AO+4*j+3}]"
            g(f"v_mfma_f32_16x16x32_bf16 v[{AO+4*j}:{AO+4*j+3}], v[{tb(j)}:{tb(j)+3}], v[{PA+4*u_}:{PA+4*u_+3}], {c}")
    g("s_mov_b64 exec, s[56:57]")
    for j in range(8):
        g(f"ds_write_b128 v15, v[{AO+4*j}:{AO+4*j+3}] offset:{L_OP + 64*j}")
    g("s_mov_b64 exec, -1")
    TS(6)
    g("s_waitcnt lgkmcnt(0)")
    g("s_barrier")
    PAY, WF, DD = 16, 32, 48

    def h1loads(hf):
        for kb in range(2):
            r = PAY + 8 * hf + 4 * kb
            g(f"buffer_load_dwordx4 v[{r}:{r+3}], v{VPAY}, s[44:47], s60 offen offset:{2048*kb + 1024*hf} sc1")
        g(f"buffer_load_dword v{64+hf}, v{VWT}, s[44:47], s58 offen offset:{4*hf} sc1")
    TS(2)
    h1loads(0)
    h1loads(1)
    g("s_waitcnt vmcnt(6)")
    TS(3)
    for kb in range(2):
        for mt in range(2):
            r = WF + 8 * kb + 4 * mt
            g(f"ds_read_b64_tr_b16 v[{r}:{r+1}], v{VW0+mt} offset:{2048*kb}")
            g(f"ds_read_b64_tr_b16 v[{r+2}:{r+3}], v{VW0+mt} offset:{2048*kb+1024}")
    if dbg:
        g("s_waitcnt vmcnt(0)")
        TS(4)
    g("s_mov_b32 s71, 0")
    g("L_h1chk:")
    g("""
    s_waitcnt vmcnt(0)
    v_max3_u32 v8, v16, v17, v18
    v_max3_u32 v9, v24, v25, v26
    v_max3_u32 v8, v8, v19, v20
    v_max3_u32 v9, v9, v27, v28
    v_max3_u32 v8, v8, v21, v22
    v_max3_u32 v9, v9, v29, v30
    v_max3_u32 v8, v8, v23, v64
    v_max3_u32 v9, v9, v31, v65
    v_cmp_eq_u32_e64 s[52:53], -1, v8
    v_cmp_eq_u32_e64 s[54:55], -1, v9
    s_or_b64 s[56:57], s[52:53], s[54:55]
    s_cbranch_scc0 L_h1done
    """)
    g(f"s_add_u32 s71, s71, 1\ns_cmp_ge_u32 s71, {maxpoll}\ns_cbranch_scc1 L_h1done")
    for hf in range(2):
        g(f"s_mov_b64 exec, s[{52+2*hf}:{53+2*hf}]")
        g(f"s_cbranch_execz L_h1s{hf}")
        h1loads(hf)
        g(f"L_h1s{hf}:")
    g("s_mov_b64 exec, -1\ns_branch L_h1chk")
    g("L_h1done:")
    g("s_waitcnt lgkmcnt(0)")
    TS(7)
    if dbg:
        g("s_mov_b32 s74, s71\ns_mov_b32 s75, 0")
    wts = ["v_max_f32 v8, v64, v65",
           "v_max_f32_dpp v8, v8, v8 quad_perm:[1,0,3,2] row_mask:0xf bank_mask:0xf",
           "v_max_f32_dpp v8, v8, v8 quad_perm:[2,3,0,1] row_mask:0xf bank_mask:0xf",
           "v_sub_f32 v64, v64, v8\nv_sub_f32 v65, v65, v8",
           "v_exp_f32 v64, v64\nv_exp_f32 v65, v65",
           "v_add_f32 v8, v64, v65",
           "v_add_f32_dpp v8, v8, v8 quad_perm:[1,0,3,2] row_mask:0xf bank_mask:0xf",
           "v_add_f32_dpp v8, v8, v8 quad_perm:[2,3,0,1] row_mask:0xf bank_mask:0xf"]
    wi = 0
    for kb in range(2):
        for mt in range(2):
            for hf in range(2):
                d = DD + 8 * mt + 4 * hf
                b_ = PAY + 8 * hf + 4 * kb
                a_ = WF + 8 * kb + 4 * mt
                c = "0" if kb == 0 else f"v[{d}:{d+3}]"
                g(f"v_mfma_f32_16x16x32_bf16 v[{d}:{d+3}], v[{a_}:{a_+3}], v[{b_}:{b_+3}], {c}")
                g(wts[wi]); wi += 1
    g("v_rcp_f32 v8, v8")
    g("v_pk_mul_f32 v[64:65], v[64:65], v[8:9] op_sel:[0,0] op_sel_hi:[1,0]")
    for mt in range(2):
        for h_ in range(2):
            d = DD + 8 * mt + 2 * h_
            g(f"v_pk_mul_f32 v[{d}:{d+1}], v[{d}:{d+1}], v[64:65] op_sel:[0,0] op_sel_hi:[1,0]")
    for mt in range(2):
        for h_ in range(2):
            d = DD + 8 * mt + 2 * h_
            g(f"v_pk_fma_f32 v[{d}:{d+1}], v[{d+4}:{d+5}], v[64:65], v[{d}:{d+1}] op_sel:[0,1,0] op_sel_hi:[1,1,1]")
    for m in ("quad_perm:[1,0,3,2]", "quad_perm:[2,3,0,1]"):
        for mt in range(2):
            for i in range(4):
                d = DD + 8 * mt + i
                g(f"v_add_f32_dpp v{d}, v{d}, v{d} {m} row_mask:0xf bank_mask:0xf")
    g("s_mov_b64 exec, s[96:97]")
    g(f"ds_write_b128 v{VGW}, v[{DD}:{DD+3}] offset:{L_GP}")
    g(f"ds_write_b128 v{VGW}, v[{DD+8}:{DD+11}] offset:{L_GP+64}")
    g("s_mov_b64 exec, -1")
    g("s_waitcnt lgkmcnt(0)")

    g("L_B5:")
    g("s_barrier")
    TS(8, 'V')
    TS(7, 'K')
    g("s_cmp_lg_u32 s3, 4\ns_cbranch_scc1 L_H2")
    for w in range(4):
        g(f"ds_read_b64 v[{16+2*w}:{17+2*w}], v{VGP} offset:{L_GP + 512*w}")
    g("s_waitcnt lgkmcnt(0)")
    g("v_pk_add_f32 v[16:17], v[16:17], v[18:19]\nv_pk_add_f32 v[20:21], v[20:21], v[22:23]\nv_pk_add_f32 v[32:33], v[16:17], v[20:21]")
    g("v_min_u32 v32, -2, v32\nv_min_u32 v33, -2, v33")
    g(f"buffer_store_dwordx2 v[32:33], v{VH2S}, s[44:47], s69 offen sc1")
    g("L_H2:")
    g("s_cmp_ge_u32 s2, 4\ns_cbranch_scc1 L_fin")
    g("L_fseg:")
    g("s_lshl_b32 s8, s2, 15\ns_lshl_b32 s9, s63, 8\ns_add_u32 s8, s8, s9")
    g(f"s_add_u32 s64, s8, {WS_H2:#x}\ns_add_u32 s65, s64, 0x2000\ns_add_u32 s66, s64, 0x4000\ns_add_u32 s67, s64, 0x6000")
    g("s_cbranch_execz L_fs_a")
    for i in range(4):
        g(f"buffer_load_dwordx4 v[{16+4*i}:{19+4*i}], v{VH2}, s[44:47], s{64+i} offen sc1")
    g("L_fs_a:")
    g(f"s_mov_b32 s8, {f2u(1.0/512):#x}\ns_mov_b32 s9, {f2u(1.0/512):#x}\ns_mov_b32 s10, {f2u(1e-5):#x}")
    g("s_mov_b32 s60, 0x80000000\ns_mov_b32 s61, 0x80000000")
    srd(48, 36, 4096)
    g("s_mov_b32 s71, 0")
    g("L_h2chk:")
    g("s_waitcnt vmcnt(0)")
    for i in range(4):
        g(f"v_max3_u32 v{8+i}, v{16+4*i}, v{17+4*i}, v{18+4*i}")
    for i in range(4):
        g(f"v_max_u32 v{8+i}, v{8+i}, v{19+4*i}")
    g("v_max3_u32 v12, v8, v9, v10\nv_max_u32 v12, v12, v11")
    g("v_cmp_eq_u32 vcc, -1, v12")
    g("s_cmp_eq_u64 vcc, 0\ns_cbranch_scc1 L_h2done")
    g(f"s_add_u32 s71, s71, 1\ns_cmp_ge_u32 s71, {maxpoll}\ns_cbranch_scc1 L_h2done")
    for i in range(4):
        g(f"v_cmp_eq_u32_e64 s[{52+2*i}:{53+2*i}], -1, v{8+i}")
    for i in range(4):
        g(f"s_mov_b64 exec, s[{52+2*i}:{53+2*i}]")
        g(f"s_cbranch_execz L_h2s{i}")
        g(f"buffer_load_dwordx4 v[{16+4*i}:{19+4*i}], v{VH2}, s[44:47], s{64+i} offen sc1")
        g(f"L_h2s{i}:")
    g("s_mov_b64 exec, -1\ns_branch L_h2chk")
    g("L_h2done:")
    TS(9, 'V')
    TS(8, 'K')
    g(f"""
    v_lshlrev_b32 v{VX}, 16, v{VX}
    v_pk_add_f32 v[16:17], v[16:17], v[20:21]
    v_pk_add_f32 v[18:19], v[18:19], v[22:23]
    v_pk_add_f32 v[24:25], v[24:25], v[28:29]
    v_pk_add_f32 v[26:27], v[26:27], v[30:31]
    v_pk_add_f32 v[16:17], v[16:17], v[24:25]
    v_pk_add_f32 v[18:19], v[18:19], v[26:27]
    v_permlane32_swap_b32 v16, v17
    v_permlane32_swap_b32 v18, v19
    v_add_f32 v16, v16, v17
    v_add_f32 v18, v18, v19
    v_permlane16_swap_b32 v16, v18
    v_add_f32 v16, v16, v18
    v_cvt_pk_bf16_f32 v16, v16, v16
    v_and_b32 v16, s42, v16
    v_add_f32 v16, v16, v{VX}
    v_cvt_pk_bf16_f32 v16, v16, v16
    v_and_b32 v13, s42, v16
    """)

    def wave_stats(x, st_off, vmwait=False):
        g(f"v_mul_f32 v19, v{x}, v{x}\nv_mov_b32 v18, v{x}")
        g("v_permlane32_swap_b32 v18, v19\nv_add_f32 v18, v18, v19")
        for m in DPP6[:5]:
            g(f"v_add_f32_dpp v18, v18, v18 {m}")
        g("s_and_b64 exec, s[60:61], s[98:99]")
        g(f"ds_write_b32 v{VST}, v18 offset:{st_off}")
        g("s_mov_b64 exec, s[98:99]")
        g("s_waitcnt lgkmcnt(0)")
        g(f"s_cbranch_execz L_fs_b{st_off}")
        g("s_barrier")
        g(f"L_fs_b{st_off}:")
        for i in range(4):
            g(f"ds_read_b128 v[{20+4*i}:{23+4*i}], v{VZ} offset:{st_off + 16*i}")
        g("s_waitcnt lgkmcnt(0)")
        g("""
        v_pk_add_f32 v[20:21], v[20:21], v[22:23]
        v_pk_add_f32 v[24:25], v[24:25], v[26:27]
        v_pk_add_f32 v[28:29], v[28:29], v[30:31]
        v_pk_add_f32 v[32:33], v[32:33], v[34:35]
        v_pk_add_f32 v[20:21], v[20:21], v[24:25]
        v_pk_add_f32 v[28:29], v[28:29], v[32:33]
        v_pk_add_f32 v[20:21], v[20:21], v[28:29]
        """)
        ln_scalar(20, 21, 22, save=(24 if aln2 else None))

    wave_stats(13, L_ST2)
    g("v_sub_f32 v16, v13, v20")
    g("v_cvt_pk_bf16_f32 v16, v16, v16\nv_and_b32 v16, s42, v16")
    g("v_mul_f32 v16, v16, v21")
    g("v_cvt_pk_bf16_f32 v16, v16, v16\nv_and_b32 v16, s42, v16")
    if aln2:
        g("v_sub_f32 v24, v24, v20\nv_mul_f32 v25, v25, v21")
        g("v_mul_f32 v20, v24, v21\nv_mul_f32 v21, v25, v21")
        ln_scalar(20, 21, 22, pre=False)
    else:
        wave_stats(16, L_ST3)
    TS(9, 'K')
    g("v_sub_f32 v16, v16, v20")
    g("v_cvt_pk_bf16_f32 v16, v16, v16\nv_and_b32 v16, s42, v16")
    g("v_mul_f32 v16, v16, v21")
    g("v_cvt_pk_bf16_f32 v16, v16, v16")
    g(f"v_and_b32 v17, 0x7fff, v16\nv_subrev_u32 v17, {EXP0 << 7}, v17")
    g("v_bfe_u32 v18, v16, 15, 1")
    g(f"s_movk_i32 s11, {NBIN*128}")
    g("v_cmp_gt_u32 vcc, s11, v17")
    g("v_mad_u32_u24 v18, v18, s11, v17")
    g("v_lshlrev_b32 v18, 1, v18")
    g("v_cndmask_b32 v18, 0, v18, vcc")
    g(f"ds_read_u16 v19, v18 offset:{L_TAB}")
    g("s_mov_b32 s12, 0xffff")
    g("s_waitcnt lgkmcnt(0)")
    g("v_cmp_ne_u32_e64 s[52:53], s12, v19")
    g("v_lshlrev_b32 v19, 16, v19\nv_add_f32 v19, v19, v13\nv_cvt_pk_bf16_f32 v19, v19, v19")
    g("s_and_b64 s[52:53], s[52:53], vcc")
    if force_fb:
        g("s_and_b32 s52, s52, 0xfffffff0")
    g("s_mov_b64 exec, s[52:53]")
    g("s_cbranch_execz L_nost")
    g(f"buffer_store_short v19, v{VCOL}, s[48:51], s43 offen")
    g("L_nost:")
    g("s_andn2_b64 exec, s[98:99], s[52:53]")
    g("s_cbranch_execz L_nomiss")
    g(f"ds_add_rtn_u32 v17, v{VFL}, v{VONE} offset:{F_MISS}")
    g(f"v_and_b32 v12, s42, v16\nv_or_b32 v12, v12, v{VCOL}")
    g("s_waitcnt lgkmcnt(0)")
    g("v_lshlrev_b32 v17, 3, v17")
    g(f"ds_write_b64 v17, v[12:13] offset:{L_MISS}")
    g("s_waitcnt lgkmcnt(0)")
    g("L_nomiss:")
    g("s_mov_b64 exec, s[98:99]")
    g("s_cbranch_execz L_dry_ret")
    g("s_barrier")
    g("s_cmp_lg_u32 s2, 0\ns_cbranch_scc1 L_fin\ns_cmp_lg_u32 s3, 4\ns_cbranch_scc1 L_fin")
    g("s_add_u32 s94, s94, 1\nv_mov_b32 v4, s94")
    g("s_mov_b64 exec, 1")
    g(f"buffer_store_dword v4, v{VZ}, s[44:47], 0 offen offset:{WS_E}")
    g("L_fin:")
    if dbg:
        g("s_mov_b64 exec, -1")
        g("s_memrealtime s[92:93]")
        g("s_waitcnt lgkmcnt(0)")
        g(f"s_lshl_b32 s8, s2, 11\ns_lshl_b32 s9, s3, 7\ns_add_u32 s8, s8, s9\ns_add_u32 s8, s8, {WS_DBG:#x}")
        g("s_mov_b64 exec, 1")
        for i in range(0, 22, 2):
            g(f"v_mov_b32 v8, s{72+i}\nv_mov_b32 v9, s{73+i}")
            g(f"buffer_store_dwordx2 v[8:9], v{VZ}, s[44:47], s8 offen offset:{4*i}")
            g("s_nop 1")
    g("L_end:")
    g("s_endpgm")
    g('.section .rodata,"a"')
    g(".p2align 6")
    g(f".amdhsa_kernel {KN}")
    for d in ["next_free_vgpr 168", "next_free_sgpr 102", "accum_offset 168", "group_segment_fixed_size 0", "kernarg_size 104",
              "user_sgpr_count 2", "user_sgpr_kernarg_segment_ptr 1", "system_sgpr_workgroup_id_x 1", "float_denorm_mode_32 3"]:
        g(f".amdhsa_{d}")
    g(".end_amdhsa_kernel")
    open(path, "w").write(g.text())


if __name__ == "__main__":
    kw = eval("dict(%s)" % (sys.argv[2] if len(sys.argv) > 2 else ""))
    gen(sys.argv[1], **kw)
```

```python
import sys, struct, math
from asmlib import Gen

KN = "sequential_preLN__sliding_block_cached__mixer_token_mlp__decode_kernel"

def f2u(x):
    return struct.unpack("<I", struct.pack("<f", x))[0]

WS_E = 0
WS_T = 0x1000
WS_LSE = 0x2000
WS_TAB = 0x4000
WS_H2 = 0x10000
WS_O = 0x40000
OSTR = 1152
WS_QS = 0x90000
QSL = 0x80000
WS_DBG = 0x200000
L_WQT = 0
L_OP = 0
OPW = 2304
OPH = 576
L_GP = 9216
L_MISS = 11264
L_ST2 = 15360
L_ST3 = 15424
L_WOT = 16384
L_TAB = 16384
L_XN = 32768
L_QL = 33792
L_PL = 34816
L_ST = 43008
L_WT = 43200
L_FL = 43456
L_MW = 43520
L_KL = 57344
L_TOTAL = 57344 + 65536
F_NL, F_Q, F_MW, F_ST, F_K, F_P, F_MISS, F_CL, F_VI = 0, 4, 8, 12, 16, 32, 48, 52, 56
EXP0 = 108
NBIN = 24
NW = 12

LOG2E = 1.4426950408889634
K0 = -2.0 * math.sqrt(2.0 / math.pi) * LOG2E
K1 = K0 * 0.044715
ALPHA = -((-K1) ** (1.0 / 3.0))
BETA = K0 / ALPHA
HEADER = open("sequential_preLN__sliding_block_cached__mixer_token_mlp__decode.s.ref").read().split("; Override launch")[0]

names_c = ["start", "B0", "q pub", "mw rdy", "tabdone", "-", "-", "-", "-", "-", "end"]
names_k = ["start", "Kissued", "q got", "P rdy", "preB3", "B3", "O pub", "B5", "h2 done", "B6b", "end"]
names_v = ["start", "rounds", "B3", "wo in", "rnd1", "Vissued", "PVdone", "h1 done", "B5", "h2 done", "end"]

DPP6 = ["row_shr:1 row_mask:0xf bank_mask:0xf bound_ctrl:0", "row_shr:2 row_mask:0xf bank_mask:0xf bound_ctrl:0",
        "row_shr:4 row_mask:0xf bank_mask:0xf bound_ctrl:0", "row_shr:8 row_mask:0xf bank_mask:0xf bound_ctrl:0",
        "row_bcast:15 row_mask:0xa bank_mask:0xf", "row_bcast:31 row_mask:0xc bank_mask:0xf"]

VZ, VT, VONE, VFL, VFW = 160, 161, 162, 163, 164
VX, VB2, VH2, VCOL, VH2S, VGP, VST = 144, 145, 146, 147, 148, 149, 150
P0 = 152


def gen(path, dbg=False, kvflags="nt", wflags="nt", maxpoll=1 << 18, lim=4, limv=6, dry=False, fg=4, aln2=True, ksig=13, gpos=11, wolast=True, strided=True, rotm=1, kneed=0, kearly=0, nloc=8, pretouch=True, force_fb=False, local=True, mwearly=True, slp=2, notab=False, nomw=False, g1=False):
    g = Gen()
    uid = [0]

    def TS(k, cond=None):
        if dbg:
            if cond:
                uid[0] += 1
                g(f"s_cmp_{'lt' if cond == 'V' else 'ge'}_u32 s3, 8\ns_cbranch_scc1 L_ts{uid[0]}")
            g(f"s_memrealtime s[{72+2*k}:{73+2*k}]")
            if cond:
                g(f"L_ts{uid[0]}:")

    def srd(d, lo, nbytes):
        g(f"s_mov_b32 s{d}, s{lo}\ns_and_b32 s{d+1}, s{lo+1}, 0xffff\ns_mov_b32 s{d+2}, {nbytes:#x}\ns_mov_b32 s{d+3}, 0x20000")

    def signal(off, vaddr=VFL):
        g("s_mov_b64 exec, 1")
        g(f"ds_add_u32 v{vaddr}, v{VONE} offset:{off}")
        g("s_mov_b64 exec, -1")

    def spin(off, target, sl=1, vaddr=VFL):
        uid[0] += 1
        u = uid[0]
        g("s_mov_b32 s71, 0")
        g(f"L_sp{u}:")
        g(f"ds_read_b32 v{VT}, v{vaddr} offset:{off}")
        g(f"s_add_u32 s71, s71, 1\ns_cmp_ge_u32 s71, {maxpoll*4}\ns_cbranch_scc1 L_spx{u}")
        g("s_waitcnt lgkmcnt(0)")
        g(f"v_readfirstlane_b32 s70, v{VT}")
        g(f"s_cmp_ge_u32 s70, {target}\ns_cbranch_scc1 L_spx{u}")
        g(f"s_sleep {sl}")
        g(f"s_branch L_sp{u}")
        g(f"L_spx{u}:")

    def tags():
        g("s_mul_i32 s92, s94, 0x85ebca6b\ns_add_u32 s92, s92, 0x7f4a7c15\ns_mul_i32 s93, s94, 0x9e3779b1\ns_add_u32 s93, s93, 0x1b873593")

    def ln_scalar(m, v, t, pre=True, save=None):
        if pre:
            g(f"v_pk_mul_f32 v[{m}:{v}], v[{m}:{v}], s[8:9]")
            g(f"v_fma_f32 v{v}, -v{m}, v{m}, v{v}")
            g(f"v_max_f32 v{v}, 0, v{v}")
        if save is not None:
            g(f"v_mov_b32 v{save}, v{m}\nv_mov_b32 v{save+1}, v{v}")
        g(f"v_cvt_pk_bf16_f32 v{t}, v{m}, v{v}")
        g(f"v_and_b32 v{v}, s42, v{t}")
        g(f"v_lshlrev_b32 v{m}, 16, v{t}")
        g(f"v_add_f32 v{v}, s10, v{v}")
        g(f"v_cvt_pk_bf16_f32 v{t}, v{v}, v{v}")
        g(f"v_and_b32 v{v}, s42, v{t}")
        g(f"v_sqrt_f32 v{v}, v{v}")
        g(f"v_cvt_pk_bf16_f32 v{t}, v{v}, v{v}")
        g(f"v_and_b32 v{v}, s42, v{t}")
        g(f"v_rcp_f32 v{v}, v{v}")

    g(HEADER.rstrip())
    g(f"; @launch grid=(256,1,1) block=({NW*64},1,1) lds={L_TOTAL}")
    g('.amdgcn_target "amdgcn-amd-amdhsa--gfx950"')
    g(".text")
    g(f".globl {KN}")
    g(".p2align 8")
    g(f".type {KN},@function")
    g(f"{KN}:")
    TS(0)
    g("""
    s_cmp_ge_u32 s2, 256
    s_cbranch_scc1 L_end
    s_load_dwordx16 s[16:31], s[0:1], 0
    s_load_dwordx8 s[32:39], s[0:1], 64
    s_load_dwordx2 s[40:41], s[0:1], 96
    v_lshrrev_b32 v4, 6, v0
    v_and_b32 v1, 63, v0
    v_readfirstlane_b32 s3, v4
    v_and_b32 v2, 15, v1
    v_lshrrev_b32 v3, 4, v1
    s_and_b32 s4, s2, 7
    s_lshr_b32 s5, s2, 3
    s_lshr_b32 s6, s5, 3
    s_and_b32 s7, s5, 7
    s_mov_b32 s42, 0xffff0000
    s_mov_b64 s[98:99], -1
    """)
    g(f"v_mov_b32 v{VFL}, {L_FL}\nv_mov_b32 v{VONE}, 1\nv_mov_b32 v{VZ}, 0")
    g(f"""
    s_and_b32 s15, s3, 3
    s_lshl_b32 s8, s6, 3
    s_add_u32 s8, s8, s4
    s_lshl_b32 s8, s8, 21
    s_lshl_b32 s9, s7, {12 if strided else 16}
    s_add_u32 s8, s8, s9
    s_add_u32 s8, s8, 0x180000
    s_add_u32 s9, s2, s5
    s_mul_i32 s9, s9, {rotm}
    s_add_u32 s9, s9, s15
    s_lshl_b32 s11, s15, 2
    v_add_u32 v{VFW}, s11, v{VFL}
    """)
    for i in range(4):
        g(f"s_add_u32 s{64+i}, s9, {4*i}\ns_and_b32 s{64+i}, s{64+i}, 15\ns_lshl_b32 s{64+i}, s{64+i}, {15 if strided else 12}\ns_add_u32 s{64+i}, s{64+i}, s8")
    g("s_waitcnt lgkmcnt(0)")
    srd(44, 40, 0x10000000)
    g(f"s_load_dword s94, s[40:41], {WS_E}")
    g("s_getreg_b32 s0, hwreg(HW_REG_XCC_ID)\ns_and_b32 s0, s0, 7")
    if fg is None:
        g("s_mov_b32 s26, s2")
    else:
        g(f"s_cmp_eq_u32 s4, {fg}\ns_cselect_b32 s26, s5, 64")
    g("""
    s_cmp_ge_u32 s3, 8
    s_cbranch_scc1 L_V
    s_cmp_ge_u32 s3, 4
    s_cbranch_scc1 L_K
    """)
    srd(60, 34, 2)
    g(f"buffer_load_ushort v{VB2}, v{VZ}, s[60:63], 0 offen")
    g("s_cmp_lg_u32 s3, 0\ns_cbranch_scc1 L_C123")
    srd(48, 16, 4096)
    srd(52, 22, 0x400000)
    g("""
    v_and_b32 v4, 3, v1
    v_lshlrev_b32 v5, 10, v4
    v_lshrrev_b32 v6, 2, v1
    v_lshl_add_u32 v6, v6, 6, v5
    """)
    for i in range(4):
        g(f"buffer_load_dwordx4 v[{16+4*i}:{19+4*i}], v6, s[48:51], 0 offen offset:{16*i}")
    g("""
    v_lshrrev_b32 v7, 2, v2
    v_lshl_add_u32 v5, v7, 6, v5
    v_lshl_add_u32 v5, v3, 3, v5
    s_lshl_b32 s8, s6, 8
    buffer_load_dwordx2 v[32:33], v5, s[48:51], s8 offen
    buffer_load_dwordx2 v[34:35], v5, s[48:51], s8 offen offset:32
    v_lshrrev_b32 v6, 3, v1
    v_lshlrev_b32 v6, 13, v6
    v_and_b32 v8, 7, v1
    v_lshlrev_b32 v9, 1, v3
    v_xor_b32 v8, v8, v9
    v_lshl_add_u32 v6, v8, 4, v6
    s_lshl_b32 s8, s6, 20
    s_lshl_b32 s9, s4, 10
    s_add_u32 s8, s8, s9
    s_lshl_b32 s9, s7, 7
    s_add_u32 s8, s8, s9
    """)
    for i in range(16):
        g(f"s_mov_b32 m0, {L_WQT + 1024*i}")
        g(f"buffer_load_dwordx4 v6, s[52:55], s8 offen {wflags} lds")
        if i < 15:
            g("s_add_u32 s8, s8, 0x10000")
    g("s_barrier")
    TS(1)
    g("s_branch L_Q2")

    g("L_K:")
    srd(48, 18, 0x4000000)
    g("v_xor_b32 v4, v2, v3\nv_lshlrev_b32 v7, 8, v3\nv_lshlrev_b32 v9, 8, v2")
    g(f"s_lshl_b32 s63, s15, 14\ns_add_u32 s63, s63, {L_KL}\nv_add_u32 v9, s63, v9")
    for u in range(4):
        g(f"v_xor_b32 v8, {4*u}, v4\nv_lshl_add_u32 v{132+u}, v8, 4, v7\nv_lshl_add_u32 v{136+u}, v8, 4, v9")
    g("""
    s_lshl_b32 s8, s4, 16
    s_lshl_b32 s9, s6, 14
    s_add_u32 s8, s8, s9
    s_lshl_b32 s9, s15, 10
    s_add_u32 s8, s8, s9
    """)
    g(f"s_add_u32 s12, s8, {WS_QS:#x}\ns_add_u32 s13, s12, 0x1000\ns_add_u32 s14, s12, 0x2000\ns_add_u32 s43, s12, 0x3000")
    g(f"s_lshl_b32 s68, s15, 9\ns_add_u32 s68, s68, {WS_T:#x}")
    g(f"v_lshlrev_b32 v5, 4, v1\nv_add_u32 v5, {QSL:#x}, v5\nv_lshlrev_b32 v6, 3, v1")
    g("s_setprio 2")
    if kearly == 0: g("s_barrier")
    KR, QF, SA, PR, TM = 16, 80, 96, 112, 120
    qso = ["s12", "s13", "s14", "s43"] if not g1 else ["s12", "s12", "s12", "s12"]

    def kload(n):
        T, t = n >> 2, n & 3
        if t == 0:
            g(f"s_add_u32 m0, s63, {4096*T}")
        g(f"buffer_load_dwordx4 v{132+t}, s[48:51], s{64+T} offen offset:{1024*t} {kvflags} lds")
    for n in range(0, 16):
        if n == gpos:
            for ks in range(4):
                g(f"buffer_load_dwordx4 v[{QF+4*ks}:{QF+4*ks+3}], v5, s[44:47], {qso[ks]} offen sc1")
        if n >= lim:
            extra = 4 if (n >= gpos and n - lim < gpos) else 0
            g(f"s_waitcnt vmcnt({lim-1+extra})")
        kload(n)
        if kearly and n == kearly - 1: g("s_barrier")
        if n == ksig:
            signal(F_K, VFW if not kneed else VFL)
    if gpos >= 16:
        for ks in range(4):
            g(f"buffer_load_dwordx4 v[{QF+4*ks}:{QF+4*ks+3}], v5, s[44:47], {qso[ks]} offen sc1")
    TS(1)
    g("s_waitcnt lgkmcnt(0)")
    tags()
    g("s_mov_b32 s71, 0")
    g(f"s_waitcnt vmcnt({max(16-gpos,0)})")
    g("s_branch L_qchk")
    g("L_qpoll:")
    g(f"s_cmp_lg_u32 s71, {nloc}\ns_cbranch_scc1 L_qnl")
    g("v_lshlrev_b32 v5, 4, v1")
    g("L_qnl:")
    for ks in range(4):
        g(f"s_mov_b64 exec, s[{52+2*ks}:{53+2*ks}]")
        g(f"s_cbranch_execz L_qs{ks}")
        g(f"buffer_load_dwordx4 v[{QF+4*ks}:{QF+4*ks+3}], v5, s[44:47], {qso[ks]} offen sc1")
        g(f"L_qs{ks}:")
    g("s_mov_b64 exec, -1")
    g("s_waitcnt vmcnt(0)")
    g("L_qchk:")
    for ks in range(4):
        r = QF + 4 * ks
        g(f"v_xor_b32 v8, v{r+2}, v{r+1}")
        g(f"v_xor_b32 v9, v{r+3}, v{r}")
        g("v_xor_b32 v8, s92, v8")
        g(f"v_subrev_u32 v{128+ks}, s93, v9")
        g(f"v_lshrrev_b32 v9, 3, v{128+ks}")
        g("v_or_b32 v8, v8, v9")
        g(f"v_cmp_ne_u32_e64 s[{52+2*ks}:{53+2*ks}], 0, v8")
    g(f"s_add_u32 s71, s71, 1\ns_cmp_ge_u32 s71, {maxpoll}\ns_cbranch_scc1 L_qdone")
    g("s_or_b64 s[8:9], s[52:53], s[54:55]\ns_or_b64 s[10:11], s[56:57], s[58:59]\ns_or_b64 s[8:9], s[8:9], s[10:11]")
    g("s_cbranch_scc1 L_qpoll")
    g("L_qdone:")
    g("v_xor_b32 v128, s0, v128\nv_xor_b32 v129, s0, v129\nv_xor_b32 v130, s0, v130\nv_xor_b32 v131, s0, v131")
    g("v_or3_b32 v128, v128, v129, v130\nv_or_b32 v128, v128, v131")
    g("v_cmp_ne_u32 vcc, 0, v128")
    g("s_cmp_eq_u64 vcc, 0\ns_cbranch_scc1 L_alllocal")
    signal(F_NL)
    g("L_alllocal:")
    g(f"v_pk_add_f32 v[{QF}:{QF+1}], v[{QF}:{QF+1}], v[{QF+4}:{QF+5}]")
    g(f"v_pk_add_f32 v[{QF+8}:{QF+9}], v[{QF+8}:{QF+9}], v[{QF+12}:{QF+13}]")
    g(f"v_pk_add_f32 v[{QF}:{QF+1}], v[{QF}:{QF+1}], v[{QF+8}:{QF+9}]")
    g(f"v_cvt_pk_bf16_f32 v8, v{QF}, v{QF+1}")
    g("v_lshlrev_b32 v9, 2, v1\ns_lshl_b32 s8, s15, 8\nv_add_u32 v9, s8, v9")
    g(f"ds_write_b32 v9, v8 offset:{L_QL}")
    signal(F_Q)
    g("""
    v_and_b32 v10, 3, v2
    v_lshlrev_b32 v7, 8, v10
    v_lshl_add_u32 v7, v3, 4, v7
    v_lshlrev_b32 v12, 5, v10
    s_lshl_b32 s11, s15, 3
    v_add_u32 v13, s11, v12
    v_lshlrev_b32 v14, 4, v1
    s_lshl_b32 s11, s15, 11
    v_add_u32 v14, s11, v14
    """)
    spin(F_Q, 4)
    TS(2)
    for t in range(4):
        g(f"ds_read_b128 v[{QF+4*t}:{QF+4*t+3}], v7 offset:{L_QL + 64*t}")
    SC = 128 ** -0.5
    g(f"s_mov_b32 s8, {f2u(SC):#x}\ns_mov_b32 s9, {f2u(SC):#x}\ns_mov_b32 s10, {f2u(LOG2E):#x}")
    g("s_waitcnt lgkmcnt(0)")
    for T in range(4):
        g(f"s_waitcnt vmcnt({12-4*T})")
        for t in range(4):
            r = KR + 16 * T + 4 * t
            g(f"ds_read_b128 v[{r}:{r+3}], v{136+t} offset:{4096*T}")
    g("s_waitcnt lgkmcnt(0)")
    for T in range(4):
        for t in range(4):
            r = KR + 16 * T + 4 * t
            c = "0" if t == 0 else f"v[{SA+4*T}:{SA+4*T+3}]"
            g(f"v_mfma_f32_16x16x32_bf16 v[{SA+4*T}:{SA+4*T+3}], v[{r}:{r+3}], v[{QF+4*t}:{QF+4*t+3}], {c}")
    for rep in range(2):
        for p in range(8):
            a = SA + 2 * p
            g(f"v_cvt_pk_bf16_f32 v{TM+p}, v{a}, v{a+1}")
        for p in range(8):
            a = SA + 2 * p
            g(f"v_lshlrev_b32 v{a}, 16, v{TM+p}")
            g(f"v_and_b32 v{a+1}, s42, v{TM+p}")
        if rep == 0:
            for p in range(8):
                a = SA + 2 * p
                g(f"v_pk_mul_f32 v[{a}:{a+1}], v[{a}:{a+1}], s[8:9]")
    g(f"v_max3_f32 v8, v{SA}, v{SA+1}, v{SA+2}")
    g(f"v_max3_f32 v9, v{SA+3}, v{SA+4}, v{SA+5}")
    g(f"v_max3_f32 v10, v{SA+6}, v{SA+7}, v{SA+8}")
    g(f"v_max3_f32 v11, v{SA+9}, v{SA+10}, v{SA+11}")
    g(f"v_max3_f32 v8, v8, v{SA+12}, v{SA+13}")
    g(f"v_max3_f32 v9, v9, v{SA+14}, v{SA+15}")
    g("v_max3_f32 v8, v8, v9, v10\nv_max_f32 v8, v8, v11")
    g("v_mov_b32 v9, v8\nv_permlane32_swap_b32 v8, v9\nv_max_f32 v8, v8, v9")
    g("v_mov_b32 v9, v8\nv_permlane16_swap_b32 v8, v9\nv_max_f32 v8, v8, v9")
    g("v_mul_f32 v10, s10, v8")
    for e in range(16):
        g(f"v_fma_f32 v{SA+e}, v{SA+e}, s10, -v10")
    for e in range(16):
        g(f"v_exp_f32 v{SA+e}, v{SA+e}")
    for p in range(8):
        g(f"v_cvt_pk_bf16_f32 v{PR+p}, v{SA+2*p}, v{SA+2*p+1}")
    g(f"ds_write_b128 v14, v[{PR}:{PR+3}] offset:{L_PL}")
    g(f"ds_write_b128 v14, v[{PR+4}:{PR+7}] offset:{L_PL+1024}")
    signal(F_P, VFW)
    for p in range(4):
        g(f"v_pk_add_f32 v[{SA+2*p}:{SA+2*p+1}], v[{SA+2*p}:{SA+2*p+1}], v[{SA+8+2*p}:{SA+9+2*p}]")
    for p in range(2):
        g(f"v_pk_add_f32 v[{SA+2*p}:{SA+2*p+1}], v[{SA+2*p}:{SA+2*p+1}], v[{SA+4+2*p}:{SA+5+2*p}]")
    g(f"v_pk_add_f32 v[{SA}:{SA+1}], v[{SA}:{SA+1}], v[{SA+2}:{SA+3}]")
    g(f"v_add_f32 v9, v{SA}, v{SA+1}")
    g("v_mov_b32 v11, v9\nv_permlane32_swap_b32 v9, v11\nv_add_f32 v9, v9, v11")
    g("v_mov_b32 v11, v9\nv_permlane16_swap_b32 v9, v11\nv_add_f32 v9, v9, v11")
    g("s_mov_b64 exec, 15")
    g(f"ds_write_b64 v13, v[8:9] offset:{L_ST}")
    g("s_mov_b64 exec, -1")
    signal(F_ST)
    TS(3)
    spin(F_ST, 4)
    FA = P0
    g("s_lshl_b32 s11, s15, 5\nv_mov_b32 v12, s11")
    g(f"ds_read_b128 v[16:19], v12 offset:{L_ST}")
    g(f"ds_read_b128 v[20:23], v12 offset:{L_ST+16}")
    g(f"ds_read_b32 v27, v{VFL} offset:{F_NL}")
    g("s_waitcnt lgkmcnt(0)")
    g("v_readfirstlane_b32 s1, v27")
    g("v_max3_f32 v24, v16, v18, v20\nv_max_f32 v24, v24, v22")
    for i in range(4):
        g(f"v_sub_f32 v{FA+i}, v{16+2*i}, v24")
        g(f"v_mul_f32 v{FA+i}, s10, v{FA+i}")
        g(f"v_exp_f32 v{FA+i}, v{FA+i}")
    g(f"v_mul_f32 v25, v{FA}, v17")
    for i in range(1, 4):
        g(f"v_fmac_f32 v25, v{FA+i}, v{17+2*i}")
    g("v_rcp_f32 v26, v25\nv_log_f32 v25, v25")
    for i in range(4):
        g(f"v_mul_f32 v{FA+i}, v{FA+i}, v26")
    VOPR, VL4, VLSE = P0 + 4, P0 + 5, P0 + 6
    g(f"v_fma_f32 v25, v24, s10, v25\nv_min_u32 v{VLSE}, -2, v25")
    g(f"v_lshlrev_b32 v{VOPR}, 3, v1\ns_mul_i32 s11, s15, {OPH}\nv_add_u32 v{VOPR}, s11, v{VOPR}")
    g(f"v_lshlrev_b32 v{VL4}, 2, v2\nv_lshl_add_u32 v{VL4}, v3, 11, v{VL4}")
    g("s_cmp_ge_u32 s26, 4\ns_cbranch_scc1 L_tdone")
    g("s_mov_b32 s71, 0")
    g("L_tpoll:")
    g("buffer_load_dwordx2 v[128:129], v6, s[44:47], s68 offen sc1")
    g("s_waitcnt vmcnt(0)")
    g("v_xor_b32 v16, s92, v128\nv_xor_b32 v17, s93, v129\nv_or_b32 v16, v16, v17")
    g("v_cmp_ne_u32 vcc, 0, v16")
    g(f"s_add_u32 s71, s71, 1\ns_cmp_ge_u32 s71, {maxpoll}\ns_cbranch_scc1 L_tdone")
    g("s_cmp_lg_u64 vcc, 0\ns_cbranch_scc1 L_tpoll")
    g("L_tdone:")
    g(f"s_lshl_b32 s11, s4, 15\ns_lshr_b32 s13, s7, 2\ns_lshl_b32 s13, s13, 10\ns_add_u32 s11, s11, s13\ns_lshl_b32 s13, s6, 8\ns_add_u32 s11, s11, s13\ns_and_b32 s13, s7, 3\ns_lshl_b32 s13, s13, 6\ns_add_u32 s11, s11, s13\ns_add_u32 s11, s11, {WS_O:#x}")
    g("s_lshl_b32 s13, s15, 13\ns_add_u32 s68, s11, s13")
    g(f"s_lshl_b32 s62, s4, 9\ns_lshl_b32 s13, s6, 5\ns_add_u32 s62, s62, s13\ns_and_b32 s13, s7, 3\ns_lshl_b32 s13, s13, 3\ns_add_u32 s62, s62, s13\ns_lshr_b32 s13, s7, 2\ns_lshl_b32 s13, s13, 2\ns_add_u32 s62, s62, s13\ns_add_u32 s62, s62, {WS_LSE:#x}")
    g("s_lshl_b32 s13, s15, 7\ns_add_u32 s62, s62, s13")
    g("s_call_b64 s[100:101], L_fsetup")
    g("s_mov_b64 exec, 1")
    if local:
        g("s_cmp_lg_u32 s1, 0\ns_cbranch_scc1 L_lstg")
        g(f"buffer_store_dword v{VLSE}, v{VZ}, s[44:47], s62 offen")
        g("s_branch L_lsd")
        g("L_lstg:")
    g(f"buffer_store_dword v{VLSE}, v{VZ}, s[44:47], s62 offen sc1")
    g("L_lsd:")
    g("s_mov_b64 exec, -1")
    g("s_waitcnt lgkmcnt(0)")
    TS(4)
    g("s_barrier")
    TS(5)
    for w in range(4):
        g(f"ds_read_b64 v[{16+2*w}:{17+2*w}], v{VOPR} offset:{L_OP + OPW*w}")
    g("s_waitcnt lgkmcnt(0)")
    g(f"v_pk_mul_f32 v[16:17], v[16:17], v[{FA}:{FA+1}] op_sel:[0,0] op_sel_hi:[1,0]")
    g(f"v_pk_mul_f32 v[20:21], v[20:21], v[{FA+2}:{FA+3}] op_sel:[0,0] op_sel_hi:[1,0]")
    g(f"v_pk_fma_f32 v[16:17], v[18:19], v[{FA}:{FA+1}], v[16:17] op_sel:[0,1,0] op_sel_hi:[1,1,1]")
    g(f"v_pk_fma_f32 v[20:21], v[22:23], v[{FA+2}:{FA+3}], v[20:21] op_sel:[0,1,0] op_sel_hi:[1,1,1]")
    g("v_pk_add_f32 v[16:17], v[16:17], v[20:21]")
    g("v_cvt_pk_bf16_f32 v16, v16, v17\nv_min_u32 v16, -2, v16")
    if local:
        g("s_cmp_lg_u32 s1, 0\ns_cbranch_scc1 L_ostg")
        g(f"buffer_store_dword v16, v{VL4}, s[44:47], s68 offen")
        TS(6)
        g("s_branch L_B5")
        g("L_ostg:")
    g(f"buffer_store_dword v16, v{VL4}, s[44:47], s68 offen sc1")
    TS(6)
    g("s_branch L_B5")

    g("L_fsetup:")
    g(f"""
    s_sub_u32 s63, s3, 4
    s_lshr_b32 s13, s5, 4
    s_lshl_b32 s14, s4, 1
    s_add_u32 s13, s13, s14
    s_lshl_b32 s13, s13, 11
    s_and_b32 s14, s5, 15
    s_lshl_b32 s14, s14, 7
    s_add_u32 s13, s13, s14
    v_lshlrev_b32 v{VH2S}, 15, v3
    v_lshl_add_u32 v{VH2S}, v2, 3, v{VH2S}
    v_lshlrev_b32 v{VGP}, 3, v1
    """)
    g(f"s_add_u32 s69, s13, {WS_H2:#x}")
    srd(56, 16, 4096)
    g(f"""
    v_and_b32 v8, 1, v3
    v_lshlrev_b32 v8, 1, v8
    v_lshrrev_b32 v9, 1, v3
    v_or_b32 v8, v8, v9
    v_lshl_add_u32 v8, v2, 2, v8
    s_lshl_b32 s8, s63, 6
    v_add_u32 v8, s8, v8
    v_lshlrev_b32 v{VCOL}, 1, v8
    s_and_b32 s8, s26, 3
    s_lshl_b32 s43, s8, 10
    v_lshlrev_b32 v{VH2}, 11, v3
    v_lshl_add_u32 v{VH2}, v2, 4, v{VH2}
    s_lshl_b32 s11, s63, 3
    v_lshrrev_b32 v{VST}, 5, v1
    v_lshlrev_b32 v{VST}, 2, v{VST}
    v_add_u32 v{VST}, s11, v{VST}
    s_cmp_ge_u32 s26, 4
    s_cbranch_scc1 L_fs1
    buffer_load_ushort v{VX}, v{VCOL}, s[56:59], s43 offen
    L_fs1:
    s_setpc_b64 s[100:101]
    """)

    g("L_Q2:")
    g("s_setprio 1")
    g("s_waitcnt vmcnt(18)")
    g("s_mov_b32 s8, 0x3f803f80\nv_mov_b32 v10, 0\nv_mov_b32 v11, 0\nv_mov_b32 v12, 0\nv_mov_b32 v13, 0")
    for i in range(0, 16, 2):
        g(f"v_dot2_f32_bf16 v10, v{16+i}, s8, v10")
        g(f"v_dot2_f32_bf16 v11, v{16+i}, v{16+i}, v11")
        g(f"v_dot2_f32_bf16 v12, v{17+i}, s8, v12")
        g(f"v_dot2_f32_bf16 v13, v{17+i}, v{17+i}, v13")
    g("s_nop 2")
    g("v_pk_add_f32 v[10:11], v[10:11], v[12:13]")
    for m in ("row_ror:4", "row_ror:8"):
        g(f"v_add_f32_dpp v10, v10, v10 {m} row_mask:0xf bank_mask:0xf")
        g(f"v_add_f32_dpp v11, v11, v11 {m} row_mask:0xf bank_mask:0xf")
    for sw in ("v_permlane32_swap_b32", "v_permlane16_swap_b32"):
        g("v_mov_b32 v12, v10\nv_mov_b32 v13, v11")
        g(f"{sw} v10, v12\n{sw} v11, v13")
        g("v_pk_add_f32 v[10:11], v[10:11], v[12:13]")
    g(f"s_mov_b32 s8, {f2u(1.0/512):#x}\ns_mov_b32 s9, {f2u(1.0/512):#x}\ns_mov_b32 s10, {f2u(1e-5):#x}")
    ln_scalar(10, 11, 12)
    g("s_waitcnt vmcnt(16)")
    for d in range(4):
        a = 16 + 2 * d
        g(f"v_lshlrev_b32 v{a}, 16, v{32+d}\nv_and_b32 v{a+1}, s42, v{32+d}")
    for d in range(4):
        a = 16 + 2 * d
        g(f"v_pk_add_f32 v[{a}:{a+1}], v[{a}:{a+1}], v[10:11] op_sel:[0,0] op_sel_hi:[1,0] neg_lo:[0,1] neg_hi:[0,1]")
    for d in range(4):
        a = 16 + 2 * d
        g(f"v_cvt_pk_bf16_f32 v{32+d}, v{a}, v{a+1}")
    for d in range(4):
        a = 16 + 2 * d
        g(f"v_lshlrev_b32 v{a}, 16, v{32+d}\nv_and_b32 v{a+1}, s42, v{32+d}")
    for d in range(4):
        a = 16 + 2 * d
        g(f"v_pk_mul_f32 v[{a}:{a+1}], v[{a}:{a+1}], v[10:11] op_sel:[0,1] op_sel_hi:[1,1]")
    for d in range(4):
        a = 16 + 2 * d
        g(f"v_cvt_pk_bf16_f32 v{32+d}, v{a}, v{a+1}")
    g("""
    v_lshlrev_b32 v8, 8, v4
    v_lshl_add_u32 v8, v3, 4, v8
    v_lshl_add_u32 v9, v7, 6, v8
    """)
    g(f"ds_write_b128 v9, v[32:35] offset:{L_XN}")
    for kb in range(4):
        g(f"ds_read_b128 v[{36+4*kb}:{39+4*kb}], v8 offset:{L_XN + 64*kb}")
    g("""
    v_lshrrev_b32 v9, 2, v2
    v_lshl_add_u32 v9, v3, 2, v9
    v_bfe_u32 v14, v9, 1, 2
    v_lshlrev_b32 v9, 7, v9
    v_lshl_add_u32 v9, v4, 3, v9
    """)
    for mt in range(4):
        g(f"v_xor_b32 v15, {mt}, v14")
        g(f"v_lshl_add_u32 v{10+mt}, v15, 5, v9")
    g("s_waitcnt lgkmcnt(0)")
    tags()
    AF = 52
    for kb in range(4):
        g(f"s_waitcnt vmcnt({12-4*kb})")
        for mt in range(4):
            r = AF + 16 * kb + 4 * mt
            g(f"ds_read_b64_tr_b16 v[{r}:{r+1}], v{10+mt} offset:{L_WQT + 4096*kb}")
            g(f"ds_read_b64_tr_b16 v[{r+2}:{r+3}], v{10+mt} offset:{L_WQT + 4096*kb + 2048}")
    for z in (1, 2, 3):
        g(f"v_cmp_eq_u32_e64 s[{50+2*z}:{51+2*z}], {z}, v7")
    g("""
    v_lshlrev_b32 v8, 14, v4
    v_lshl_add_u32 v8, v7, 7, v8
    v_lshl_add_u32 v8, v3, 5, v8
    s_lshl_b32 s8, s4, 16
    s_lshl_b32 s9, s6, 12
    s_add_u32 s8, s8, s9
    s_lshl_b32 s9, s7, 9
    s_add_u32 s8, s8, s9
    """)
    g(f"s_add_u32 s8, s8, {WS_QS:#x}")
    g("s_add_u32 s93, s93, s0")
    g("s_waitcnt lgkmcnt(0)")
    QD = 116
    for kb in range(4):
        for mt in range(4):
            r = AF + 16 * kb + 4 * mt
            c = "0" if kb == 0 else f"v[{QD+4*mt}:{QD+4*mt+3}]"
            g(f"v_mfma_f32_16x16x32_bf16 v[{QD+4*mt}:{QD+4*mt+3}], v[{r}:{r+3}], v[{36+4*kb}:{39+4*kb}], {c}")
    for z in (1, 2, 3):
        for i in range(4):
            g(f"v_cndmask_b32_e64 v{QD+i}, v{QD+i}, v{QD+4*z+i}, s[{50+2*z}:{51+2*z}]")
    spin(F_CL, 1)
    g(f"""
    v_mov_b32 v136, v{QD}
    v_mov_b32 v137, v{QD+1}
    v_xor_b32 v138, s92, v{QD+1}
    v_xor_b32 v139, s93, v{QD}
    v_mov_b32 v140, v{QD+2}
    v_mov_b32 v141, v{QD+3}
    v_xor_b32 v142, s92, v{QD+3}
    v_xor_b32 v143, s93, v{QD+2}
    s_add_u32 s9, s8, {QSL:#x}
    s_setprio 3
    buffer_store_dwordx4 v[136:139], v8, s[44:47], s9 offen
    buffer_store_dwordx4 v[140:143], v8, s[44:47], s9 offen offset:16
    buffer_store_dwordx4 v[136:139], v8, s[44:47], s8 offen sc1
    buffer_store_dwordx4 v[140:143], v8, s[44:47], s8 offen offset:16 sc1
    s_setprio 0
    """)
    TS(2)
    g("s_branch L_C")

    g("L_C123:")
    g("s_cmp_lg_u32 s3, 1\ns_cbranch_scc1 L_C23")
    g("v_lshlrev_b32 v4, 2, v2")
    g(f"ds_write_b32 v4, v{VZ} offset:{L_FL}")
    srd(48, 28, 3584)
    srd(52, 30, 3584)
    srd(56, 32, 3584)
    g("v_lshlrev_b32 v6, 4, v1")
    g("s_waitcnt lgkmcnt(0)")
    if not mwearly: g("s_barrier")
    for a in range(3):
        g(f"s_mov_b32 m0, {L_MW + 4096*a}")
        for i in range(4):
            if not nomw: g(f"buffer_load_dwordx4 v6, s[{48+4*a}:{51+4*a}], 0 offen offset:{1024*i} lds")
    if mwearly: g("s_barrier")
    g("s_waitcnt vmcnt(0)")
    signal(F_MW)
    g("s_branch L_C")
    g("L_C23:")
    g("s_cmp_eq_u32 s3, 2\ns_cbranch_scc1 L_C2")
    g("s_barrier")
    g("s_waitcnt vmcnt(0)")
    g("s_branch L_C")
    g("L_C2:")
    g("""
    s_lshl_b32 s11, s4, 5
    s_add_u32 s11, s11, s5
    v_mov_b32 v8, -1
    v_mov_b32 v9, -1
    v_mov_b32 v10, -1
    v_mov_b32 v11, -1
    v_lshlrev_b32 v4, 4, v1
    """)
    g(f"s_lshl_b32 s11, s4, 15\ns_lshr_b32 s13, s7, 2\ns_lshl_b32 s13, s13, 10\ns_add_u32 s11, s11, s13\ns_lshl_b32 s13, s6, 8\ns_add_u32 s11, s11, s13\ns_and_b32 s13, s7, 3\ns_lshl_b32 s13, s13, 6\ns_add_u32 s11, s11, s13\ns_add_u32 s11, s11, {WS_O:#x}")
    g(f"s_lshl_b32 s62, s4, 9\ns_lshl_b32 s13, s6, 5\ns_add_u32 s62, s62, s13\ns_and_b32 s13, s7, 3\ns_lshl_b32 s13, s13, 3\ns_add_u32 s62, s62, s13\ns_lshr_b32 s13, s7, 2\ns_lshl_b32 s13, s13, 2\ns_add_u32 s62, s62, s13\ns_add_u32 s62, s62, {WS_LSE:#x}")
    g("s_mov_b32 s12, s11")
    g("v_lshrrev_b32 v12, 2, v1\nv_lshlrev_b32 v12, 11, v12\nv_and_b32 v13, 3, v1\nv_lshl_add_u32 v12, v13, 4, v12\nv_lshlrev_b32 v13, 7, v1")
    g("buffer_store_dwordx4 v[8:11], v12, s[44:47], s12 offen sc1")
    g("""
    v_lshlrev_b32 v5, 15, v3
    v_lshl_add_u32 v5, v2, 3, v5
    s_lshr_b32 s13, s5, 4
    s_lshl_b32 s14, s4, 1
    s_add_u32 s13, s13, s14
    s_lshl_b32 s13, s13, 11
    s_and_b32 s14, s5, 15
    s_lshl_b32 s14, s14, 7
    s_add_u32 s13, s13, s14
    """)
    g(f"s_add_u32 s13, s13, {WS_H2:#x}")
    g("buffer_store_dwordx2 v[8:9], v5, s[44:47], s13 offen sc1")
    g("s_mov_b64 exec, 15")
    g("buffer_store_dword v8, v13, s[44:47], s62 offen sc1")
    g(f"s_mul_i32 s14, s2, 48\ns_add_u32 s14, s14, {WS_TAB:#x}")
    g("s_mov_b64 exec, 7")
    g("buffer_store_dwordx4 v[8:11], v4, s[44:47], s14 offen sc1")
    g("s_mov_b64 exec, -1")
    g("s_barrier")
    g("s_waitcnt vmcnt(0) lgkmcnt(0)")
    tags()
    signal(F_CL)
    if pretouch:
        g("s_setprio 3")
        g("buffer_load_dwordx4 v[152:155], v12, s[44:47], s12 offen sc1")
    g("v_mov_b32 v8, s92\nv_mov_b32 v9, s93")
    g(f"s_lshl_b32 s9, s2, 3\ns_add_u32 s9, s9, {WS_T:#x}")
    g("s_mov_b64 exec, 1")
    g(f"buffer_store_dwordx2 v[8:9], v{VZ}, s[44:47], s9 offen sc1")
    g("s_mov_b64 exec, -1")
    g("s_setprio 0")
    signal(F_MW)

    MWB, EH, EA, ES = 16, 100, 102, 108
    g("L_C:")
    spin(F_MW, 2)
    TS(3)
    if dbg: g("s_memtime s[82:83]")
    g(f"v_lshlrev_b32 v4, 2, v1")
    for a in range(3):
        for k in range(14):
            g(f"ds_read_b32 v{MWB+28*a+2*k+1}, v4 offset:{L_MW + 4096*a + 256*k}")
    g(f"s_mov_b32 s8, {f2u(ALPHA):#x}\ns_mov_b32 s9, {f2u(ALPHA):#x}\ns_mov_b32 s10, {f2u(1.0/ALPHA):#x}\ns_mov_b32 s11, {f2u(1.0/ALPHA):#x}")
    g("s_waitcnt lgkmcnt(0)")
    for a in range(3):
        for k in range(14):
            r = MWB + 28 * a + 2 * k
            g(f"v_lshlrev_b32 v{r}, 16, v{r+1}")
            g(f"v_and_b32 v{r+1}, s42, v{r+1}")
    for a in range(3):
        for k in range(14):
            r = MWB + 28 * a + 2 * k
            g(f"v_pk_mul_f32 v[{r}:{r+1}], v[{r}:{r+1}], s[{8 if a < 2 else 10}:{9 if a < 2 else 11}]")
    g(f"s_mov_b32 s62, {f2u(BETA):#x}\ns_mov_b32 s63, {f2u(BETA):#x}")
    g("s_mul_i32 s95, s2, 24\ns_mul_i32 s96, s3, 6\ns_add_u32 s95, s95, s96\ns_add_u32 s96, s95, 6")
    g(f"v_lshlrev_b32 v{VB2}, 16, v{VB2}")
    g("L_tab1:")
    g(f"s_cmp_ge_u32 s95, {NBIN*128}\ns_cselect_b32 s97, {0x8000 - NBIN*128}, 0")
    g(f"s_add_u32 s97, s97, s95\ns_add_u32 s97, s97, {EXP0 << 7}\ns_lshl_b32 s97, s97, 16\nv_mov_b32 v{EH}, s97")
    if not notab: g("s_call_b64 s[100:101], L_eval")
    g(f"v_alignbit_b32 v136, v137, v136, 16\nv_alignbit_b32 v137, v138, v137, 16\nv_alignbit_b32 v138, v{EA}, v138, 16")
    g("s_add_u32 s95, s95, 1\ns_cmp_lt_u32 s95, s96\ns_cbranch_scc1 L_tab1")
    g(f"s_lshl_b32 s97, s96, 1\ns_add_u32 s97, s97, {WS_TAB - 12:#x}")
    g("s_mov_b32 exec_lo, 0\ns_mov_b32 exec_hi, 0x80000000")
    g("s_setprio 3")
    g(f"buffer_store_dwordx3 v[136:138], v{VZ}, s[44:47], s97 offen sc1")
    g("s_mov_b64 exec, -1")
    TS(4)
    if dbg: g("s_memtime s[84:85]")
    g("s_cmp_ge_u32 s26, 4\ns_cbranch_scc1 L_fin")
    if dry:
        g("s_cmp_lg_u32 s3, 0\ns_cbranch_scc1 L_dry_ret")
        g("s_mov_b64 s[98:99], 0\ns_mov_b64 exec, 0\ns_branch L_fseg")
    g("L_dry_ret:")
    g("s_mov_b64 s[98:99], -1\ns_mov_b64 exec, -1")
    srd(48, 36, 4096)
    g(f"v_lshlrev_b32 v4, 4, v1\ns_mul_i32 s12, s3, 3072\ns_add_u32 m0, s12, {L_TAB}\ns_add_u32 s12, s12, {WS_TAB:#x}")
    g("s_barrier\ns_barrier")
    g(f"s_mov_b32 s71, 0\ns_mul_i32 s13, s3, 3072\nv_add_u32 v5, s13, v4")
    g("L_tfetch:")
    for i in range(3):
        g(f"buffer_load_dwordx4 v4, s[44:47], s12 offen offset:{1024*i} sc1 lds")
    g("s_waitcnt vmcnt(0)")
    for i in range(3):
        g(f"ds_read_b128 v[{108+4*i}:{111+4*i}], v5 offset:{L_TAB + 1024*i}")
    g("s_waitcnt lgkmcnt(0)")
    g("v_max3_u32 v108, v108, v109, v110\nv_max3_u32 v111, v111, v112, v113\nv_max3_u32 v114, v114, v115, v116\nv_max3_u32 v117, v117, v118, v119")
    g("v_max3_u32 v108, v108, v111, v114\nv_max_u32 v108, v108, v117")
    g("v_cmp_eq_u32 vcc, -1, v108")
    g("s_add_u32 s71, s71, 1\ns_cmp_ge_u32 s71, 4\ns_cbranch_scc1 L_tfd")
    g("s_cmp_lg_u64 vcc, 0\ns_cbranch_scc1 L_tfetch")
    g("L_tfd:")
    g("s_barrier\ns_barrier" if aln2 else "s_barrier\ns_barrier\ns_barrier")
    g(f"ds_read_b32 v4, v{VFL} offset:{F_MISS}")
    g("s_waitcnt lgkmcnt(0)")
    g("v_readfirstlane_b32 s96, v4")
    g("s_mov_b32 s95, s3")
    g("s_lshl_b32 s43, s26, 10")
    g("L_fb:")
    g("s_cmp_ge_u32 s95, s96\ns_cbranch_scc1 L_fin")
    g("s_lshl_b32 s8, s95, 3\nv_mov_b32 v4, s8")
    g(f"ds_read_b64 v[6:7], v4 offset:{L_MISS}")
    g("s_waitcnt lgkmcnt(0)")
    g(f"v_and_b32 v{EH}, s42, v6\nv_and_b32 v6, 0xffff, v6")
    g("s_call_b64 s[100:101], L_eval")
    g(f"v_and_b32 v8, s42, v{EA}\nv_add_f32 v8, v8, v7\nv_cvt_pk_bf16_f32 v8, v8, v8")
    g("s_mov_b32 exec_lo, 0\ns_mov_b32 exec_hi, 0x80000000")
    g("buffer_store_short v8, v6, s[48:51], s43 offen")
    g("s_mov_b64 exec, -1")
    g("s_add_u32 s95, s95, 4\ns_branch L_fb")

    g("L_eval:")
    NB = 7
    for b0 in range(0, 14, NB):
        ks = list(range(b0, b0 + NB))
        S_ = lambda i: ES + 4 * i
        Z = lambda i: ES + 2 + 4 * i
        for i, k in enumerate(ks):
            w_ = MWB + 2 * k
            bb = MWB + 28 + 2 * k
            g(f"v_pk_fma_f32 v[{S_(i)}:{S_(i)+1}], v[{w_}:{w_+1}], v[{EH}:{EH+1}], v[{bb}:{bb+1}] op_sel:[0,0,0] op_sel_hi:[1,0,1]")
        for i, k in enumerate(ks):
            g(f"v_pk_fma_f32 v[{Z(i)}:{Z(i)+1}], v[{S_(i)}:{S_(i)+1}], v[{S_(i)}:{S_(i)+1}], s[62:63]")
        for i, k in enumerate(ks):
            g(f"v_pk_mul_f32 v[{Z(i)}:{Z(i)+1}], v[{Z(i)}:{Z(i)+1}], v[{S_(i)}:{S_(i)+1}]")
        for i, k in enumerate(ks):
            g(f"v_exp_f32 v{Z(i)}, v{Z(i)}\nv_exp_f32 v{Z(i)+1}, v{Z(i)+1}")
            vv = MWB + 56 + 2 * k
            g(f"v_pk_mul_f32 v[{S_(i)}:{S_(i)+1}], v[{S_(i)}:{S_(i)+1}], v[{vv}:{vv+1}]")
        for i, k in enumerate(ks):
            g(f"v_pk_add_f32 v[{Z(i)}:{Z(i)+1}], v[{Z(i)}:{Z(i)+1}], 1.0 op_sel_hi:[1,0]")
        for i, k in enumerate(ks):
            g(f"v_rcp_f32 v{Z(i)}, v{Z(i)}\nv_rcp_f32 v{Z(i)+1}, v{Z(i)+1}")
        for i, k in enumerate(ks):
            acc = EA + 2 * (i & 1)
            if b0 == 0 and i < 2:
                g(f"v_pk_mul_f32 v[{acc}:{acc+1}], v[{S_(i)}:{S_(i)+1}], v[{Z(i)}:{Z(i)+1}]")
            else:
                g(f"v_pk_fma_f32 v[{acc}:{acc+1}], v[{S_(i)}:{S_(i)+1}], v[{Z(i)}:{Z(i)+1}], v[{acc}:{acc+1}]")
    g(f"v_pk_add_f32 v[{EA}:{EA+1}], v[{EA}:{EA+1}], v[{EA+2}:{EA+3}]\nv_add_f32 v{EA}, v{EA}, v{EA+1}")
    for m in DPP6:
        g(f"v_add_f32_dpp v{EA}, v{EA}, v{EA} {m}")
    g(f"""
    v_cvt_pk_bf16_f32 v{EA}, v{EA}, v{EA}
    v_and_b32 v{EA}, s42, v{EA}
    v_add_f32 v{EA}, v{EA}, v{VB2}
    v_cvt_pk_bf16_f32 v{EA}, v{EA}, v{EA}
    s_setpc_b64 s[100:101]
    """)

    g("L_V:")
    g("s_setprio 2")
    g("s_barrier")
    g("s_call_b64 s[100:101], L_fsetup")
    srd(48, 20, 0x4000000)
    srd(52, 24, 0x400000)
    VPAY, VW0, VW1, VWT, VGW = P0, P0 + 1, P0 + 2, P0 + 3, P0 + 4
    g("""
    v_lshlrev_b32 v5, 4, v2
    v_lshl_add_u32 v5, v3, 10, v5
    v_lshlrev_b32 v14, 4, v1
    s_lshl_b32 s11, s15, 11
    v_add_u32 v14, s11, v14
    """)
    g(f"v_mul_u32_u24 v15, {OPH}, v2")
    g("v_lshl_add_u32 v15, v3, 4, v15")
    g(f"s_mul_i32 s11, s15, {OPW}\nv_add_u32 v15, s11, v15")
    g("""
    v_and_b32 v7, 1, v3
    v_lshlrev_b32 v8, 6, v7
    v_bfe_u32 v9, v1, 2, 2
    v_lshl_add_u32 v8, v9, 3, v8
    v_lshrrev_b32 v9, 5, v1
    v_add_u32 v8, v8, v9
    v_lshlrev_b32 v8, 10, v8
    v_and_b32 v9, 3, v1
    v_lshlrev_b32 v7, 1, v7
    v_xor_b32 v9, v9, v7
    v_lshl_add_u32 v8, v9, 4, v8
    s_lshl_b32 s8, s4, 19
    s_lshr_b32 s9, s5, 4
    s_lshl_b32 s9, s9, 18
    s_add_u32 s8, s8, s9
    s_and_b32 s9, s5, 15
    s_lshl_b32 s9, s9, 6
    s_add_u32 s8, s8, s9
    s_lshr_b32 s9, s15, 1
    s_lshl_b32 s9, s9, 17
    s_add_u32 s8, s8, s9
    s_and_b32 s9, s15, 1
    s_lshl_b32 s9, s9, 12
    s_add_u32 s8, s8, s9
    s_lshl_b32 s14, s15, 12
    """)
    g(f"s_add_u32 s14, s14, {L_WOT}")
    g("""
    s_lshr_b32 s9, s5, 4
    s_lshl_b32 s9, s9, 1
    s_lshr_b32 s10, s15, 1
    s_add_u32 s9, s9, s10
    """)
    g(f"s_lshl_b32 s10, s4, 15\ns_add_u32 s10, s10, {WS_O:#x}")
    g("s_lshl_b32 s11, s9, 13\ns_add_u32 s10, s10, s11\ns_and_b32 s11, s15, 1\ns_lshl_b32 s11, s11, 12\ns_add_u32 s60, s10, s11")
    g(f"s_lshl_b32 s10, s4, 9\ns_lshl_b32 s11, s9, 7\ns_add_u32 s58, s10, s11\ns_add_u32 s58, s58, {WS_LSE:#x}")
    g(f"""
    v_lshrrev_b32 v6, 2, v2
    v_and_b32 v7, 3, v2
    v_lshlrev_b32 v{VWT}, 3, v2
    v_lshlrev_b32 v{VPAY}, 6, v2
    v_lshl_add_u32 v{VPAY}, v3, 4, v{VPAY}
    v_lshrrev_b32 v7, 2, v2
    v_lshl_add_u32 v7, v3, 2, v7
    v_lshlrev_b32 v7, 6, v7
    v_and_b32 v9, 3, v2
    v_lshl_add_u32 v7, v9, 3, v7
    v_and_b32 v9, 1, v3
    v_lshl_add_u32 v{VW0}, v9, 5, v7
    v_xor_b32 v9, 1, v9
    v_lshl_add_u32 v{VW1}, v9, 5, v7
    v_add_u32 v{VW0}, s14, v{VW0}
    v_add_u32 v{VW1}, s14, v{VW1}
    v_lshlrev_b32 v{VGW}, 7, v6
    v_lshl_add_u32 v{VGW}, v3, 4, v{VGW}
    s_lshl_b32 s10, s15, 9
    v_add_u32 v{VGW}, s10, v{VGW}
    s_mov_b32 s96, 0x11111111
    s_mov_b32 s97, 0x11111111
    s_mov_b32 s12, 0x05040100
    s_mov_b32 s13, 0x07060302
    s_mov_b32 s56, 0x000f000f
    s_mov_b32 s57, 0x000f000f
    """)
    if kneed:
        spin(F_K, kneed, sl=1)
    else:
        spin(F_K, 1, vaddr=VFW, sl=slp)
    TS(4)
    VR, AO, AT, PA = 16, 80, 112, 6
    n = 0
    for T in range(4):
        for i in range(4):
            r = VR + 16 * T + 4 * i
            if n >= limv:
                g(f"s_waitcnt vmcnt({limv-1})")
            g(f"buffer_load_dwordx4 v[{r}:{r+3}], v5, s[48:51], s{64+T} offen offset:{256*i} {kvflags}")
            n += 1
    if wolast:
        signal(F_VI)
        spin(F_VI, 4)
    for i in range(4):
        dI = 32 * (i & 1) + 2 * (i >> 1)
        g(f"s_add_u32 s9, s8, {dI*1024:#x}")
        g(f"s_add_u32 m0, s14, {1024*i}")
        g(f"buffer_load_dwordx4 v8, s[52:55], s9 offen {wflags} lds")
    TS(5)
    spin(F_P, 1, vaddr=VFW)
    g(f"ds_read_b128 v[{PA}:{PA+3}], v14 offset:{L_PL}")
    g(f"ds_read_b128 v[{PA+4}:{PA+7}], v14 offset:{L_PL+1024}")
    g("s_waitcnt lgkmcnt(0)")
    tb = lambda j: AT + 4 * j
    for u_ in range(2):
        for q in range(4):
            T = 2 * u_ + (q >> 1)
            i0 = 2 * (q & 1)
            done = 4 * T + i0 + 2
            g(f"s_waitcnt vmcnt({20-done})")
            a = VR + 16 * T + 4 * i0
            b_ = a + 4
            for dw in range(4):
                g(f"v_perm_b32 v{tb(2*dw)+q}, v{b_+dw}, v{a+dw}, s12")
                g(f"v_perm_b32 v{tb(2*dw+1)+q}, v{b_+dw}, v{a+dw}, s13")
        for j in range(8):
            c = "0" if u_ == 0 else f"v[{AO+4*j}:{AO+4*j+3}]"
            g(f"v_mfma_f32_16x16x32_bf16 v[{AO+4*j}:{AO+4*j+3}], v[{tb(j)}:{tb(j)+3}], v[{PA+4*u_}:{PA+4*u_+3}], {c}")
    g("s_mov_b64 exec, s[56:57]")
    for j in range(8):
        g(f"ds_write_b128 v15, v[{AO+4*j}:{AO+4*j+3}] offset:{L_OP + 64*j}")
    g("s_mov_b64 exec, -1")
    TS(6)
    g("s_waitcnt lgkmcnt(0)")
    g("s_barrier")
    PAY, WF, DD = 16, 32, 48

    def h1loads(hf):
        for kb in range(2):
            r = PAY + 8 * hf + 4 * kb
            g(f"buffer_load_dwordx4 v[{r}:{r+3}], v{VPAY}, s[44:47], s60 offen offset:{2048*kb + 1024*hf} sc1")
        g(f"buffer_load_dword v{64+hf}, v{VWT}, s[44:47], s58 offen offset:{4*hf} sc1")
    TS(2)
    h1loads(0)
    h1loads(1)
    g("s_waitcnt vmcnt(6)")
    TS(3)
    for kb in range(2):
        for mt in range(2):
            r = WF + 8 * kb + 4 * mt
            g(f"ds_read_b64_tr_b16 v[{r}:{r+1}], v{VW0+mt} offset:{2048*kb}")
            g(f"ds_read_b64_tr_b16 v[{r+2}:{r+3}], v{VW0+mt} offset:{2048*kb+1024}")
    if dbg:
        g("s_waitcnt vmcnt(0)")
        TS(4)
    g("s_mov_b32 s71, 0")
    g("L_h1chk:")
    g("""
    s_waitcnt vmcnt(0)
    v_max3_u32 v8, v16, v17, v18
    v_max3_u32 v9, v24, v25, v26
    v_max3_u32 v8, v8, v19, v20
    v_max3_u32 v9, v9, v27, v28
    v_max3_u32 v8, v8, v21, v22
    v_max3_u32 v9, v9, v29, v30
    v_max3_u32 v8, v8, v23, v64
    v_max3_u32 v9, v9, v31, v65
    v_cmp_eq_u32_e64 s[52:53], -1, v8
    v_cmp_eq_u32_e64 s[54:55], -1, v9
    s_or_b64 s[56:57], s[52:53], s[54:55]
    s_cbranch_scc0 L_h1done
    """)
    g(f"s_add_u32 s71, s71, 1\ns_cmp_ge_u32 s71, {maxpoll}\ns_cbranch_scc1 L_h1done")
    for hf in range(2):
        g(f"s_mov_b64 exec, s[{52+2*hf}:{53+2*hf}]")
        g(f"s_cbranch_execz L_h1s{hf}")
        h1loads(hf)
        g(f"L_h1s{hf}:")
    g("s_mov_b64 exec, -1\ns_branch L_h1chk")
    g("L_h1done:")
    g("s_waitcnt lgkmcnt(0)")
    TS(7)
    if dbg:
        g("s_mov_b32 s74, s71\ns_mov_b32 s75, 0")
    wts = ["v_max_f32 v8, v64, v65",
           "v_max_f32_dpp v8, v8, v8 quad_perm:[1,0,3,2] row_mask:0xf bank_mask:0xf",
           "v_max_f32_dpp v8, v8, v8 quad_perm:[2,3,0,1] row_mask:0xf bank_mask:0xf",
           "v_sub_f32 v64, v64, v8\nv_sub_f32 v65, v65, v8",
           "v_exp_f32 v64, v64\nv_exp_f32 v65, v65",
           "v_add_f32 v8, v64, v65",
           "v_add_f32_dpp v8, v8, v8 quad_perm:[1,0,3,2] row_mask:0xf bank_mask:0xf",
           "v_add_f32_dpp v8, v8, v8 quad_perm:[2,3,0,1] row_mask:0xf bank_mask:0xf"]
    wi = 0
    for kb in range(2):
        for mt in range(2):
            for hf in range(2):
                d = DD + 8 * mt + 4 * hf
                b_ = PAY + 8 * hf + 4 * kb
                a_ = WF + 8 * kb + 4 * mt
                c = "0" if kb == 0 else f"v[{d}:{d+3}]"
                g(f"v_mfma_f32_16x16x32_bf16 v[{d}:{d+3}], v[{a_}:{a_+3}], v[{b_}:{b_+3}], {c}")
                g(wts[wi]); wi += 1
    g("v_rcp_f32 v8, v8")
    g("v_pk_mul_f32 v[64:65], v[64:65], v[8:9] op_sel:[0,0] op_sel_hi:[1,0]")
    for mt in range(2):
        for h_ in range(2):
            d = DD + 8 * mt + 2 * h_
            g(f"v_pk_mul_f32 v[{d}:{d+1}], v[{d}:{d+1}], v[64:65] op_sel:[0,0] op_sel_hi:[1,0]")
    for mt in range(2):
        for h_ in range(2):
            d = DD + 8 * mt + 2 * h_
            g(f"v_pk_fma_f32 v[{d}:{d+1}], v[{d+4}:{d+5}], v[64:65], v[{d}:{d+1}] op_sel:[0,1,0] op_sel_hi:[1,1,1]")
    for m in ("quad_perm:[1,0,3,2]", "quad_perm:[2,3,0,1]"):
        for mt in range(2):
            for i in range(4):
                d = DD + 8 * mt + i
                g(f"v_add_f32_dpp v{d}, v{d}, v{d} {m} row_mask:0xf bank_mask:0xf")
    g("s_mov_b64 exec, s[96:97]")
    g(f"ds_write_b128 v{VGW}, v[{DD}:{DD+3}] offset:{L_GP}")
    g(f"ds_write_b128 v{VGW}, v[{DD+8}:{DD+11}] offset:{L_GP+64}")
    g("s_mov_b64 exec, -1")
    g("s_waitcnt lgkmcnt(0)")

    g("L_B5:")
    g("s_barrier")
    TS(8, 'V')
    TS(7, 'K')
    g("s_cmp_lg_u32 s3, 4\ns_cbranch_scc1 L_H2")
    for w in range(4):
        g(f"ds_read_b64 v[{16+2*w}:{17+2*w}], v{VGP} offset:{L_GP + 512*w}")
    g("s_waitcnt lgkmcnt(0)")
    g("v_pk_add_f32 v[16:17], v[16:17], v[18:19]\nv_pk_add_f32 v[20:21], v[20:21], v[22:23]\nv_pk_add_f32 v[32:33], v[16:17], v[20:21]")
    g("v_min_u32 v32, -2, v32\nv_min_u32 v33, -2, v33")
    if fg is not None and local:
        g(f"s_cmp_lg_u32 s4, {fg}\ns_cbranch_scc1 L_h2g\ns_cmp_lg_u32 s1, 0\ns_cbranch_scc1 L_h2g")
        g(f"buffer_store_dwordx2 v[32:33], v{VH2S}, s[44:47], s69 offen")
        g("s_branch L_H2")
        g("L_h2g:")
    g(f"buffer_store_dwordx2 v[32:33], v{VH2S}, s[44:47], s69 offen sc1")
    g("L_H2:")
    g("s_cmp_ge_u32 s26, 4\ns_cbranch_scc1 L_fin")
    g("L_fseg:")
    g("s_lshl_b32 s8, s26, 15\ns_lshl_b32 s9, s63, 8\ns_add_u32 s8, s8, s9")
    g(f"s_add_u32 s64, s8, {WS_H2:#x}\ns_add_u32 s65, s64, 0x2000\ns_add_u32 s66, s64, 0x4000\ns_add_u32 s67, s64, 0x6000")
    g("s_cbranch_execz L_fs_a")
    for i in range(4):
        g(f"buffer_load_dwordx4 v[{16+4*i}:{19+4*i}], v{VH2}, s[44:47], s{64+i} offen sc1")
    g("L_fs_a:")
    g(f"s_mov_b32 s8, {f2u(1.0/512):#x}\ns_mov_b32 s9, {f2u(1.0/512):#x}\ns_mov_b32 s10, {f2u(1e-5):#x}")
    g("s_mov_b32 s60, 0x80000000\ns_mov_b32 s61, 0x80000000")
    srd(48, 36, 4096)
    g("s_mov_b32 s71, 0")
    g("L_h2chk:")
    g("s_waitcnt vmcnt(0)")
    for i in range(4):
        g(f"v_max3_u32 v{8+i}, v{16+4*i}, v{17+4*i}, v{18+4*i}")
    for i in range(4):
        g(f"v_max_u32 v{8+i}, v{8+i}, v{19+4*i}")
    g("v_max3_u32 v12, v8, v9, v10\nv_max_u32 v12, v12, v11")
    g("v_cmp_eq_u32 vcc, -1, v12")
    g("s_cmp_eq_u64 vcc, 0\ns_cbranch_scc1 L_h2done")
    g(f"s_add_u32 s71, s71, 1\ns_cmp_ge_u32 s71, {maxpoll}\ns_cbranch_scc1 L_h2done")
    for i in range(4):
        g(f"v_cmp_eq_u32_e64 s[{52+2*i}:{53+2*i}], -1, v{8+i}")
    for i in range(4):
        g(f"s_mov_b64 exec, s[{52+2*i}:{53+2*i}]")
        g(f"s_cbranch_execz L_h2s{i}")
        g(f"buffer_load_dwordx4 v[{16+4*i}:{19+4*i}], v{VH2}, s[44:47], s{64+i} offen sc1")
        g(f"L_h2s{i}:")
    g("s_mov_b64 exec, -1\ns_branch L_h2chk")
    g("L_h2done:")
    TS(9, 'V')
    TS(8, 'K')
    g(f"""
    v_lshlrev_b32 v{VX}, 16, v{VX}
    v_pk_add_f32 v[16:17], v[16:17], v[20:21]
    v_pk_add_f32 v[18:19], v[18:19], v[22:23]
    v_pk_add_f32 v[24:25], v[24:25], v[28:29]
    v_pk_add_f32 v[26:27], v[26:27], v[30:31]
    v_pk_add_f32 v[16:17], v[16:17], v[24:25]
    v_pk_add_f32 v[18:19], v[18:19], v[26:27]
    v_permlane32_swap_b32 v16, v17
    v_permlane32_swap_b32 v18, v19
    v_add_f32 v16, v16, v17
    v_add_f32 v18, v18, v19
    v_permlane16_swap_b32 v16, v18
    v_add_f32 v16, v16, v18
    v_cvt_pk_bf16_f32 v16, v16, v16
    v_and_b32 v16, s42, v16
    v_add_f32 v16, v16, v{VX}
    v_cvt_pk_bf16_f32 v16, v16, v16
    v_and_b32 v13, s42, v16
    """)

    def wave_stats(x, st_off, vmwait=False):
        g(f"v_mul_f32 v19, v{x}, v{x}\nv_mov_b32 v18, v{x}")
        g("v_permlane32_swap_b32 v18, v19\nv_add_f32 v18, v18, v19")
        for m in DPP6[:5]:
            g(f"v_add_f32_dpp v18, v18, v18 {m}")
        g("s_and_b64 exec, s[60:61], s[98:99]")
        g(f"ds_write_b32 v{VST}, v18 offset:{st_off}")
        g("s_mov_b64 exec, s[98:99]")
        g("s_waitcnt lgkmcnt(0)")
        g(f"s_cbranch_execz L_fs_b{st_off}")
        g("s_barrier")
        g(f"L_fs_b{st_off}:")
        for i in range(4):
            g(f"ds_read_b128 v[{20+4*i}:{23+4*i}], v{VZ} offset:{st_off + 16*i}")
        g("s_waitcnt lgkmcnt(0)")
        g("""
        v_pk_add_f32 v[20:21], v[20:21], v[22:23]
        v_pk_add_f32 v[24:25], v[24:25], v[26:27]
        v_pk_add_f32 v[28:29], v[28:29], v[30:31]
        v_pk_add_f32 v[32:33], v[32:33], v[34:35]
        v_pk_add_f32 v[20:21], v[20:21], v[24:25]
        v_pk_add_f32 v[28:29], v[28:29], v[32:33]
        v_pk_add_f32 v[20:21], v[20:21], v[28:29]
        """)
        ln_scalar(20, 21, 22, save=(24 if aln2 else None))

    wave_stats(13, L_ST2)
    g("v_sub_f32 v16, v13, v20")
    g("v_cvt_pk_bf16_f32 v16, v16, v16\nv_and_b32 v16, s42, v16")
    g("v_mul_f32 v16, v16, v21")
    g("v_cvt_pk_bf16_f32 v16, v16, v16\nv_and_b32 v16, s42, v16")
    if aln2:
        g("v_sub_f32 v24, v24, v20\nv_mul_f32 v25, v25, v21")
        g("v_mul_f32 v20, v24, v21\nv_mul_f32 v21, v25, v21")
        ln_scalar(20, 21, 22, pre=False)
    else:
        wave_stats(16, L_ST3)
    TS(9, 'K')
    g("v_sub_f32 v16, v16, v20")
    g("v_cvt_pk_bf16_f32 v16, v16, v16\nv_and_b32 v16, s42, v16")
    g("v_mul_f32 v16, v16, v21")
    g("v_cvt_pk_bf16_f32 v16, v16, v16")
    g(f"v_and_b32 v17, 0x7fff, v16\nv_subrev_u32 v17, {EXP0 << 7}, v17")
    g("v_bfe_u32 v18, v16, 15, 1")
    g(f"s_movk_i32 s11, {NBIN*128}")
    g("v_cmp_gt_u32 vcc, s11, v17")
    g("v_mad_u32_u24 v18, v18, s11, v17")
    g("v_lshlrev_b32 v18, 1, v18")
    g("v_cndmask_b32 v18, 0, v18, vcc")
    g(f"ds_read_u16 v19, v18 offset:{L_TAB}")
    g("s_mov_b32 s12, 0xffff")
    g("s_waitcnt lgkmcnt(0)")
    g("v_cmp_ne_u32_e64 s[52:53], s12, v19")
    g("v_lshlrev_b32 v19, 16, v19\nv_add_f32 v19, v19, v13\nv_cvt_pk_bf16_f32 v19, v19, v19")
    g("s_and_b64 s[52:53], s[52:53], vcc")
    if force_fb:
        g("s_and_b32 s52, s52, 0xfffffff0")
    g("s_mov_b64 exec, s[52:53]")
    g("s_cbranch_execz L_nost")
    g(f"buffer_store_short v19, v{VCOL}, s[48:51], s43 offen")
    g("L_nost:")
    g("s_andn2_b64 exec, s[98:99], s[52:53]")
    g("s_cbranch_execz L_nomiss")
    g(f"ds_add_rtn_u32 v17, v{VFL}, v{VONE} offset:{F_MISS}")
    g(f"v_and_b32 v12, s42, v16\nv_or_b32 v12, v12, v{VCOL}")
    g("s_waitcnt lgkmcnt(0)")
    g("v_lshlrev_b32 v17, 3, v17")
    g(f"ds_write_b64 v17, v[12:13] offset:{L_MISS}")
    g("s_waitcnt lgkmcnt(0)")
    g("L_nomiss:")
    g("s_mov_b64 exec, s[98:99]")
    g("s_cbranch_execz L_dry_ret")
    g("s_barrier")
    g("s_cmp_lg_u32 s26, 0\ns_cbranch_scc1 L_fin\ns_cmp_lg_u32 s3, 4\ns_cbranch_scc1 L_fin")
    g("s_add_u32 s94, s94, 1\nv_mov_b32 v4, s94")
    g("s_mov_b64 exec, 1")
    g(f"buffer_store_dword v4, v{VZ}, s[44:47], 0 offen offset:{WS_E}")
    g("L_fin:")
    if dbg:
        g("s_mov_b64 exec, -1")
        g("s_memrealtime s[92:93]")
        g("s_waitcnt lgkmcnt(0)")
        g(f"s_lshl_b32 s8, s2, 11\ns_lshl_b32 s9, s3, 7\ns_add_u32 s8, s8, s9\ns_add_u32 s8, s8, {WS_DBG:#x}")
        g("s_mov_b64 exec, 1")
        for i in range(0, 22, 2):
            g(f"v_mov_b32 v8, s{72+i}\nv_mov_b32 v9, s{73+i}")
            g(f"buffer_store_dwordx2 v[8:9], v{VZ}, s[44:47], s8 offen offset:{4*i}")
            g("s_nop 1")
    g("L_end:")
    g("s_endpgm")
    g('.section .rodata,"a"')
    g(".p2align 6")
    g(f".amdhsa_kernel {KN}")
    for d in ["next_free_vgpr 168", "next_free_sgpr 102", "accum_offset 168", "group_segment_fixed_size 0", "kernarg_size 104",
              "user_sgpr_count 2", "user_sgpr_kernarg_segment_ptr 1", "system_sgpr_workgroup_id_x 1", "float_denorm_mode_32 3"]:
        g(f".amdhsa_{d}")
    g(".end_amdhsa_kernel")
    open(path, "w").write(g.text())


if __name__ == "__main__":
    kw = eval("dict(%s)" % (sys.argv[2] if len(sys.argv) > 2 else ""))
    gen(sys.argv[1], **kw)
```

```python
import sys, struct, math
from asmlib import Gen

KN = "sequential_preLN__sliding_block_cached__mixer_token_mlp__decode_kernel"

def f2u(x):
    return struct.unpack("<I", struct.pack("<f", x))[0]

WS_E = 0
WS_T = 0x1000
WS_LSE = 0x2000
WS_TAB = 0x4000
WS_H2 = 0x10000
WS_O = 0x40000
OSTR = 1152
WS_QS = 0x90000
QSL = 0x80000
WS_DBG = 0x200000
L_WQT = 0
L_OP = 0
OPW = 2304
OPH = 576
L_GP = 9216
L_MISS = 11264
L_ST2 = 15360
L_ST3 = 15424
L_WOT = 16384
L_TAB = 16384
L_XN = 32768
L_QL = 33792
L_PL = 34816
L_ST = 43008
L_WT = 43200
L_FL = 43456
L_MW = 43520
L_KL = 57344
L_TOTAL = 57344 + 65536
F_NL, F_Q, F_MW, F_ST, F_K, F_P, F_MISS, F_CL, F_VI = 0, 4, 8, 12, 16, 32, 48, 52, 56
EXP0 = 108
NBIN = 24
NW = 12

LOG2E = 1.4426950408889634
K0 = -2.0 * math.sqrt(2.0 / math.pi) * LOG2E
K1 = K0 * 0.044715
ALPHA = -((-K1) ** (1.0 / 3.0))
BETA = K0 / ALPHA
HEADER = open("sequential_preLN__sliding_block_cached__mixer_token_mlp__decode.s.ref").read().split("; Override launch")[0]

names_c = ["start", "B0", "q pub", "mw rdy", "tabdone", "-", "-", "-", "-", "-", "end"]
names_k = ["start", "Kissued", "q got", "P rdy", "preB3", "B3", "O pub", "B5", "h2 done", "B6b", "end"]
names_v = ["start", "rounds", "B3", "wo in", "rnd1", "Vissued", "PVdone", "h1 done", "B5", "h2 done", "end"]

DPP6 = ["row_shr:1 row_mask:0xf bank_mask:0xf bound_ctrl:0", "row_shr:2 row_mask:0xf bank_mask:0xf bound_ctrl:0",
        "row_shr:4 row_mask:0xf bank_mask:0xf bound_ctrl:0", "row_shr:8 row_mask:0xf bank_mask:0xf bound_ctrl:0",
        "row_bcast:15 row_mask:0xa bank_mask:0xf", "row_bcast:31 row_mask:0xc bank_mask:0xf"]

VZ, VT, VONE, VFL, VFW = 160, 161, 162, 163, 164
VX, VB2, VH2, VCOL, VH2S, VGP, VST = 144, 145, 146, 147, 148, 149, 150
P0 = 152


def gen(path, dbg=False, kvflags="nt", wflags="nt", maxpoll=1 << 18, lim=4, limv=6, dry=False, fg=4, aln2=True, ksig=13, gpos=11, wolast=True, strided=True, rotm=1, kneed=0, kearly=0, nloc=8, pretouch=True, force_fb=False, local=True, mwearly=True, slp=2, notab=False, nomw=False, g1=False):
    g = Gen()
    uid = [0]

    def TS(k, cond=None):
        if dbg:
            if cond:
                uid[0] += 1
                g(f"s_cmp_{'lt' if cond == 'V' else 'ge'}_u32 s3, 8\ns_cbranch_scc1 L_ts{uid[0]}")
            g(f"s_memrealtime s[{72+2*k}:{73+2*k}]")
            if cond:
                g(f"L_ts{uid[0]}:")

    def srd(d, lo, nbytes):
        g(f"s_mov_b32 s{d}, s{lo}\ns_and_b32 s{d+1}, s{lo+1}, 0xffff\ns_mov_b32 s{d+2}, {nbytes:#x}\ns_mov_b32 s{d+3}, 0x20000")

    def signal(off, vaddr=VFL):
        g("s_mov_b64 exec, 1")
        g(f"ds_add_u32 v{vaddr}, v{VONE} offset:{off}")
        g("s_mov_b64 exec, -1")

    def spin(off, target, sl=1, vaddr=VFL):
        uid[0] += 1
        u = uid[0]
        g("s_mov_b32 s71, 0")
        g(f"L_sp{u}:")
        g(f"ds_read_b32 v{VT}, v{vaddr} offset:{off}")
        g(f"s_add_u32 s71, s71, 1\ns_cmp_ge_u32 s71, {maxpoll*4}\ns_cbranch_scc1 L_spx{u}")
        g("s_waitcnt lgkmcnt(0)")
        g(f"v_readfirstlane_b32 s70, v{VT}")
        g(f"s_cmp_ge_u32 s70, {target}\ns_cbranch_scc1 L_spx{u}")
        g(f"s_sleep {sl}")
        g(f"s_branch L_sp{u}")
        g(f"L_spx{u}:")

    def tags():
        g("s_mul_i32 s92, s94, 0x85ebca6b\ns_add_u32 s92, s92, 0x7f4a7c15\ns_mul_i32 s93, s94, 0x9e3779b1\ns_add_u32 s93, s93, 0x1b873593")

    def ln_scalar(m, v, t, pre=True, save=None):
        if pre:
            g(f"v_pk_mul_f32 v[{m}:{v}], v[{m}:{v}], s[8:9]")
            g(f"v_fma_f32 v{v}, -v{m}, v{m}, v{v}")
            g(f"v_max_f32 v{v}, 0, v{v}")
        if save is not None:
            g(f"v_mov_b32 v{save}, v{m}\nv_mov_b32 v{save+1}, v{v}")
        g(f"v_cvt_pk_bf16_f32 v{t}, v{m}, v{v}")
        g(f"v_and_b32 v{v}, s42, v{t}")
        g(f"v_lshlrev_b32 v{m}, 16, v{t}")
        g(f"v_add_f32 v{v}, s10, v{v}")
        g(f"v_cvt_pk_bf16_f32 v{t}, v{v}, v{v}")
        g(f"v_and_b32 v{v}, s42, v{t}")
        g(f"v_sqrt_f32 v{v}, v{v}")
        g(f"v_cvt_pk_bf16_f32 v{t}, v{v}, v{v}")
        g(f"v_and_b32 v{v}, s42, v{t}")
        g(f"v_rcp_f32 v{v}, v{v}")

    g(HEADER.rstrip())
    g(f"; @launch grid=(256,1,1) block=({NW*64},1,1) lds={L_TOTAL}")
    g('.amdgcn_target "amdgcn-amd-amdhsa--gfx950"')
    g(".text")
    g(f".globl {KN}")
    g(".p2align 8")
    g(f".type {KN},@function")
    g(f"{KN}:")
    TS(0)
    g("""
    s_cmp_ge_u32 s2, 256
    s_cbranch_scc1 L_end
    s_load_dwordx16 s[16:31], s[0:1], 0
    s_load_dwordx8 s[32:39], s[0:1], 64
    s_load_dwordx2 s[40:41], s[0:1], 96
    v_lshrrev_b32 v4, 6, v0
    v_and_b32 v1, 63, v0
    v_readfirstlane_b32 s3, v4
    v_and_b32 v2, 15, v1
    v_lshrrev_b32 v3, 4, v1
    s_and_b32 s4, s2, 7
    s_lshr_b32 s5, s2, 3
    s_lshr_b32 s6, s5, 3
    s_and_b32 s7, s5, 7
    s_mov_b32 s42, 0xffff0000
    s_mov_b64 s[98:99], -1
    """)
    g(f"v_mov_b32 v{VFL}, {L_FL}\nv_mov_b32 v{VONE}, 1\nv_mov_b32 v{VZ}, 0")
    g(f"""
    s_and_b32 s15, s3, 3
    s_lshl_b32 s8, s6, 3
    s_add_u32 s8, s8, s4
    s_lshl_b32 s8, s8, 21
    s_lshl_b32 s9, s7, {12 if strided else 16}
    s_add_u32 s8, s8, s9
    s_add_u32 s8, s8, 0x180000
    s_add_u32 s9, s2, s5
    s_mul_i32 s9, s9, {rotm}
    s_add_u32 s9, s9, s15
    s_lshl_b32 s11, s15, 2
    v_add_u32 v{VFW}, s11, v{VFL}
    """)
    for i in range(4):
        g(f"s_add_u32 s{64+i}, s9, {4*i}\ns_and_b32 s{64+i}, s{64+i}, 15\ns_lshl_b32 s{64+i}, s{64+i}, {15 if strided else 12}\ns_add_u32 s{64+i}, s{64+i}, s8")
    g("s_waitcnt lgkmcnt(0)")
    srd(44, 40, 0x10000000)
    g(f"s_load_dword s94, s[40:41], {WS_E}")
    g("s_getreg_b32 s0, hwreg(HW_REG_XCC_ID)\ns_and_b32 s0, s0, 7")
    if fg is None:
        g("s_mov_b32 s26, s2")
    else:
        g(f"s_cmp_eq_u32 s4, {fg}\ns_cselect_b32 s26, s5, 64")
    g("""
    s_cmp_ge_u32 s3, 8
    s_cbranch_scc1 L_V
    s_cmp_ge_u32 s3, 4
    s_cbranch_scc1 L_K
    """)
    srd(60, 34, 2)
    g(f"buffer_load_ushort v{VB2}, v{VZ}, s[60:63], 0 offen")
    g("s_cmp_lg_u32 s3, 0\ns_cbranch_scc1 L_C123")
    srd(48, 16, 4096)
    srd(52, 22, 0x400000)
    g("""
    v_and_b32 v4, 3, v1
    v_lshlrev_b32 v5, 10, v4
    v_lshrrev_b32 v6, 2, v1
    v_lshl_add_u32 v6, v6, 6, v5
    """)
    for i in range(4):
        g(f"buffer_load_dwordx4 v[{16+4*i}:{19+4*i}], v6, s[48:51], 0 offen offset:{16*i}")
    g("""
    v_lshrrev_b32 v7, 2, v2
    v_lshl_add_u32 v5, v7, 6, v5
    v_lshl_add_u32 v5, v3, 3, v5
    s_lshl_b32 s8, s6, 8
    buffer_load_dwordx2 v[32:33], v5, s[48:51], s8 offen
    buffer_load_dwordx2 v[34:35], v5, s[48:51], s8 offen offset:32
    v_lshrrev_b32 v6, 3, v1
    v_lshlrev_b32 v6, 13, v6
    v_and_b32 v8, 7, v1
    v_lshlrev_b32 v9, 1, v3
    v_xor_b32 v8, v8, v9
    v_lshl_add_u32 v6, v8, 4, v6
    s_lshl_b32 s8, s6, 20
    s_lshl_b32 s9, s4, 10
    s_add_u32 s8, s8, s9
    s_lshl_b32 s9, s7, 7
    s_add_u32 s8, s8, s9
    """)
    for i in range(16):
        g(f"s_mov_b32 m0, {L_WQT + 1024*i}")
        g(f"s_add_u32 s9, s8, {0x10000*i:#x}")
        g(f"buffer_load_dwordx4 v6, s[52:55], s9 offen {wflags} lds")
    g("s_barrier")
    TS(1)
    g("s_branch L_Q2")

    g("L_K:")
    srd(48, 18, 0x4000000)
    g("v_xor_b32 v4, v2, v3\nv_lshlrev_b32 v7, 8, v3\nv_lshlrev_b32 v9, 8, v2")
    g(f"s_lshl_b32 s63, s15, 14\ns_add_u32 s63, s63, {L_KL}\nv_add_u32 v9, s63, v9")
    for u in range(4):
        g(f"v_xor_b32 v8, {4*u}, v4\nv_lshl_add_u32 v{132+u}, v8, 4, v7\nv_lshl_add_u32 v{136+u}, v8, 4, v9")
    g("""
    s_lshl_b32 s8, s4, 16
    s_lshl_b32 s9, s6, 14
    s_add_u32 s8, s8, s9
    s_lshl_b32 s9, s15, 10
    s_add_u32 s8, s8, s9
    """)
    g(f"s_add_u32 s12, s8, {WS_QS:#x}\ns_add_u32 s13, s12, 0x1000\ns_add_u32 s14, s12, 0x2000\ns_add_u32 s43, s12, 0x3000")
    g(f"s_lshl_b32 s68, s15, 9\ns_add_u32 s68, s68, {WS_T:#x}")
    g(f"v_lshlrev_b32 v5, 4, v1\nv_add_u32 v5, {QSL:#x}, v5\nv_lshlrev_b32 v6, 3, v1")
    g("s_setprio 2")
    if kearly == 0: g("s_barrier")
    KR, QF, SA, PR, TM = 16, 80, 96, 112, 120
    qso = ["s12", "s13", "s14", "s43"] if not g1 else ["s12", "s12", "s12", "s12"]

    def kload(n):
        T, t = n >> 2, n & 3
        if t == 0:
            g(f"s_add_u32 m0, s63, {4096*T}")
        g(f"buffer_load_dwordx4 v{132+t}, s[48:51], s{64+T} offen offset:{1024*t} {kvflags} lds")
    for n in range(0, 16):
        if n == gpos:
            for ks in range(4):
                g(f"buffer_load_dwordx4 v[{QF+4*ks}:{QF+4*ks+3}], v5, s[44:47], {qso[ks]} offen sc1")
        if n >= lim:
            extra = 4 if (n >= gpos and n - lim < gpos) else 0
            g(f"s_waitcnt vmcnt({lim-1+extra})")
        kload(n)
        if kearly and n == kearly - 1: g("s_barrier")
        if n == ksig:
            signal(F_K, VFW if not kneed else VFL)
    if gpos >= 16:
        for ks in range(4):
            g(f"buffer_load_dwordx4 v[{QF+4*ks}:{QF+4*ks+3}], v5, s[44:47], {qso[ks]} offen sc1")
    TS(1)
    g("s_waitcnt lgkmcnt(0)")
    tags()
    g("s_mov_b32 s71, 0")
    g(f"s_waitcnt vmcnt({max(16-gpos,0)})")
    g("s_branch L_qchk")
    g("L_qpoll:")
    g(f"s_cmp_lg_u32 s71, {nloc}\ns_cbranch_scc1 L_qnl")
    g("v_lshlrev_b32 v5, 4, v1")
    g("L_qnl:")
    for ks in range(4):
        g(f"s_mov_b64 exec, s[{52+2*ks}:{53+2*ks}]")
        g(f"s_cbranch_execz L_qs{ks}")
        g(f"buffer_load_dwordx4 v[{QF+4*ks}:{QF+4*ks+3}], v5, s[44:47], {qso[ks]} offen sc1")
        g(f"L_qs{ks}:")
    g("s_mov_b64 exec, -1")
    g("s_waitcnt vmcnt(0)")
    g("L_qchk:")
    for ks in range(4):
        r = QF + 4 * ks
        g(f"v_xor_b32 v8, v{r+2}, v{r+1}")
        g(f"v_xor_b32 v9, v{r+3}, v{r}")
        g("v_xor_b32 v8, s92, v8")
        g(f"v_subrev_u32 v{128+ks}, s93, v9")
        g(f"v_lshrrev_b32 v9, 3, v{128+ks}")
        g("v_or_b32 v8, v8, v9")
        g(f"v_cmp_ne_u32_e64 s[{52+2*ks}:{53+2*ks}], 0, v8")
    g(f"s_add_u32 s71, s71, 1\ns_cmp_ge_u32 s71, {maxpoll}\ns_cbranch_scc1 L_qdone")
    g("s_or_b64 s[8:9], s[52:53], s[54:55]\ns_or_b64 s[10:11], s[56:57], s[58:59]\ns_or_b64 s[8:9], s[8:9], s[10:11]")
    g("s_cbranch_scc1 L_qpoll")
    g("L_qdone:")
    g("v_xor_b32 v128, s0, v128\nv_xor_b32 v129, s0, v129\nv_xor_b32 v130, s0, v130\nv_xor_b32 v131, s0, v131")
    g("v_or3_b32 v128, v128, v129, v130\nv_or_b32 v128, v128, v131")
    g("v_cmp_ne_u32 vcc, 0, v128")
    g("s_cmp_eq_u64 vcc, 0\ns_cbranch_scc1 L_alllocal")
    signal(F_NL)
    g("L_alllocal:")
    g(f"v_pk_add_f32 v[{QF}:{QF+1}], v[{QF}:{QF+1}], v[{QF+4}:{QF+5}]")
    g(f"v_pk_add_f32 v[{QF+8}:{QF+9}], v[{QF+8}:{QF+9}], v[{QF+12}:{QF+13}]")
    g(f"v_pk_add_f32 v[{QF}:{QF+1}], v[{QF}:{QF+1}], v[{QF+8}:{QF+9}]")
    g(f"v_cvt_pk_bf16_f32 v8, v{QF}, v{QF+1}")
    g("v_lshlrev_b32 v9, 2, v1\ns_lshl_b32 s8, s15, 8\nv_add_u32 v9, s8, v9")
    g(f"ds_write_b32 v9, v8 offset:{L_QL}")
    signal(F_Q)
    g("""
    v_and_b32 v10, 3, v2
    v_lshlrev_b32 v7, 8, v10
    v_lshl_add_u32 v7, v3, 4, v7
    v_lshlrev_b32 v12, 5, v10
    s_lshl_b32 s11, s15, 3
    v_add_u32 v13, s11, v12
    v_lshlrev_b32 v14, 4, v1
    s_lshl_b32 s11, s15, 11
    v_add_u32 v14, s11, v14
    """)
    spin(F_Q, 4)
    TS(2)
    for t in range(4):
        g(f"ds_read_b128 v[{QF+4*t}:{QF+4*t+3}], v7 offset:{L_QL + 64*t}")
    SC = 128 ** -0.5
    g(f"s_mov_b32 s8, {f2u(SC):#x}\ns_mov_b32 s9, {f2u(SC):#x}\ns_mov_b32 s10, {f2u(LOG2E):#x}")
    g("s_waitcnt lgkmcnt(0)")
    for T in range(4):
        g(f"s_waitcnt vmcnt({12-4*T})")
        for t in range(4):
            r = KR + 16 * T + 4 * t
            g(f"ds_read_b128 v[{r}:{r+3}], v{136+t} offset:{4096*T}")
    g("s_waitcnt lgkmcnt(0)")
    for T in range(4):
        for t in range(4):
            r = KR + 16 * T + 4 * t
            c = "0" if t == 0 else f"v[{SA+4*T}:{SA+4*T+3}]"
            g(f"v_mfma_f32_16x16x32_bf16 v[{SA+4*T}:{SA+4*T+3}], v[{r}:{r+3}], v[{QF+4*t}:{QF+4*t+3}], {c}")
    for rep in range(2):
        for p in range(8):
            a = SA + 2 * p
            g(f"v_cvt_pk_bf16_f32 v{TM+p}, v{a}, v{a+1}")
        for p in range(8):
            a = SA + 2 * p
            g(f"v_lshlrev_b32 v{a}, 16, v{TM+p}")
            g(f"v_and_b32 v{a+1}, s42, v{TM+p}")
        if rep == 0:
            for p in range(8):
                a = SA + 2 * p
                g(f"v_pk_mul_f32 v[{a}:{a+1}], v[{a}:{a+1}], s[8:9]")
    g(f"v_max3_f32 v8, v{SA}, v{SA+1}, v{SA+2}")
    g(f"v_max3_f32 v9, v{SA+3}, v{SA+4}, v{SA+5}")
    g(f"v_max3_f32 v10, v{SA+6}, v{SA+7}, v{SA+8}")
    g(f"v_max3_f32 v11, v{SA+9}, v{SA+10}, v{SA+11}")
    g(f"v_max3_f32 v8, v8, v{SA+12}, v{SA+13}")
    g(f"v_max3_f32 v9, v9, v{SA+14}, v{SA+15}")
    g("v_max3_f32 v8, v8, v9, v10\nv_max_f32 v8, v8, v11")
    g("v_mov_b32 v9, v8\nv_permlane32_swap_b32 v8, v9\nv_max_f32 v8, v8, v9")
    g("v_mov_b32 v9, v8\nv_permlane16_swap_b32 v8, v9\nv_max_f32 v8, v8, v9")
    g("v_mul_f32 v10, s10, v8")
    for e in range(16):
        g(f"v_fma_f32 v{SA+e}, v{SA+e}, s10, -v10")
    for e in range(16):
        g(f"v_exp_f32 v{SA+e}, v{SA+e}")
    for p in range(8):
        g(f"v_cvt_pk_bf16_f32 v{PR+p}, v{SA+2*p}, v{SA+2*p+1}")
    g(f"ds_write_b128 v14, v[{PR}:{PR+3}] offset:{L_PL}")
    g(f"ds_write_b128 v14, v[{PR+4}:{PR+7}] offset:{L_PL+1024}")
    signal(F_P, VFW)
    for p in range(4):
        g(f"v_pk_add_f32 v[{SA+2*p}:{SA+2*p+1}], v[{SA+2*p}:{SA+2*p+1}], v[{SA+8+2*p}:{SA+9+2*p}]")
    for p in range(2):
        g(f"v_pk_add_f32 v[{SA+2*p}:{SA+2*p+1}], v[{SA+2*p}:{SA+2*p+1}], v[{SA+4+2*p}:{SA+5+2*p}]")
    g(f"v_pk_add_f32 v[{SA}:{SA+1}], v[{SA}:{SA+1}], v[{SA+2}:{SA+3}]")
    g(f"v_add_f32 v9, v{SA}, v{SA+1}")
    g("v_mov_b32 v11, v9\nv_permlane32_swap_b32 v9, v11\nv_add_f32 v9, v9, v11")
    g("v_mov_b32 v11, v9\nv_permlane16_swap_b32 v9, v11\nv_add_f32 v9, v9, v11")
    g("s_mov_b64 exec, 15")
    g(f"ds_write_b64 v13, v[8:9] offset:{L_ST}")
    g("s_mov_b64 exec, -1")
    signal(F_ST)
    TS(3)
    spin(F_ST, 4)
    FA = P0
    g("s_lshl_b32 s11, s15, 5\nv_mov_b32 v12, s11")
    g(f"ds_read_b128 v[16:19], v12 offset:{L_ST}")
    g(f"ds_read_b128 v[20:23], v12 offset:{L_ST+16}")
    g(f"ds_read_b32 v27, v{VFL} offset:{F_NL}")
    g("s_waitcnt lgkmcnt(0)")
    g("v_readfirstlane_b32 s1, v27")
    g("v_max3_f32 v24, v16, v18, v20\nv_max_f32 v24, v24, v22")
    for i in range(4):
        g(f"v_sub_f32 v{FA+i}, v{16+2*i}, v24")
        g(f"v_mul_f32 v{FA+i}, s10, v{FA+i}")
        g(f"v_exp_f32 v{FA+i}, v{FA+i}")
    g(f"v_mul_f32 v25, v{FA}, v17")
    for i in range(1, 4):
        g(f"v_fmac_f32 v25, v{FA+i}, v{17+2*i}")
    g("v_rcp_f32 v26, v25\nv_log_f32 v25, v25")
    for i in range(4):
        g(f"v_mul_f32 v{FA+i}, v{FA+i}, v26")
    VOPR, VL4, VLSE = P0 + 4, P0 + 5, P0 + 6
    g(f"v_fma_f32 v25, v24, s10, v25\nv_min_u32 v{VLSE}, -2, v25")
    g(f"v_lshlrev_b32 v{VOPR}, 3, v1\ns_mul_i32 s11, s15, {OPH}\nv_add_u32 v{VOPR}, s11, v{VOPR}")
    g(f"v_lshlrev_b32 v{VL4}, 2, v2\nv_lshl_add_u32 v{VL4}, v3, 11, v{VL4}")
    g("s_cmp_ge_u32 s26, 4\ns_cbranch_scc1 L_tdone")
    g("s_mov_b32 s71, 0")
    g("L_tpoll:")
    g("buffer_load_dwordx2 v[128:129], v6, s[44:47], s68 offen sc1")
    g("s_waitcnt vmcnt(0)")
    g("v_xor_b32 v16, s92, v128\nv_xor_b32 v17, s93, v129\nv_or_b32 v16, v16, v17")
    g("v_cmp_ne_u32 vcc, 0, v16")
    g(f"s_add_u32 s71, s71, 1\ns_cmp_ge_u32 s71, {maxpoll}\ns_cbranch_scc1 L_tdone")
    g("s_cmp_lg_u64 vcc, 0\ns_cbranch_scc1 L_tpoll")
    g("L_tdone:")
    g(f"s_lshl_b32 s11, s4, 15\ns_lshr_b32 s13, s7, 2\ns_lshl_b32 s13, s13, 10\ns_add_u32 s11, s11, s13\ns_lshl_b32 s13, s6, 8\ns_add_u32 s11, s11, s13\ns_and_b32 s13, s7, 3\ns_lshl_b32 s13, s13, 6\ns_add_u32 s11, s11, s13\ns_add_u32 s11, s11, {WS_O:#x}")
    g("s_lshl_b32 s13, s15, 13\ns_add_u32 s68, s11, s13")
    g(f"s_lshl_b32 s62, s4, 9\ns_lshl_b32 s13, s6, 5\ns_add_u32 s62, s62, s13\ns_and_b32 s13, s7, 3\ns_lshl_b32 s13, s13, 3\ns_add_u32 s62, s62, s13\ns_lshr_b32 s13, s7, 2\ns_lshl_b32 s13, s13, 2\ns_add_u32 s62, s62, s13\ns_add_u32 s62, s62, {WS_LSE:#x}")
    g("s_lshl_b32 s13, s15, 7\ns_add_u32 s62, s62, s13")
    g("s_call_b64 s[100:101], L_fsetup")
    g("s_mov_b64 exec, 1")
    if local:
        g("s_cmp_lg_u32 s1, 0\ns_cbranch_scc1 L_lstg")
        g(f"buffer_store_dword v{VLSE}, v{VZ}, s[44:47], s62 offen")
        g("s_branch L_lsd")
        g("L_lstg:")
    g(f"buffer_store_dword v{VLSE}, v{VZ}, s[44:47], s62 offen sc1")
    g("L_lsd:")
    g("s_mov_b64 exec, -1")
    g("s_waitcnt lgkmcnt(0)")
    TS(4)
    g("s_barrier")
    TS(5)
    for w in range(4):
        g(f"ds_read_b64 v[{16+2*w}:{17+2*w}], v{VOPR} offset:{L_OP + OPW*w}")
    g("s_waitcnt lgkmcnt(0)")
    g(f"v_pk_mul_f32 v[16:17], v[16:17], v[{FA}:{FA+1}] op_sel:[0,0] op_sel_hi:[1,0]")
    g(f"v_pk_mul_f32 v[20:21], v[20:21], v[{FA+2}:{FA+3}] op_sel:[0,0] op_sel_hi:[1,0]")
    g(f"v_pk_fma_f32 v[16:17], v[18:19], v[{FA}:{FA+1}], v[16:17] op_sel:[0,1,0] op_sel_hi:[1,1,1]")
    g(f"v_pk_fma_f32 v[20:21], v[22:23], v[{FA+2}:{FA+3}], v[20:21] op_sel:[0,1,0] op_sel_hi:[1,1,1]")
    g("v_pk_add_f32 v[16:17], v[16:17], v[20:21]")
    g("v_cvt_pk_bf16_f32 v16, v16, v17\nv_min_u32 v16, -2, v16")
    if local:
        g("s_cmp_lg_u32 s1, 0\ns_cbranch_scc1 L_ostg")
        g(f"buffer_store_dword v16, v{VL4}, s[44:47], s68 offen")
        TS(6)
        g("s_branch L_B5")
        g("L_ostg:")
    g(f"buffer_store_dword v16, v{VL4}, s[44:47], s68 offen sc1")
    TS(6)
    g("s_branch L_B5")

    g("L_fsetup:")
    g(f"""
    s_sub_u32 s63, s3, 4
    s_lshr_b32 s13, s5, 4
    s_lshl_b32 s14, s4, 1
    s_add_u32 s13, s13, s14
    s_lshl_b32 s13, s13, 11
    s_and_b32 s14, s5, 15
    s_lshl_b32 s14, s14, 7
    s_add_u32 s13, s13, s14
    v_lshlrev_b32 v{VH2S}, 15, v3
    v_lshl_add_u32 v{VH2S}, v2, 3, v{VH2S}
    v_lshlrev_b32 v{VGP}, 3, v1
    """)
    g(f"s_add_u32 s69, s13, {WS_H2:#x}")
    srd(56, 16, 4096)
    g(f"""
    v_and_b32 v8, 1, v3
    v_lshlrev_b32 v8, 1, v8
    v_lshrrev_b32 v9, 1, v3
    v_or_b32 v8, v8, v9
    v_lshl_add_u32 v8, v2, 2, v8
    s_lshl_b32 s8, s63, 6
    v_add_u32 v8, s8, v8
    v_lshlrev_b32 v{VCOL}, 1, v8
    s_and_b32 s8, s26, 3
    s_lshl_b32 s43, s8, 10
    v_lshlrev_b32 v{VH2}, 11, v3
    v_lshl_add_u32 v{VH2}, v2, 4, v{VH2}
    s_lshl_b32 s11, s63, 3
    v_lshrrev_b32 v{VST}, 5, v1
    v_lshlrev_b32 v{VST}, 2, v{VST}
    v_add_u32 v{VST}, s11, v{VST}
    s_cmp_ge_u32 s26, 4
    s_cbranch_scc1 L_fs1
    buffer_load_ushort v{VX}, v{VCOL}, s[56:59], s43 offen
    L_fs1:
    s_setpc_b64 s[100:101]
    """)

    g("L_Q2:")
    g("s_setprio 1")
    g("s_waitcnt vmcnt(18)")
    g("s_mov_b32 s8, 0x3f803f80\nv_mov_b32 v10, 0\nv_mov_b32 v11, 0\nv_mov_b32 v12, 0\nv_mov_b32 v13, 0")
    for i in range(0, 16, 2):
        g(f"v_dot2_f32_bf16 v10, v{16+i}, s8, v10")
        g(f"v_dot2_f32_bf16 v11, v{16+i}, v{16+i}, v11")
        g(f"v_dot2_f32_bf16 v12, v{17+i}, s8, v12")
        g(f"v_dot2_f32_bf16 v13, v{17+i}, v{17+i}, v13")
    g("s_nop 2")
    g("v_pk_add_f32 v[10:11], v[10:11], v[12:13]")
    for m in ("row_ror:4", "row_ror:8"):
        g(f"v_add_f32_dpp v10, v10, v10 {m} row_mask:0xf bank_mask:0xf")
        g(f"v_add_f32_dpp v11, v11, v11 {m} row_mask:0xf bank_mask:0xf")
    for sw in ("v_permlane32_swap_b32", "v_permlane16_swap_b32"):
        g("v_mov_b32 v12, v10\nv_mov_b32 v13, v11")
        g(f"{sw} v10, v12\n{sw} v11, v13")
        g("v_pk_add_f32 v[10:11], v[10:11], v[12:13]")
    g(f"s_mov_b32 s8, {f2u(1.0/512):#x}\ns_mov_b32 s9, {f2u(1.0/512):#x}\ns_mov_b32 s10, {f2u(1e-5):#x}")
    ln_scalar(10, 11, 12)
    g("s_waitcnt vmcnt(16)")
    for d in range(4):
        a = 16 + 2 * d
        g(f"v_lshlrev_b32 v{a}, 16, v{32+d}\nv_and_b32 v{a+1}, s42, v{32+d}")
    for d in range(4):
        a = 16 + 2 * d
        g(f"v_pk_add_f32 v[{a}:{a+1}], v[{a}:{a+1}], v[10:11] op_sel:[0,0] op_sel_hi:[1,0] neg_lo:[0,1] neg_hi:[0,1]")
    for d in range(4):
        a = 16 + 2 * d
        g(f"v_cvt_pk_bf16_f32 v{32+d}, v{a}, v{a+1}")
    for d in range(4):
        a = 16 + 2 * d
        g(f"v_lshlrev_b32 v{a}, 16, v{32+d}\nv_and_b32 v{a+1}, s42, v{32+d}")
    for d in range(4):
        a = 16 + 2 * d
        g(f"v_pk_mul_f32 v[{a}:{a+1}], v[{a}:{a+1}], v[10:11] op_sel:[0,1] op_sel_hi:[1,1]")
    for d in range(4):
        a = 16 + 2 * d
        g(f"v_cvt_pk_bf16_f32 v{32+d}, v{a}, v{a+1}")
    g("""
    v_lshlrev_b32 v8, 8, v4
    v_lshl_add_u32 v8, v3, 4, v8
    v_lshl_add_u32 v9, v7, 6, v8
    """)
    g(f"ds_write_b128 v9, v[32:35] offset:{L_XN}")
    for kb in range(4):
        g(f"ds_read_b128 v[{36+4*kb}:{39+4*kb}], v8 offset:{L_XN + 64*kb}")
    g("""
    v_lshrrev_b32 v9, 2, v2
    v_lshl_add_u32 v9, v3, 2, v9
    v_bfe_u32 v14, v9, 1, 2
    v_lshlrev_b32 v9, 7, v9
    v_lshl_add_u32 v9, v4, 3, v9
    """)
    for mt in range(4):
        g(f"v_xor_b32 v15, {mt}, v14")
        g(f"v_lshl_add_u32 v{10+mt}, v15, 5, v9")
    g("s_waitcnt lgkmcnt(0)")
    tags()
    AF = 52
    for kb in range(4):
        g(f"s_waitcnt vmcnt({12-4*kb})")
        for mt in range(4):
            r = AF + 16 * kb + 4 * mt
            g(f"ds_read_b64_tr_b16 v[{r}:{r+1}], v{10+mt} offset:{L_WQT + 4096*kb}")
            g(f"ds_read_b64_tr_b16 v[{r+2}:{r+3}], v{10+mt} offset:{L_WQT + 4096*kb + 2048}")
    for z in (1, 2, 3):
        g(f"v_cmp_eq_u32_e64 s[{50+2*z}:{51+2*z}], {z}, v7")
    g("""
    v_lshlrev_b32 v8, 14, v4
    v_lshl_add_u32 v8, v7, 7, v8
    v_lshl_add_u32 v8, v3, 5, v8
    s_lshl_b32 s8, s4, 16
    s_lshl_b32 s9, s6, 12
    s_add_u32 s8, s8, s9
    s_lshl_b32 s9, s7, 9
    s_add_u32 s8, s8, s9
    """)
    g(f"s_add_u32 s8, s8, {WS_QS:#x}")
    g("s_add_u32 s93, s93, s0")
    g("s_waitcnt lgkmcnt(0)")
    QD = 116
    for kb in range(4):
        for mt in range(4):
            r = AF + 16 * kb + 4 * mt
            c = "0" if kb == 0 else f"v[{QD+4*mt}:{QD+4*mt+3}]"
            g(f"v_mfma_f32_16x16x32_bf16 v[{QD+4*mt}:{QD+4*mt+3}], v[{r}:{r+3}], v[{36+4*kb}:{39+4*kb}], {c}")
    for z in (1, 2, 3):
        for i in range(4):
            g(f"v_cndmask_b32_e64 v{QD+i}, v{QD+i}, v{QD+4*z+i}, s[{50+2*z}:{51+2*z}]")
    spin(F_CL, 1)
    g(f"""
    v_mov_b32 v136, v{QD}
    v_mov_b32 v137, v{QD+1}
    v_xor_b32 v138, s92, v{QD+1}
    v_xor_b32 v139, s93, v{QD}
    v_mov_b32 v140, v{QD+2}
    v_mov_b32 v141, v{QD+3}
    v_xor_b32 v142, s92, v{QD+3}
    v_xor_b32 v143, s93, v{QD+2}
    s_add_u32 s9, s8, {QSL:#x}
    s_setprio 3
    buffer_store_dwordx4 v[136:139], v8, s[44:47], s9 offen
    buffer_store_dwordx4 v[140:143], v8, s[44:47], s9 offen offset:16
    buffer_store_dwordx4 v[136:139], v8, s[44:47], s8 offen sc1
    buffer_store_dwordx4 v[140:143], v8, s[44:47], s8 offen offset:16 sc1
    s_setprio 0
    """)
    TS(2)
    g("s_branch L_C")

    g("L_C123:")
    g("s_cmp_lg_u32 s3, 1\ns_cbranch_scc1 L_C23")
    g("v_lshlrev_b32 v4, 2, v2")
    g(f"ds_write_b32 v4, v{VZ} offset:{L_FL}")
    srd(48, 28, 3584)
    srd(52, 30, 3584)
    srd(56, 32, 3584)
    g("v_lshlrev_b32 v6, 4, v1")
    g("s_waitcnt lgkmcnt(0)")
    if not mwearly: g("s_setprio 3\ns_barrier")
    for a in range(3):
        g(f"s_mov_b32 m0, {L_MW + 4096*a}")
        for i in range(4):
            if not nomw: g(f"buffer_load_dwordx4 v6, s[{48+4*a}:{51+4*a}], 0 offen offset:{1024*i} lds")
    if mwearly: g("s_barrier")
    g("s_setprio 0")
    g("s_waitcnt vmcnt(0)")
    signal(F_MW)
    g("s_branch L_C")
    g("L_C23:")
    g("s_cmp_eq_u32 s3, 2\ns_cbranch_scc1 L_C2")
    g("s_barrier")
    g("s_waitcnt vmcnt(0)")
    g("s_branch L_C")
    g("L_C2:")
    g("""
    s_lshl_b32 s11, s4, 5
    s_add_u32 s11, s11, s5
    v_mov_b32 v8, -1
    v_mov_b32 v9, -1
    v_mov_b32 v10, -1
    v_mov_b32 v11, -1
    v_lshlrev_b32 v4, 4, v1
    """)
    g(f"s_lshl_b32 s11, s4, 15\ns_lshr_b32 s13, s7, 2\ns_lshl_b32 s13, s13, 10\ns_add_u32 s11, s11, s13\ns_lshl_b32 s13, s6, 8\ns_add_u32 s11, s11, s13\ns_and_b32 s13, s7, 3\ns_lshl_b32 s13, s13, 6\ns_add_u32 s11, s11, s13\ns_add_u32 s11, s11, {WS_O:#x}")
    g(f"s_lshl_b32 s62, s4, 9\ns_lshl_b32 s13, s6, 5\ns_add_u32 s62, s62, s13\ns_and_b32 s13, s7, 3\ns_lshl_b32 s13, s13, 3\ns_add_u32 s62, s62, s13\ns_lshr_b32 s13, s7, 2\ns_lshl_b32 s13, s13, 2\ns_add_u32 s62, s62, s13\ns_add_u32 s62, s62, {WS_LSE:#x}")
    g("s_mov_b32 s12, s11")
    g("v_lshrrev_b32 v12, 2, v1\nv_lshlrev_b32 v12, 11, v12\nv_and_b32 v13, 3, v1\nv_lshl_add_u32 v12, v13, 4, v12\nv_lshlrev_b32 v13, 7, v1")
    g("buffer_store_dwordx4 v[8:11], v12, s[44:47], s12 offen sc1")
    g("""
    v_lshlrev_b32 v5, 15, v3
    v_lshl_add_u32 v5, v2, 3, v5
    s_lshr_b32 s13, s5, 4
    s_lshl_b32 s14, s4, 1
    s_add_u32 s13, s13, s14
    s_lshl_b32 s13, s13, 11
    s_and_b32 s14, s5, 15
    s_lshl_b32 s14, s14, 7
    s_add_u32 s13, s13, s14
    """)
    g(f"s_add_u32 s13, s13, {WS_H2:#x}")
    g("buffer_store_dwordx2 v[8:9], v5, s[44:47], s13 offen sc1")
    g("s_mov_b64 exec, 15")
    g("buffer_store_dword v8, v13, s[44:47], s62 offen sc1")
    g(f"s_mul_i32 s14, s2, 48\ns_add_u32 s14, s14, {WS_TAB:#x}")
    g("s_mov_b64 exec, 7")
    g("buffer_store_dwordx4 v[8:11], v4, s[44:47], s14 offen sc1")
    g("s_mov_b64 exec, -1")
    g("s_barrier")
    g("s_waitcnt vmcnt(0) lgkmcnt(0)")
    tags()
    signal(F_CL)
    if pretouch:
        g("s_setprio 3")
        g("buffer_load_dwordx4 v[152:155], v12, s[44:47], s12 offen sc1")
    g("v_mov_b32 v8, s92\nv_mov_b32 v9, s93")
    g(f"s_lshl_b32 s9, s2, 3\ns_add_u32 s9, s9, {WS_T:#x}")
    g("s_mov_b64 exec, 1")
    g(f"buffer_store_dwordx2 v[8:9], v{VZ}, s[44:47], s9 offen sc1")
    g("s_mov_b64 exec, -1")
    g("s_setprio 0")
    signal(F_MW)

    MWB, EH, EA, ES = 16, 100, 102, 108
    g("L_C:")
    spin(F_MW, 2)
    TS(3)
    if dbg: g("s_memtime s[82:83]")
    g(f"v_lshlrev_b32 v4, 2, v1")
    for a in range(3):
        for k in range(14):
            g(f"ds_read_b32 v{MWB+28*a+2*k+1}, v4 offset:{L_MW + 4096*a + 256*k}")
    g(f"s_mov_b32 s8, {f2u(ALPHA):#x}\ns_mov_b32 s9, {f2u(ALPHA):#x}\ns_mov_b32 s10, {f2u(1.0/ALPHA):#x}\ns_mov_b32 s11, {f2u(1.0/ALPHA):#x}")
    g("s_waitcnt lgkmcnt(0)")
    for a in range(3):
        for k in range(14):
            r = MWB + 28 * a + 2 * k
            g(f"v_lshlrev_b32 v{r}, 16, v{r+1}")
            g(f"v_and_b32 v{r+1}, s42, v{r+1}")
    for a in range(3):
        for k in range(14):
            r = MWB + 28 * a + 2 * k
            g(f"v_pk_mul_f32 v[{r}:{r+1}], v[{r}:{r+1}], s[{8 if a < 2 else 10}:{9 if a < 2 else 11}]")
    g(f"s_mov_b32 s62, {f2u(BETA):#x}\ns_mov_b32 s63, {f2u(BETA):#x}")
    g("s_mul_i32 s95, s2, 24\ns_mul_i32 s96, s3, 6\ns_add_u32 s95, s95, s96\ns_add_u32 s96, s95, 6")
    g(f"v_lshlrev_b32 v{VB2}, 16, v{VB2}")
    g("L_tab1:")
    g(f"s_cmp_ge_u32 s95, {NBIN*128}\ns_cselect_b32 s97, {0x8000 - NBIN*128}, 0")
    g(f"s_add_u32 s97, s97, s95\ns_add_u32 s97, s97, {EXP0 << 7}\ns_lshl_b32 s97, s97, 16\nv_mov_b32 v{EH}, s97")
    if not notab: g("s_call_b64 s[100:101], L_eval")
    g(f"v_alignbit_b32 v136, v137, v136, 16\nv_alignbit_b32 v137, v138, v137, 16\nv_alignbit_b32 v138, v{EA}, v138, 16")
    g("s_add_u32 s95, s95, 1\ns_cmp_lt_u32 s95, s96\ns_cbranch_scc1 L_tab1")
    g(f"s_lshl_b32 s97, s96, 1\ns_add_u32 s97, s97, {WS_TAB - 12:#x}")
    g("s_mov_b32 exec_lo, 0\ns_mov_b32 exec_hi, 0x80000000")
    g("s_setprio 3")
    g(f"buffer_store_dwordx3 v[136:138], v{VZ}, s[44:47], s97 offen sc1")
    g("s_mov_b64 exec, -1")
    TS(4)
    if dbg: g("s_memtime s[84:85]")
    g("s_cmp_ge_u32 s26, 4\ns_cbranch_scc1 L_fin")
    if dry:
        g("s_cmp_lg_u32 s3, 0\ns_cbranch_scc1 L_dry_ret")
        g("s_mov_b64 s[98:99], 0\ns_mov_b64 exec, 0\ns_branch L_fseg")
    g("L_dry_ret:")
    g("s_mov_b64 s[98:99], -1\ns_mov_b64 exec, -1")
    srd(48, 36, 4096)
    g(f"v_lshlrev_b32 v4, 4, v1\ns_mul_i32 s12, s3, 3072\ns_add_u32 m0, s12, {L_TAB}\ns_add_u32 s12, s12, {WS_TAB:#x}")
    g("s_barrier\ns_barrier")
    g(f"s_mov_b32 s71, 0\ns_mul_i32 s13, s3, 3072\nv_add_u32 v5, s13, v4")
    g("L_tfetch:")
    for i in range(3):
        g(f"buffer_load_dwordx4 v4, s[44:47], s12 offen offset:{1024*i} sc1 lds")
    g("s_waitcnt vmcnt(0)")
    for i in range(3):
        g(f"ds_read_b128 v[{108+4*i}:{111+4*i}], v5 offset:{L_TAB + 1024*i}")
    g("s_waitcnt lgkmcnt(0)")
    g("v_max3_u32 v108, v108, v109, v110\nv_max3_u32 v111, v111, v112, v113\nv_max3_u32 v114, v114, v115, v116\nv_max3_u32 v117, v117, v118, v119")
    g("v_max3_u32 v108, v108, v111, v114\nv_max_u32 v108, v108, v117")
    g("v_cmp_eq_u32 vcc, -1, v108")
    g("s_add_u32 s71, s71, 1\ns_cmp_ge_u32 s71, 4\ns_cbranch_scc1 L_tfd")
    g("s_cmp_lg_u64 vcc, 0\ns_cbranch_scc1 L_tfetch")
    g("L_tfd:")
    g("s_barrier\ns_barrier" if aln2 else "s_barrier\ns_barrier\ns_barrier")
    g(f"ds_read_b32 v4, v{VFL} offset:{F_MISS}")
    g("s_waitcnt lgkmcnt(0)")
    g("v_readfirstlane_b32 s96, v4")
    g("s_mov_b32 s95, s3")
    g("s_lshl_b32 s43, s26, 10")
    g("L_fb:")
    g("s_cmp_ge_u32 s95, s96\ns_cbranch_scc1 L_fin")
    g("s_lshl_b32 s8, s95, 3\nv_mov_b32 v4, s8")
    g(f"ds_read_b64 v[6:7], v4 offset:{L_MISS}")
    g("s_waitcnt lgkmcnt(0)")
    g(f"v_and_b32 v{EH}, s42, v6\nv_and_b32 v6, 0xffff, v6")
    g("s_call_b64 s[100:101], L_eval")
    g(f"v_and_b32 v8, s42, v{EA}\nv_add_f32 v8, v8, v7\nv_cvt_pk_bf16_f32 v8, v8, v8")
    g("s_mov_b32 exec_lo, 0\ns_mov_b32 exec_hi, 0x80000000")
    g("buffer_store_short v8, v6, s[48:51], s43 offen")
    g("s_mov_b64 exec, -1")
    g("s_add_u32 s95, s95, 4\ns_branch L_fb")

    g("L_eval:")
    NB = 7
    for b0 in range(0, 14, NB):
        ks = list(range(b0, b0 + NB))
        S_ = lambda i: ES + 4 * i
        Z = lambda i: ES + 2 + 4 * i
        for i, k in enumerate(ks):
            w_ = MWB + 2 * k
            bb = MWB + 28 + 2 * k
            g(f"v_pk_fma_f32 v[{S_(i)}:{S_(i)+1}], v[{w_}:{w_+1}], v[{EH}:{EH+1}], v[{bb}:{bb+1}] op_sel:[0,0,0] op_sel_hi:[1,0,1]")
        for i, k in enumerate(ks):
            g(f"v_pk_fma_f32 v[{Z(i)}:{Z(i)+1}], v[{S_(i)}:{S_(i)+1}], v[{S_(i)}:{S_(i)+1}], s[62:63]")
        for i, k in enumerate(ks):
            g(f"v_pk_mul_f32 v[{Z(i)}:{Z(i)+1}], v[{Z(i)}:{Z(i)+1}], v[{S_(i)}:{S_(i)+1}]")
        for i, k in enumerate(ks):
            g(f"v_exp_f32 v{Z(i)}, v{Z(i)}\nv_exp_f32 v{Z(i)+1}, v{Z(i)+1}")
            vv = MWB + 56 + 2 * k
            g(f"v_pk_mul_f32 v[{S_(i)}:{S_(i)+1}], v[{S_(i)}:{S_(i)+1}], v[{vv}:{vv+1}]")
        for i, k in enumerate(ks):
            g(f"v_pk_add_f32 v[{Z(i)}:{Z(i)+1}], v[{Z(i)}:{Z(i)+1}], 1.0 op_sel_hi:[1,0]")
        for i, k in enumerate(ks):
            g(f"v_rcp_f32 v{Z(i)}, v{Z(i)}\nv_rcp_f32 v{Z(i)+1}, v{Z(i)+1}")
        for i, k in enumerate(ks):
            acc = EA + 2 * (i & 1)
            if b0 == 0 and i < 2:
                g(f"v_pk_mul_f32 v[{acc}:{acc+1}], v[{S_(i)}:{S_(i)+1}], v[{Z(i)}:{Z(i)+1}]")
            else:
                g(f"v_pk_fma_f32 v[{acc}:{acc+1}], v[{S_(i)}:{S_(i)+1}], v[{Z(i)}:{Z(i)+1}], v[{acc}:{acc+1}]")
    g(f"v_pk_add_f32 v[{EA}:{EA+1}], v[{EA}:{EA+1}], v[{EA+2}:{EA+3}]\nv_add_f32 v{EA}, v{EA}, v{EA+1}")
    for m in DPP6:
        g(f"v_add_f32_dpp v{EA}, v{EA}, v{EA} {m}")
    g(f"""
    v_cvt_pk_bf16_f32 v{EA}, v{EA}, v{EA}
    v_and_b32 v{EA}, s42, v{EA}
    v_add_f32 v{EA}, v{EA}, v{VB2}
    v_cvt_pk_bf16_f32 v{EA}, v{EA}, v{EA}
    s_setpc_b64 s[100:101]
    """)

    g("L_V:")
    g("s_setprio 2")
    g("s_barrier")
    g("s_call_b64 s[100:101], L_fsetup")
    srd(48, 20, 0x4000000)
    srd(52, 24, 0x400000)
    VPAY, VW0, VW1, VWT, VGW = P0, P0 + 1, P0 + 2, P0 + 3, P0 + 4
    g("""
    v_lshlrev_b32 v5, 4, v2
    v_lshl_add_u32 v5, v3, 10, v5
    v_lshlrev_b32 v14, 4, v1
    s_lshl_b32 s11, s15, 11
    v_add_u32 v14, s11, v14
    """)
    g(f"v_mul_u32_u24 v15, {OPH}, v2")
    g("v_lshl_add_u32 v15, v3, 4, v15")
    g(f"s_mul_i32 s11, s15, {OPW}\nv_add_u32 v15, s11, v15")
    g("""
    v_and_b32 v7, 1, v3
    v_lshlrev_b32 v8, 6, v7
    v_bfe_u32 v9, v1, 2, 2
    v_lshl_add_u32 v8, v9, 3, v8
    v_lshrrev_b32 v9, 5, v1
    v_add_u32 v8, v8, v9
    v_lshlrev_b32 v8, 10, v8
    v_and_b32 v9, 3, v1
    v_lshlrev_b32 v7, 1, v7
    v_xor_b32 v9, v9, v7
    v_lshl_add_u32 v8, v9, 4, v8
    s_lshl_b32 s8, s4, 19
    s_lshr_b32 s9, s5, 4
    s_lshl_b32 s9, s9, 18
    s_add_u32 s8, s8, s9
    s_and_b32 s9, s5, 15
    s_lshl_b32 s9, s9, 6
    s_add_u32 s8, s8, s9
    s_lshr_b32 s9, s15, 1
    s_lshl_b32 s9, s9, 17
    s_add_u32 s8, s8, s9
    s_and_b32 s9, s15, 1
    s_lshl_b32 s9, s9, 12
    s_add_u32 s8, s8, s9
    s_lshl_b32 s14, s15, 12
    """)
    g(f"s_add_u32 s14, s14, {L_WOT}")
    g("""
    s_lshr_b32 s9, s5, 4
    s_lshl_b32 s9, s9, 1
    s_lshr_b32 s10, s15, 1
    s_add_u32 s9, s9, s10
    """)
    g(f"s_lshl_b32 s10, s4, 15\ns_add_u32 s10, s10, {WS_O:#x}")
    g("s_lshl_b32 s11, s9, 13\ns_add_u32 s10, s10, s11\ns_and_b32 s11, s15, 1\ns_lshl_b32 s11, s11, 12\ns_add_u32 s60, s10, s11")
    g(f"s_lshl_b32 s10, s4, 9\ns_lshl_b32 s11, s9, 7\ns_add_u32 s58, s10, s11\ns_add_u32 s58, s58, {WS_LSE:#x}")
    g(f"""
    v_lshrrev_b32 v6, 2, v2
    v_and_b32 v7, 3, v2
    v_lshlrev_b32 v{VWT}, 3, v2
    v_lshlrev_b32 v{VPAY}, 6, v2
    v_lshl_add_u32 v{VPAY}, v3, 4, v{VPAY}
    v_lshrrev_b32 v7, 2, v2
    v_lshl_add_u32 v7, v3, 2, v7
    v_lshlrev_b32 v7, 6, v7
    v_and_b32 v9, 3, v2
    v_lshl_add_u32 v7, v9, 3, v7
    v_and_b32 v9, 1, v3
    v_lshl_add_u32 v{VW0}, v9, 5, v7
    v_xor_b32 v9, 1, v9
    v_lshl_add_u32 v{VW1}, v9, 5, v7
    v_add_u32 v{VW0}, s14, v{VW0}
    v_add_u32 v{VW1}, s14, v{VW1}
    v_lshlrev_b32 v{VGW}, 7, v6
    v_lshl_add_u32 v{VGW}, v3, 4, v{VGW}
    s_lshl_b32 s10, s15, 9
    v_add_u32 v{VGW}, s10, v{VGW}
    s_mov_b32 s96, 0x11111111
    s_mov_b32 s97, 0x11111111
    s_mov_b32 s12, 0x05040100
    s_mov_b32 s13, 0x07060302
    s_mov_b32 s56, 0x000f000f
    s_mov_b32 s57, 0x000f000f
    """)
    if kneed:
        spin(F_K, kneed, sl=1)
    else:
        spin(F_K, 1, vaddr=VFW, sl=slp)
    TS(4)
    VR, AO, AT, PA = 16, 80, 112, 6
    n = 0
    for T in range(4):
        for i in range(4):
            r = VR + 16 * T + 4 * i
            if n >= limv:
                g(f"s_waitcnt vmcnt({limv-1})")
            g(f"buffer_load_dwordx4 v[{r}:{r+3}], v5, s[48:51], s{64+T} offen offset:{256*i} {kvflags}")
            n += 1
    if wolast:
        signal(F_VI)
        spin(F_VI, 4)
    for i in range(4):
        dI = 32 * (i & 1) + 2 * (i >> 1)
        g(f"s_add_u32 s9, s8, {dI*1024:#x}")
        g(f"s_add_u32 m0, s14, {1024*i}")
        g(f"buffer_load_dwordx4 v8, s[52:55], s9 offen {wflags} lds")
    TS(5)
    spin(F_P, 1, vaddr=VFW)
    g(f"ds_read_b128 v[{PA}:{PA+3}], v14 offset:{L_PL}")
    g(f"ds_read_b128 v[{PA+4}:{PA+7}], v14 offset:{L_PL+1024}")
    g("s_waitcnt lgkmcnt(0)")
    tb = lambda j: AT + 4 * j
    for u_ in range(2):
        for q in range(4):
            T = 2 * u_ + (q >> 1)
            i0 = 2 * (q & 1)
            done = 4 * T + i0 + 2
            g(f"s_waitcnt vmcnt({20-done})")
            a = VR + 16 * T + 4 * i0
            b_ = a + 4
            for dw in range(4):
                g(f"v_perm_b32 v{tb(2*dw)+q}, v{b_+dw}, v{a+dw}, s12")
                g(f"v_perm_b32 v{tb(2*dw+1)+q}, v{b_+dw}, v{a+dw}, s13")
        for j in range(8):
            c = "0" if u_ == 0 else f"v[{AO+4*j}:{AO+4*j+3}]"
            g(f"v_mfma_f32_16x16x32_bf16 v[{AO+4*j}:{AO+4*j+3}], v[{tb(j)}:{tb(j)+3}], v[{PA+4*u_}:{PA+4*u_+3}], {c}")
    g("s_mov_b64 exec, s[56:57]")
    for j in range(8):
        g(f"ds_write_b128 v15, v[{AO+4*j}:{AO+4*j+3}] offset:{L_OP + 64*j}")
    g("s_mov_b64 exec, -1")
    TS(6)
    g("s_waitcnt lgkmcnt(0)")
    g("s_barrier")
    PAY, WF, DD = 16, 32, 48

    def h1loads(hf):
        for kb in range(2):
            r = PAY + 8 * hf + 4 * kb
            g(f"buffer_load_dwordx4 v[{r}:{r+3}], v{VPAY}, s[44:47], s60 offen offset:{2048*kb + 1024*hf} sc1")
        g(f"buffer_load_dword v{64+hf}, v{VWT}, s[44:47], s58 offen offset:{4*hf} sc1")
    TS(2)
    h1loads(0)
    h1loads(1)
    g("s_waitcnt vmcnt(6)")
    TS(3)
    for kb in range(2):
        for mt in range(2):
            r = WF + 8 * kb + 4 * mt
            g(f"ds_read_b64_tr_b16 v[{r}:{r+1}], v{VW0+mt} offset:{2048*kb}")
            g(f"ds_read_b64_tr_b16 v[{r+2}:{r+3}], v{VW0+mt} offset:{2048*kb+1024}")
    if dbg:
        g("s_waitcnt vmcnt(0)")
        TS(4)
    g("s_mov_b32 s71, 0")
    g("L_h1chk:")
    g("""
    s_waitcnt vmcnt(0)
    v_max3_u32 v8, v16, v17, v18
    v_max3_u32 v9, v24, v25, v26
    v_max3_u32 v8, v8, v19, v20
    v_max3_u32 v9, v9, v27, v28
    v_max3_u32 v8, v8, v21, v22
    v_max3_u32 v9, v9, v29, v30
    v_max3_u32 v8, v8, v23, v64
    v_max3_u32 v9, v9, v31, v65
    v_cmp_eq_u32_e64 s[52:53], -1, v8
    v_cmp_eq_u32_e64 s[54:55], -1, v9
    s_or_b64 s[56:57], s[52:53], s[54:55]
    s_cbranch_scc0 L_h1done
    """)
    g(f"s_add_u32 s71, s71, 1\ns_cmp_ge_u32 s71, {maxpoll}\ns_cbranch_scc1 L_h1done")
    for hf in range(2):
        g(f"s_mov_b64 exec, s[{52+2*hf}:{53+2*hf}]")
        g(f"s_cbranch_execz L_h1s{hf}")
        h1loads(hf)
        g(f"L_h1s{hf}:")
    g("s_mov_b64 exec, -1\ns_branch L_h1chk")
    g("L_h1done:")
    g("s_waitcnt lgkmcnt(0)")
    TS(7)
    if dbg:
        g("s_mov_b32 s74, s71\ns_mov_b32 s75, 0")
    wts = ["v_max_f32 v8, v64, v65",
           "v_max_f32_dpp v8, v8, v8 quad_perm:[1,0,3,2] row_mask:0xf bank_mask:0xf",
           "v_max_f32_dpp v8, v8, v8 quad_perm:[2,3,0,1] row_mask:0xf bank_mask:0xf",
           "v_sub_f32 v64, v64, v8\nv_sub_f32 v65, v65, v8",
           "v_exp_f32 v64, v64\nv_exp_f32 v65, v65",
           "v_add_f32 v8, v64, v65",
           "v_add_f32_dpp v8, v8, v8 quad_perm:[1,0,3,2] row_mask:0xf bank_mask:0xf",
           "v_add_f32_dpp v8, v8, v8 quad_perm:[2,3,0,1] row_mask:0xf bank_mask:0xf"]
    wi = 0
    for kb in range(2):
        for mt in range(2):
            for hf in range(2):
                d = DD + 8 * mt + 4 * hf
                b_ = PAY + 8 * hf + 4 * kb
                a_ = WF + 8 * kb + 4 * mt
                c = "0" if kb == 0 else f"v[{d}:{d+3}]"
                g(f"v_mfma_f32_16x16x32_bf16 v[{d}:{d+3}], v[{a_}:{a_+3}], v[{b_}:{b_+3}], {c}")
                g(wts[wi]); wi += 1
    g("v_rcp_f32 v8, v8")
    g("v_pk_mul_f32 v[64:65], v[64:65], v[8:9] op_sel:[0,0] op_sel_hi:[1,0]")
    for mt in range(2):
        for h_ in range(2):
            d = DD + 8 * mt + 2 * h_
            g(f"v_pk_mul_f32 v[{d}:{d+1}], v[{d}:{d+1}], v[64:65] op_sel:[0,0] op_sel_hi:[1,0]")
    for mt in range(2):
        for h_ in range(2):
            d = DD + 8 * mt + 2 * h_
            g(f"v_pk_fma_f32 v[{d}:{d+1}], v[{d+4}:{d+5}], v[64:65], v[{d}:{d+1}] op_sel:[0,1,0] op_sel_hi:[1,1,1]")
    for m in ("quad_perm:[1,0,3,2]", "quad_perm:[2,3,0,1]"):
        for mt in range(2):
            for i in range(4):
                d = DD + 8 * mt + i
                g(f"v_add_f32_dpp v{d}, v{d}, v{d} {m} row_mask:0xf bank_mask:0xf")
    g("s_mov_b64 exec, s[96:97]")
    g(f"ds_write_b128 v{VGW}, v[{DD}:{DD+3}] offset:{L_GP}")
    g(f"ds_write_b128 v{VGW}, v[{DD+8}:{DD+11}] offset:{L_GP+64}")
    g("s_mov_b64 exec, -1")
    g("s_waitcnt lgkmcnt(0)")

    g("L_B5:")
    g("s_barrier")
    TS(8, 'V')
    TS(7, 'K')
    g("s_cmp_lg_u32 s3, 4\ns_cbranch_scc1 L_H2")
    for w in range(4):
        g(f"ds_read_b64 v[{16+2*w}:{17+2*w}], v{VGP} offset:{L_GP + 512*w}")
    g("s_waitcnt lgkmcnt(0)")
    g("v_pk_add_f32 v[16:17], v[16:17], v[18:19]\nv_pk_add_f32 v[20:21], v[20:21], v[22:23]\nv_pk_add_f32 v[32:33], v[16:17], v[20:21]")
    g("v_min_u32 v32, -2, v32\nv_min_u32 v33, -2, v33")
    if fg is not None and local:
        g(f"s_cmp_lg_u32 s4, {fg}\ns_cbranch_scc1 L_h2g\ns_cmp_lg_u32 s1, 0\ns_cbranch_scc1 L_h2g")
        g(f"buffer_store_dwordx2 v[32:33], v{VH2S}, s[44:47], s69 offen")
        g("s_branch L_H2")
        g("L_h2g:")
    g(f"buffer_store_dwordx2 v[32:33], v{VH2S}, s[44:47], s69 offen sc1")
    g("L_H2:")
    g("s_cmp_ge_u32 s26, 4\ns_cbranch_scc1 L_fin")
    g("L_fseg:")
    g("s_lshl_b32 s8, s26, 15\ns_lshl_b32 s9, s63, 8\ns_add_u32 s8, s8, s9")
    g(f"s_add_u32 s64, s8, {WS_H2:#x}\ns_add_u32 s65, s64, 0x2000\ns_add_u32 s66, s64, 0x4000\ns_add_u32 s67, s64, 0x6000")
    g("s_cbranch_execz L_fs_a")
    for i in range(4):
        g(f"buffer_load_dwordx4 v[{16+4*i}:{19+4*i}], v{VH2}, s[44:47], s{64+i} offen sc1")
    g("L_fs_a:")
    g(f"s_mov_b32 s8, {f2u(1.0/512):#x}\ns_mov_b32 s9, {f2u(1.0/512):#x}\ns_mov_b32 s10, {f2u(1e-5):#x}")
    g("s_mov_b32 s60, 0x80000000\ns_mov_b32 s61, 0x80000000")
    srd(48, 36, 4096)
    g("s_mov_b32 s71, 0")
    g("L_h2chk:")
    g("s_waitcnt vmcnt(0)")
    for i in range(4):
        g(f"v_max3_u32 v{8+i}, v{16+4*i}, v{17+4*i}, v{18+4*i}")
    for i in range(4):
        g(f"v_max_u32 v{8+i}, v{8+i}, v{19+4*i}")
    g("v_max3_u32 v12, v8, v9, v10\nv_max_u32 v12, v12, v11")
    g("v_cmp_eq_u32 vcc, -1, v12")
    g("s_cmp_eq_u64 vcc, 0\ns_cbranch_scc1 L_h2done")
    g(f"s_add_u32 s71, s71, 1\ns_cmp_ge_u32 s71, {maxpoll}\ns_cbranch_scc1 L_h2done")
    for i in range(4):
        g(f"v_cmp_eq_u32_e64 s[{52+2*i}:{53+2*i}], -1, v{8+i}")
    for i in range(4):
        g(f"s_mov_b64 exec, s[{52+2*i}:{53+2*i}]")
        g(f"s_cbranch_execz L_h2s{i}")
        g(f"buffer_load_dwordx4 v[{16+4*i}:{19+4*i}], v{VH2}, s[44:47], s{64+i} offen sc1")
        g(f"L_h2s{i}:")
    g("s_mov_b64 exec, -1\ns_branch L_h2chk")
    g("L_h2done:")
    TS(9, 'V')
    TS(8, 'K')
    g(f"""
    v_lshlrev_b32 v{VX}, 16, v{VX}
    v_pk_add_f32 v[16:17], v[16:17], v[20:21]
    v_pk_add_f32 v[18:19], v[18:19], v[22:23]
    v_pk_add_f32 v[24:25], v[24:25], v[28:29]
    v_pk_add_f32 v[26:27], v[26:27], v[30:31]
    v_pk_add_f32 v[16:17], v[16:17], v[24:25]
    v_pk_add_f32 v[18:19], v[18:19], v[26:27]
    v_permlane32_swap_b32 v16, v17
    v_permlane32_swap_b32 v18, v19
    v_add_f32 v16, v16, v17
    v_add_f32 v18, v18, v19
    v_permlane16_swap_b32 v16, v18
    v_add_f32 v16, v16, v18
    v_cvt_pk_bf16_f32 v16, v16, v16
    v_and_b32 v16, s42, v16
    v_add_f32 v16, v16, v{VX}
    v_cvt_pk_bf16_f32 v16, v16, v16
    v_and_b32 v13, s42, v16
    """)

    def wave_stats(x, st_off, vmwait=False):
        g(f"v_mul_f32 v19, v{x}, v{x}\nv_mov_b32 v18, v{x}")
        g("v_permlane32_swap_b32 v18, v19\nv_add_f32 v18, v18, v19")
        for m in DPP6[:5]:
            g(f"v_add_f32_dpp v18, v18, v18 {m}")
        g("s_and_b64 exec, s[60:61], s[98:99]")
        g(f"ds_write_b32 v{VST}, v18 offset:{st_off}")
        g("s_mov_b64 exec, s[98:99]")
        g("s_waitcnt lgkmcnt(0)")
        g(f"s_cbranch_execz L_fs_b{st_off}")
        g("s_barrier")
        g(f"L_fs_b{st_off}:")
        for i in range(4):
            g(f"ds_read_b128 v[{20+4*i}:{23+4*i}], v{VZ} offset:{st_off + 16*i}")
        g("s_waitcnt lgkmcnt(0)")
        g("""
        v_pk_add_f32 v[20:21], v[20:21], v[22:23]
        v_pk_add_f32 v[24:25], v[24:25], v[26:27]
        v_pk_add_f32 v[28:29], v[28:29], v[30:31]
        v_pk_add_f32 v[32:33], v[32:33], v[34:35]
        v_pk_add_f32 v[20:21], v[20:21], v[24:25]
        v_pk_add_f32 v[28:29], v[28:29], v[32:33]
        v_pk_add_f32 v[20:21], v[20:21], v[28:29]
        """)
        ln_scalar(20, 21, 22, save=(24 if aln2 else None))

    wave_stats(13, L_ST2)
    g("v_sub_f32 v16, v13, v20")
    g("v_cvt_pk_bf16_f32 v16, v16, v16\nv_and_b32 v16, s42, v16")
    g("v_mul_f32 v16, v16, v21")
    g("v_cvt_pk_bf16_f32 v16, v16, v16\nv_and_b32 v16, s42, v16")
    if aln2:
        g("v_sub_f32 v24, v24, v20\nv_mul_f32 v25, v25, v21")
        g("v_mul_f32 v20, v24, v21\nv_mul_f32 v21, v25, v21")
        ln_scalar(20, 21, 22, pre=False)
    else:
        wave_stats(16, L_ST3)
    TS(9, 'K')
    g("v_sub_f32 v16, v16, v20")
    g("v_cvt_pk_bf16_f32 v16, v16, v16\nv_and_b32 v16, s42, v16")
    g("v_mul_f32 v16, v16, v21")
    g("v_cvt_pk_bf16_f32 v16, v16, v16")
    g(f"v_and_b32 v17, 0x7fff, v16\nv_subrev_u32 v17, {EXP0 << 7}, v17")
    g("v_bfe_u32 v18, v16, 15, 1")
    g(f"s_movk_i32 s11, {NBIN*128}")
    g("v_cmp_gt_u32 vcc, s11, v17")
    g("v_mad_u32_u24 v18, v18, s11, v17")
    g("v_lshlrev_b32 v18, 1, v18")
    g("v_cndmask_b32 v18, 0, v18, vcc")
    g(f"ds_read_u16 v19, v18 offset:{L_TAB}")
    g("s_mov_b32 s12, 0xffff")
    g("s_waitcnt lgkmcnt(0)")
    g("v_cmp_ne_u32_e64 s[52:53], s12, v19")
    g("v_lshlrev_b32 v19, 16, v19\nv_add_f32 v19, v19, v13\nv_cvt_pk_bf16_f32 v19, v19, v19")
    g("s_and_b64 s[52:53], s[52:53], vcc")
    if force_fb:
        g("s_and_b32 s52, s52, 0xfffffff0")
    g("s_mov_b64 exec, s[52:53]")
    g("s_cbranch_execz L_nost")
    g(f"buffer_store_short v19, v{VCOL}, s[48:51], s43 offen")
    g("L_nost:")
    g("s_andn2_b64 exec, s[98:99], s[52:53]")
    g("s_cbranch_execz L_nomiss")
    g(f"ds_add_rtn_u32 v17, v{VFL}, v{VONE} offset:{F_MISS}")
    g(f"v_and_b32 v12, s42, v16\nv_or_b32 v12, v12, v{VCOL}")
    g("s_waitcnt lgkmcnt(0)")
    g("v_lshlrev_b32 v17, 3, v17")
    g(f"ds_write_b64 v17, v[12:13] offset:{L_MISS}")
    g("s_waitcnt lgkmcnt(0)")
    g("L_nomiss:")
    g("s_mov_b64 exec, s[98:99]")
    g("s_cbranch_execz L_dry_ret")
    g("s_barrier")
    g("s_cmp_lg_u32 s26, 0\ns_cbranch_scc1 L_fin\ns_cmp_lg_u32 s3, 4\ns_cbranch_scc1 L_fin")
    g("s_add_u32 s94, s94, 1\nv_mov_b32 v4, s94")
    g("s_mov_b64 exec, 1")
    g(f"buffer_store_dword v4, v{VZ}, s[44:47], 0 offen offset:{WS_E}")
    g("L_fin:")
    if dbg:
        g("s_mov_b64 exec, -1")
        g("s_memrealtime s[92:93]")
        g("s_waitcnt lgkmcnt(0)")
        g(f"s_lshl_b32 s8, s2, 11\ns_lshl_b32 s9, s3, 7\ns_add_u32 s8, s8, s9\ns_add_u32 s8, s8, {WS_DBG:#x}")
        g("s_mov_b64 exec, 1")
        for i in range(0, 22, 2):
            g(f"v_mov_b32 v8, s{72+i}\nv_mov_b32 v9, s{73+i}")
            g(f"buffer_store_dwordx2 v[8:9], v{VZ}, s[44:47], s8 offen offset:{4*i}")
            g("s_nop 1")
    g("L_end:")
    g("s_endpgm")
    g('.section .rodata,"a"')
    g(".p2align 6")
    g(f".amdhsa_kernel {KN}")
    for d in ["next_free_vgpr 168", "next_free_sgpr 102", "accum_offset 168", "group_segment_fixed_size 0", "kernarg_size 104",
              "user_sgpr_count 2", "user_sgpr_kernarg_segment_ptr 1", "system_sgpr_workgroup_id_x 1", "float_denorm_mode_32 3"]:
        g(f".amdhsa_{d}")
    g(".end_amdhsa_kernel")
    open(path, "w").write(g.text())


if __name__ == "__main__":
    kw = eval("dict(%s)" % (sys.argv[2] if len(sys.argv) > 2 else ""))
    gen(sys.argv[1], **kw)
```

```python
import sys, struct, math
from asmlib import Gen

KN = "sequential_preLN__sliding_block_cached__mixer_token_mlp__decode_kernel"

def f2u(x):
    return struct.unpack("<I", struct.pack("<f", x))[0]

WS_E = 0
WS_T = 0x1000
WS_LSE = 0x2000
WS_TAB = 0x4000
WS_H2 = 0x10000
WS_O = 0x40000
OSTR = 1152
WS_QS = 0x90000
QSL = 0x80000
WS_DBG = 0x200000
L_WQT = 0
L_OP = 0
OPW = 2304
OPH = 576
L_GP = 9216
L_MISS = 11264
L_ST2 = 15360
L_ST3 = 15424
L_WOT = 16384
L_TAB = 16384
L_XN = 32768
L_QL = 33792
L_PL = 34816
L_ST = 43008
L_WT = 43200
L_FL = 43456
L_MW = 43520
L_KL = 57344
L_TOTAL = 57344 + 65536
F_NL, F_Q, F_MW, F_ST, F_K, F_P, F_MISS, F_CL, F_VI = 0, 4, 8, 12, 16, 32, 48, 52, 56
EXP0 = 108
NBIN = 24
NW = 12

LOG2E = 1.4426950408889634
K0 = -2.0 * math.sqrt(2.0 / math.pi) * LOG2E
K1 = K0 * 0.044715
ALPHA = -((-K1) ** (1.0 / 3.0))
BETA = K0 / ALPHA
HEADER = open("sequential_preLN__sliding_block_cached__mixer_token_mlp__decode.s.ref").read().split("; Override launch")[0]

names_c = ["start", "B0", "q pub", "mw rdy", "tabdone", "-", "-", "-", "-", "-", "end"]
names_k = ["start", "Kissued", "q got", "P rdy", "preB3", "B3", "O pub", "B5", "h2 done", "B6b", "end"]
names_v = ["start", "rounds", "B3", "wo in", "rnd1", "Vissued", "PVdone", "h1 done", "B5", "h2 done", "end"]

DPP6 = ["row_shr:1 row_mask:0xf bank_mask:0xf bound_ctrl:0", "row_shr:2 row_mask:0xf bank_mask:0xf bound_ctrl:0",
        "row_shr:4 row_mask:0xf bank_mask:0xf bound_ctrl:0", "row_shr:8 row_mask:0xf bank_mask:0xf bound_ctrl:0",
        "row_bcast:15 row_mask:0xa bank_mask:0xf", "row_bcast:31 row_mask:0xc bank_mask:0xf"]

VZ, VT, VONE, VFL, VFW = 160, 161, 162, 163, 164
VX, VB2, VH2, VCOL, VH2S, VGP, VST = 144, 145, 146, 147, 148, 149, 150
P0 = 152


def gen(path, dbg=False, kvflags="nt", wflags="nt", maxpoll=1 << 18, lim=4, limv=6, dry=False, padT=0, fg=4, aln2=True, ksig=13, gpos=11, wolast=True, strided=True, rotm=1, kneed=0, kearly=0, nloc=8, pretouch=True, force_fb=False, local=True, mwearly=True, slp=2, notab=False, nomw=False, g1=False):
    g = Gen()
    uid = [0]

    def TS(k, cond=None):
        if dbg:
            if cond:
                uid[0] += 1
                g(f"s_cmp_{'lt' if cond == 'V' else 'ge'}_u32 s3, 8\ns_cbranch_scc1 L_ts{uid[0]}")
            g(f"s_memrealtime s[{72+2*k}:{73+2*k}]")
            if cond:
                g(f"L_ts{uid[0]}:")

    def srd(d, lo, nbytes):
        g(f"s_mov_b32 s{d}, s{lo}\ns_and_b32 s{d+1}, s{lo+1}, 0xffff\ns_mov_b32 s{d+2}, {nbytes:#x}\ns_mov_b32 s{d+3}, 0x20000")

    def signal(off, vaddr=VFL):
        g("s_mov_b64 exec, 1")
        g(f"ds_add_u32 v{vaddr}, v{VONE} offset:{off}")
        g("s_mov_b64 exec, -1")

    def spin(off, target, sl=1, vaddr=VFL):
        uid[0] += 1
        u = uid[0]
        g("s_mov_b32 s71, 0")
        g(f"L_sp{u}:")
        g(f"ds_read_b32 v{VT}, v{vaddr} offset:{off}")
        g(f"s_add_u32 s71, s71, 1\ns_cmp_ge_u32 s71, {maxpoll*4}\ns_cbranch_scc1 L_spx{u}")
        g("s_waitcnt lgkmcnt(0)")
        g(f"v_readfirstlane_b32 s70, v{VT}")
        g(f"s_cmp_ge_u32 s70, {target}\ns_cbranch_scc1 L_spx{u}")
        g(f"s_sleep {sl}")
        g(f"s_branch L_sp{u}")
        g(f"L_spx{u}:")

    def tags():
        g("s_mul_i32 s92, s94, 0x85ebca6b\ns_add_u32 s92, s92, 0x7f4a7c15\ns_mul_i32 s93, s94, 0x9e3779b1\ns_add_u32 s93, s93, 0x1b873593")

    def ln_scalar(m, v, t, pre=True, save=None):
        if pre:
            g(f"v_pk_mul_f32 v[{m}:{v}], v[{m}:{v}], s[8:9]")
            g(f"v_fma_f32 v{v}, -v{m}, v{m}, v{v}")
            g(f"v_max_f32 v{v}, 0, v{v}")
        if save is not None:
            g(f"v_mov_b32 v{save}, v{m}\nv_mov_b32 v{save+1}, v{v}")
        g(f"v_cvt_pk_bf16_f32 v{t}, v{m}, v{v}")
        g(f"v_and_b32 v{v}, s42, v{t}")
        g(f"v_lshlrev_b32 v{m}, 16, v{t}")
        g(f"v_add_f32 v{v}, s10, v{v}")
        g(f"v_cvt_pk_bf16_f32 v{t}, v{v}, v{v}")
        g(f"v_and_b32 v{v}, s42, v{t}")
        g(f"v_sqrt_f32 v{v}, v{v}")
        g(f"v_cvt_pk_bf16_f32 v{t}, v{v}, v{v}")
        g(f"v_and_b32 v{v}, s42, v{t}")
        g(f"v_rcp_f32 v{v}, v{v}")

    g(HEADER.rstrip())
    g(f"; @launch grid=(256,1,1) block=({NW*64},1,1) lds={L_TOTAL}")
    g('.amdgcn_target "amdgcn-amd-amdhsa--gfx950"')
    g(".text")
    g(f".globl {KN}")
    g(".p2align 8")
    g(f".type {KN},@function")
    g(f"{KN}:")
    TS(0)
    if padT: g("s_memrealtime s[72:73]")
    g("""
    s_cmp_ge_u32 s2, 256
    s_cbranch_scc1 L_end
    s_load_dwordx16 s[16:31], s[0:1], 0
    s_load_dwordx8 s[32:39], s[0:1], 64
    s_load_dwordx2 s[40:41], s[0:1], 96
    v_lshrrev_b32 v4, 6, v0
    v_and_b32 v1, 63, v0
    v_readfirstlane_b32 s3, v4
    v_and_b32 v2, 15, v1
    v_lshrrev_b32 v3, 4, v1
    s_and_b32 s4, s2, 7
    s_lshr_b32 s5, s2, 3
    s_lshr_b32 s6, s5, 3
    s_and_b32 s7, s5, 7
    s_mov_b32 s42, 0xffff0000
    s_mov_b64 s[98:99], -1
    """)
    g(f"v_mov_b32 v{VFL}, {L_FL}\nv_mov_b32 v{VONE}, 1\nv_mov_b32 v{VZ}, 0")
    g(f"""
    s_and_b32 s15, s3, 3
    s_lshl_b32 s8, s6, 3
    s_add_u32 s8, s8, s4
    s_lshl_b32 s8, s8, 21
    s_lshl_b32 s9, s7, {12 if strided else 16}
    s_add_u32 s8, s8, s9
    s_add_u32 s8, s8, 0x180000
    s_add_u32 s9, s2, s5
    s_mul_i32 s9, s9, {rotm}
    s_add_u32 s9, s9, s15
    s_lshl_b32 s11, s15, 2
    v_add_u32 v{VFW}, s11, v{VFL}
    """)
    for i in range(4):
        g(f"s_add_u32 s{64+i}, s9, {4*i}\ns_and_b32 s{64+i}, s{64+i}, 15\ns_lshl_b32 s{64+i}, s{64+i}, {15 if strided else 12}\ns_add_u32 s{64+i}, s{64+i}, s8")
    g("s_waitcnt lgkmcnt(0)")
    srd(44, 40, 0x10000000)
    g(f"s_load_dword s94, s[40:41], {WS_E}")
    g("s_getreg_b32 s0, hwreg(HW_REG_XCC_ID)\ns_and_b32 s0, s0, 7")
    if fg is None:
        g("s_mov_b32 s26, s2")
    else:
        g(f"s_cmp_eq_u32 s4, {fg}\ns_cselect_b32 s26, s5, 64")
    g("""
    s_cmp_ge_u32 s3, 8
    s_cbranch_scc1 L_V
    s_cmp_ge_u32 s3, 4
    s_cbranch_scc1 L_K
    """)
    srd(60, 34, 2)
    g(f"buffer_load_ushort v{VB2}, v{VZ}, s[60:63], 0 offen")
    g("s_cmp_lg_u32 s3, 0\ns_cbranch_scc1 L_C123")
    srd(48, 16, 4096)
    srd(52, 22, 0x400000)
    g("""
    v_and_b32 v4, 3, v1
    v_lshlrev_b32 v5, 10, v4
    v_lshrrev_b32 v6, 2, v1
    v_lshl_add_u32 v6, v6, 6, v5
    """)
    for i in range(4):
        g(f"buffer_load_dwordx4 v[{16+4*i}:{19+4*i}], v6, s[48:51], 0 offen offset:{16*i}")
    g("""
    v_lshrrev_b32 v7, 2, v2
    v_lshl_add_u32 v5, v7, 6, v5
    v_lshl_add_u32 v5, v3, 3, v5
    s_lshl_b32 s8, s6, 8
    buffer_load_dwordx2 v[32:33], v5, s[48:51], s8 offen
    buffer_load_dwordx2 v[34:35], v5, s[48:51], s8 offen offset:32
    v_lshrrev_b32 v6, 3, v1
    v_lshlrev_b32 v6, 13, v6
    v_and_b32 v8, 7, v1
    v_lshlrev_b32 v9, 1, v3
    v_xor_b32 v8, v8, v9
    v_lshl_add_u32 v6, v8, 4, v6
    s_lshl_b32 s8, s6, 20
    s_lshl_b32 s9, s4, 10
    s_add_u32 s8, s8, s9
    s_lshl_b32 s9, s7, 7
    s_add_u32 s8, s8, s9
    """)
    for i in range(16):
        g(f"s_mov_b32 m0, {L_WQT + 1024*i}")
        g(f"s_add_u32 s9, s8, {0x10000*i:#x}")
        g(f"buffer_load_dwordx4 v6, s[52:55], s9 offen {wflags} lds")
    g("s_barrier")
    TS(1)
    g("s_branch L_Q2")

    g("L_K:")
    srd(48, 18, 0x4000000)
    g("v_xor_b32 v4, v2, v3\nv_lshlrev_b32 v7, 8, v3\nv_lshlrev_b32 v9, 8, v2")
    g(f"s_lshl_b32 s63, s15, 14\ns_add_u32 s63, s63, {L_KL}\nv_add_u32 v9, s63, v9")
    for u in range(4):
        g(f"v_xor_b32 v8, {4*u}, v4\nv_lshl_add_u32 v{132+u}, v8, 4, v7\nv_lshl_add_u32 v{136+u}, v8, 4, v9")
    g("""
    s_lshl_b32 s8, s4, 16
    s_lshl_b32 s9, s6, 14
    s_add_u32 s8, s8, s9
    s_lshl_b32 s9, s15, 10
    s_add_u32 s8, s8, s9
    """)
    g(f"s_add_u32 s12, s8, {WS_QS:#x}\ns_add_u32 s13, s12, 0x1000\ns_add_u32 s14, s12, 0x2000\ns_add_u32 s43, s12, 0x3000")
    g(f"s_lshl_b32 s68, s15, 9\ns_add_u32 s68, s68, {WS_T:#x}")
    g(f"v_lshlrev_b32 v5, 4, v1\nv_add_u32 v5, {QSL:#x}, v5\nv_lshlrev_b32 v6, 3, v1")
    g("s_setprio 2")
    if kearly == 0: g("s_barrier")
    KR, QF, SA, PR, TM = 16, 80, 96, 112, 120
    qso = ["s12", "s13", "s14", "s43"] if not g1 else ["s12", "s12", "s12", "s12"]

    def kload(n):
        T, t = n >> 2, n & 3
        if t == 0:
            g(f"s_add_u32 m0, s63, {4096*T}")
        g(f"buffer_load_dwordx4 v{132+t}, s[48:51], s{64+T} offen offset:{1024*t} {kvflags} lds")
    for n in range(0, 16):
        if n == gpos:
            for ks in range(4):
                g(f"buffer_load_dwordx4 v[{QF+4*ks}:{QF+4*ks+3}], v5, s[44:47], {qso[ks]} offen sc1")
        if n >= lim:
            extra = 4 if (n >= gpos and n - lim < gpos) else 0
            g(f"s_waitcnt vmcnt({lim-1+extra})")
        kload(n)
        if kearly and n == kearly - 1: g("s_barrier")
        if n == ksig:
            signal(F_K, VFW if not kneed else VFL)
    if gpos >= 16:
        for ks in range(4):
            g(f"buffer_load_dwordx4 v[{QF+4*ks}:{QF+4*ks+3}], v5, s[44:47], {qso[ks]} offen sc1")
    TS(1)
    g("s_waitcnt lgkmcnt(0)")
    tags()
    g("s_mov_b32 s71, 0")
    g(f"s_waitcnt vmcnt({max(16-gpos,0)})")
    g("s_branch L_qchk")
    g("L_qpoll:")
    g(f"s_cmp_lg_u32 s71, {nloc}\ns_cbranch_scc1 L_qnl")
    g("v_lshlrev_b32 v5, 4, v1")
    g("L_qnl:")
    for ks in range(4):
        g(f"s_mov_b64 exec, s[{52+2*ks}:{53+2*ks}]")
        g(f"s_cbranch_execz L_qs{ks}")
        g(f"buffer_load_dwordx4 v[{QF+4*ks}:{QF+4*ks+3}], v5, s[44:47], {qso[ks]} offen sc1")
        g(f"L_qs{ks}:")
    g("s_mov_b64 exec, -1")
    g("s_waitcnt vmcnt(0)")
    g("L_qchk:")
    for ks in range(4):
        r = QF + 4 * ks
        g(f"v_xor_b32 v8, v{r+2}, v{r+1}")
        g(f"v_xor_b32 v9, v{r+3}, v{r}")
        g("v_xor_b32 v8, s92, v8")
        g(f"v_subrev_u32 v{128+ks}, s93, v9")
        g(f"v_lshrrev_b32 v9, 3, v{128+ks}")
        g("v_or_b32 v8, v8, v9")
        g(f"v_cmp_ne_u32_e64 s[{52+2*ks}:{53+2*ks}], 0, v8")
    g(f"s_add_u32 s71, s71, 1\ns_cmp_ge_u32 s71, {maxpoll}\ns_cbranch_scc1 L_qdone")
    g("s_or_b64 s[8:9], s[52:53], s[54:55]\ns_or_b64 s[10:11], s[56:57], s[58:59]\ns_or_b64 s[8:9], s[8:9], s[10:11]")
    g("s_cbranch_scc1 L_qpoll")
    g("L_qdone:")
    g("v_xor_b32 v128, s0, v128\nv_xor_b32 v129, s0, v129\nv_xor_b32 v130, s0, v130\nv_xor_b32 v131, s0, v131")
    g("v_or3_b32 v128, v128, v129, v130\nv_or_b32 v128, v128, v131")
    g("v_cmp_ne_u32 vcc, 0, v128")
    g("s_cmp_eq_u64 vcc, 0\ns_cbranch_scc1 L_alllocal")
    signal(F_NL)
    g("L_alllocal:")
    g(f"v_pk_add_f32 v[{QF}:{QF+1}], v[{QF}:{QF+1}], v[{QF+4}:{QF+5}]")
    g(f"v_pk_add_f32 v[{QF+8}:{QF+9}], v[{QF+8}:{QF+9}], v[{QF+12}:{QF+13}]")
    g(f"v_pk_add_f32 v[{QF}:{QF+1}], v[{QF}:{QF+1}], v[{QF+8}:{QF+9}]")
    g(f"v_cvt_pk_bf16_f32 v8, v{QF}, v{QF+1}")
    g("v_lshlrev_b32 v9, 2, v1\ns_lshl_b32 s8, s15, 8\nv_add_u32 v9, s8, v9")
    g(f"ds_write_b32 v9, v8 offset:{L_QL}")
    signal(F_Q)
    g("""
    v_and_b32 v10, 3, v2
    v_lshlrev_b32 v7, 8, v10
    v_lshl_add_u32 v7, v3, 4, v7
    v_lshlrev_b32 v12, 5, v10
    s_lshl_b32 s11, s15, 3
    v_add_u32 v13, s11, v12
    v_lshlrev_b32 v14, 4, v1
    s_lshl_b32 s11, s15, 11
    v_add_u32 v14, s11, v14
    """)
    spin(F_Q, 4)
    TS(2)
    for t in range(4):
        g(f"ds_read_b128 v[{QF+4*t}:{QF+4*t+3}], v7 offset:{L_QL + 64*t}")
    SC = 128 ** -0.5
    g(f"s_mov_b32 s8, {f2u(SC):#x}\ns_mov_b32 s9, {f2u(SC):#x}\ns_mov_b32 s10, {f2u(LOG2E):#x}")
    g("s_waitcnt lgkmcnt(0)")
    for T in range(4):
        g(f"s_waitcnt vmcnt({12-4*T})")
        for t in range(4):
            r = KR + 16 * T + 4 * t
            g(f"ds_read_b128 v[{r}:{r+3}], v{136+t} offset:{4096*T}")
    g("s_waitcnt lgkmcnt(0)")
    for T in range(4):
        for t in range(4):
            r = KR + 16 * T + 4 * t
            c = "0" if t == 0 else f"v[{SA+4*T}:{SA+4*T+3}]"
            g(f"v_mfma_f32_16x16x32_bf16 v[{SA+4*T}:{SA+4*T+3}], v[{r}:{r+3}], v[{QF+4*t}:{QF+4*t+3}], {c}")
    for rep in range(2):
        for p in range(8):
            a = SA + 2 * p
            g(f"v_cvt_pk_bf16_f32 v{TM+p}, v{a}, v{a+1}")
        for p in range(8):
            a = SA + 2 * p
            g(f"v_lshlrev_b32 v{a}, 16, v{TM+p}")
            g(f"v_and_b32 v{a+1}, s42, v{TM+p}")
        if rep == 0:
            for p in range(8):
                a = SA + 2 * p
                g(f"v_pk_mul_f32 v[{a}:{a+1}], v[{a}:{a+1}], s[8:9]")
    g(f"v_max3_f32 v8, v{SA}, v{SA+1}, v{SA+2}")
    g(f"v_max3_f32 v9, v{SA+3}, v{SA+4}, v{SA+5}")
    g(f"v_max3_f32 v10, v{SA+6}, v{SA+7}, v{SA+8}")
    g(f"v_max3_f32 v11, v{SA+9}, v{SA+10}, v{SA+11}")
    g(f"v_max3_f32 v8, v8, v{SA+12}, v{SA+13}")
    g(f"v_max3_f32 v9, v9, v{SA+14}, v{SA+15}")
    g("v_max3_f32 v8, v8, v9, v10\nv_max_f32 v8, v8, v11")
    g("v_mov_b32 v9, v8\nv_permlane32_swap_b32 v8, v9\nv_max_f32 v8, v8, v9")
    g("v_mov_b32 v9, v8\nv_permlane16_swap_b32 v8, v9\nv_max_f32 v8, v8, v9")
    g("v_mul_f32 v10, s10, v8")
    for e in range(16):
        g(f"v_fma_f32 v{SA+e}, v{SA+e}, s10, -v10")
    for e in range(16):
        g(f"v_exp_f32 v{SA+e}, v{SA+e}")
    for p in range(8):
        g(f"v_cvt_pk_bf16_f32 v{PR+p}, v{SA+2*p}, v{SA+2*p+1}")
    g(f"ds_write_b128 v14, v[{PR}:{PR+3}] offset:{L_PL}")
    g(f"ds_write_b128 v14, v[{PR+4}:{PR+7}] offset:{L_PL+1024}")
    signal(F_P, VFW)
    for p in range(4):
        g(f"v_pk_add_f32 v[{SA+2*p}:{SA+2*p+1}], v[{SA+2*p}:{SA+2*p+1}], v[{SA+8+2*p}:{SA+9+2*p}]")
    for p in range(2):
        g(f"v_pk_add_f32 v[{SA+2*p}:{SA+2*p+1}], v[{SA+2*p}:{SA+2*p+1}], v[{SA+4+2*p}:{SA+5+2*p}]")
    g(f"v_pk_add_f32 v[{SA}:{SA+1}], v[{SA}:{SA+1}], v[{SA+2}:{SA+3}]")
    g(f"v_add_f32 v9, v{SA}, v{SA+1}")
    g("v_mov_b32 v11, v9\nv_permlane32_swap_b32 v9, v11\nv_add_f32 v9, v9, v11")
    g("v_mov_b32 v11, v9\nv_permlane16_swap_b32 v9, v11\nv_add_f32 v9, v9, v11")
    g("s_mov_b64 exec, 15")
    g(f"ds_write_b64 v13, v[8:9] offset:{L_ST}")
    g("s_mov_b64 exec, -1")
    signal(F_ST)
    TS(3)
    spin(F_ST, 4)
    FA = P0
    g("s_lshl_b32 s11, s15, 5\nv_mov_b32 v12, s11")
    g(f"ds_read_b128 v[16:19], v12 offset:{L_ST}")
    g(f"ds_read_b128 v[20:23], v12 offset:{L_ST+16}")
    g(f"ds_read_b32 v27, v{VFL} offset:{F_NL}")
    g("s_waitcnt lgkmcnt(0)")
    g("v_readfirstlane_b32 s1, v27")
    g("v_max3_f32 v24, v16, v18, v20\nv_max_f32 v24, v24, v22")
    for i in range(4):
        g(f"v_sub_f32 v{FA+i}, v{16+2*i}, v24")
        g(f"v_mul_f32 v{FA+i}, s10, v{FA+i}")
        g(f"v_exp_f32 v{FA+i}, v{FA+i}")
    g(f"v_mul_f32 v25, v{FA}, v17")
    for i in range(1, 4):
        g(f"v_fmac_f32 v25, v{FA+i}, v{17+2*i}")
    g("v_rcp_f32 v26, v25\nv_log_f32 v25, v25")
    for i in range(4):
        g(f"v_mul_f32 v{FA+i}, v{FA+i}, v26")
    VOPR, VL4, VLSE = P0 + 4, P0 + 5, P0 + 6
    g(f"v_fma_f32 v25, v24, s10, v25\nv_min_u32 v{VLSE}, -2, v25")
    g(f"v_lshlrev_b32 v{VOPR}, 3, v1\ns_mul_i32 s11, s15, {OPH}\nv_add_u32 v{VOPR}, s11, v{VOPR}")
    g(f"v_lshlrev_b32 v{VL4}, 2, v2\nv_lshl_add_u32 v{VL4}, v3, 11, v{VL4}")
    g("s_cmp_ge_u32 s26, 4\ns_cbranch_scc1 L_tdone")
    g("s_mov_b32 s71, 0")
    g("L_tpoll:")
    g("buffer_load_dwordx2 v[128:129], v6, s[44:47], s68 offen sc1")
    g("s_waitcnt vmcnt(0)")
    g("v_xor_b32 v16, s92, v128\nv_xor_b32 v17, s93, v129\nv_or_b32 v16, v16, v17")
    g("v_cmp_ne_u32 vcc, 0, v16")
    g(f"s_add_u32 s71, s71, 1\ns_cmp_ge_u32 s71, {maxpoll}\ns_cbranch_scc1 L_tdone")
    g("s_cmp_lg_u64 vcc, 0\ns_cbranch_scc1 L_tpoll")
    g("L_tdone:")
    g(f"s_lshl_b32 s11, s4, 15\ns_lshr_b32 s13, s7, 2\ns_lshl_b32 s13, s13, 10\ns_add_u32 s11, s11, s13\ns_lshl_b32 s13, s6, 8\ns_add_u32 s11, s11, s13\ns_and_b32 s13, s7, 3\ns_lshl_b32 s13, s13, 6\ns_add_u32 s11, s11, s13\ns_add_u32 s11, s11, {WS_O:#x}")
    g("s_lshl_b32 s13, s15, 13\ns_add_u32 s68, s11, s13")
    g(f"s_lshl_b32 s62, s4, 9\ns_lshl_b32 s13, s6, 5\ns_add_u32 s62, s62, s13\ns_and_b32 s13, s7, 3\ns_lshl_b32 s13, s13, 3\ns_add_u32 s62, s62, s13\ns_lshr_b32 s13, s7, 2\ns_lshl_b32 s13, s13, 2\ns_add_u32 s62, s62, s13\ns_add_u32 s62, s62, {WS_LSE:#x}")
    g("s_lshl_b32 s13, s15, 7\ns_add_u32 s62, s62, s13")
    g("s_call_b64 s[100:101], L_fsetup")
    g("s_mov_b64 exec, 1")
    if local:
        g("s_cmp_lg_u32 s1, 0\ns_cbranch_scc1 L_lstg")
        g(f"buffer_store_dword v{VLSE}, v{VZ}, s[44:47], s62 offen")
        g("s_branch L_lsd")
        g("L_lstg:")
    g(f"buffer_store_dword v{VLSE}, v{VZ}, s[44:47], s62 offen sc1")
    g("L_lsd:")
    g("s_mov_b64 exec, -1")
    g("s_waitcnt lgkmcnt(0)")
    TS(4)
    g("s_barrier")
    TS(5)
    for w in range(4):
        g(f"ds_read_b64 v[{16+2*w}:{17+2*w}], v{VOPR} offset:{L_OP + OPW*w}")
    g("s_waitcnt lgkmcnt(0)")
    g(f"v_pk_mul_f32 v[16:17], v[16:17], v[{FA}:{FA+1}] op_sel:[0,0] op_sel_hi:[1,0]")
    g(f"v_pk_mul_f32 v[20:21], v[20:21], v[{FA+2}:{FA+3}] op_sel:[0,0] op_sel_hi:[1,0]")
    g(f"v_pk_fma_f32 v[16:17], v[18:19], v[{FA}:{FA+1}], v[16:17] op_sel:[0,1,0] op_sel_hi:[1,1,1]")
    g(f"v_pk_fma_f32 v[20:21], v[22:23], v[{FA+2}:{FA+3}], v[20:21] op_sel:[0,1,0] op_sel_hi:[1,1,1]")
    g("v_pk_add_f32 v[16:17], v[16:17], v[20:21]")
    g("v_cvt_pk_bf16_f32 v16, v16, v17\nv_min_u32 v16, -2, v16")
    if local:
        g("s_cmp_lg_u32 s1, 0\ns_cbranch_scc1 L_ostg")
        g(f"buffer_store_dword v16, v{VL4}, s[44:47], s68 offen")
        TS(6)
        g("s_branch L_B5")
        g("L_ostg:")
    g(f"buffer_store_dword v16, v{VL4}, s[44:47], s68 offen sc1")
    TS(6)
    g("s_branch L_B5")

    g("L_fsetup:")
    g(f"""
    s_sub_u32 s63, s3, 4
    s_lshr_b32 s13, s5, 4
    s_lshl_b32 s14, s4, 1
    s_add_u32 s13, s13, s14
    s_lshl_b32 s13, s13, 11
    s_and_b32 s14, s5, 15
    s_lshl_b32 s14, s14, 7
    s_add_u32 s13, s13, s14
    v_lshlrev_b32 v{VH2S}, 15, v3
    v_lshl_add_u32 v{VH2S}, v2, 3, v{VH2S}
    v_lshlrev_b32 v{VGP}, 3, v1
    """)
    g(f"s_add_u32 s69, s13, {WS_H2:#x}")
    srd(56, 16, 4096)
    g(f"""
    v_and_b32 v8, 1, v3
    v_lshlrev_b32 v8, 1, v8
    v_lshrrev_b32 v9, 1, v3
    v_or_b32 v8, v8, v9
    v_lshl_add_u32 v8, v2, 2, v8
    s_lshl_b32 s8, s63, 6
    v_add_u32 v8, s8, v8
    v_lshlrev_b32 v{VCOL}, 1, v8
    s_and_b32 s8, s26, 3
    s_lshl_b32 s43, s8, 10
    v_lshlrev_b32 v{VH2}, 11, v3
    v_lshl_add_u32 v{VH2}, v2, 4, v{VH2}
    s_lshl_b32 s11, s63, 3
    v_lshrrev_b32 v{VST}, 5, v1
    v_lshlrev_b32 v{VST}, 2, v{VST}
    v_add_u32 v{VST}, s11, v{VST}
    s_cmp_ge_u32 s26, 4
    s_cbranch_scc1 L_fs1
    buffer_load_ushort v{VX}, v{VCOL}, s[56:59], s43 offen
    L_fs1:
    s_setpc_b64 s[100:101]
    """)

    g("L_Q2:")
    g("s_setprio 1")
    g("s_waitcnt vmcnt(18)")
    g("s_mov_b32 s8, 0x3f803f80\nv_mov_b32 v10, 0\nv_mov_b32 v11, 0\nv_mov_b32 v12, 0\nv_mov_b32 v13, 0")
    for i in range(0, 16, 2):
        g(f"v_dot2_f32_bf16 v10, v{16+i}, s8, v10")
        g(f"v_dot2_f32_bf16 v11, v{16+i}, v{16+i}, v11")
        g(f"v_dot2_f32_bf16 v12, v{17+i}, s8, v12")
        g(f"v_dot2_f32_bf16 v13, v{17+i}, v{17+i}, v13")
    g("s_nop 2")
    g("v_pk_add_f32 v[10:11], v[10:11], v[12:13]")
    for m in ("row_ror:4", "row_ror:8"):
        g(f"v_add_f32_dpp v10, v10, v10 {m} row_mask:0xf bank_mask:0xf")
        g(f"v_add_f32_dpp v11, v11, v11 {m} row_mask:0xf bank_mask:0xf")
    for sw in ("v_permlane32_swap_b32", "v_permlane16_swap_b32"):
        g("v_mov_b32 v12, v10\nv_mov_b32 v13, v11")
        g(f"{sw} v10, v12\n{sw} v11, v13")
        g("v_pk_add_f32 v[10:11], v[10:11], v[12:13]")
    g(f"s_mov_b32 s8, {f2u(1.0/512):#x}\ns_mov_b32 s9, {f2u(1.0/512):#x}\ns_mov_b32 s10, {f2u(1e-5):#x}")
    ln_scalar(10, 11, 12)
    g("s_waitcnt vmcnt(16)")
    for d in range(4):
        a = 16 + 2 * d
        g(f"v_lshlrev_b32 v{a}, 16, v{32+d}\nv_and_b32 v{a+1}, s42, v{32+d}")
    for d in range(4):
        a = 16 + 2 * d
        g(f"v_pk_add_f32 v[{a}:{a+1}], v[{a}:{a+1}], v[10:11] op_sel:[0,0] op_sel_hi:[1,0] neg_lo:[0,1] neg_hi:[0,1]")
    for d in range(4):
        a = 16 + 2 * d
        g(f"v_cvt_pk_bf16_f32 v{32+d}, v{a}, v{a+1}")
    for d in range(4):
        a = 16 + 2 * d
        g(f"v_lshlrev_b32 v{a}, 16, v{32+d}\nv_and_b32 v{a+1}, s42, v{32+d}")
    for d in range(4):
        a = 16 + 2 * d
        g(f"v_pk_mul_f32 v[{a}:{a+1}], v[{a}:{a+1}], v[10:11] op_sel:[0,1] op_sel_hi:[1,1]")
    for d in range(4):
        a = 16 + 2 * d
        g(f"v_cvt_pk_bf16_f32 v{32+d}, v{a}, v{a+1}")
    g("""
    v_lshlrev_b32 v8, 8, v4
    v_lshl_add_u32 v8, v3, 4, v8
    v_lshl_add_u32 v9, v7, 6, v8
    """)
    g(f"ds_write_b128 v9, v[32:35] offset:{L_XN}")
    for kb in range(4):
        g(f"ds_read_b128 v[{36+4*kb}:{39+4*kb}], v8 offset:{L_XN + 64*kb}")
    g("""
    v_lshrrev_b32 v9, 2, v2
    v_lshl_add_u32 v9, v3, 2, v9
    v_bfe_u32 v14, v9, 1, 2
    v_lshlrev_b32 v9, 7, v9
    v_lshl_add_u32 v9, v4, 3, v9
    """)
    for mt in range(4):
        g(f"v_xor_b32 v15, {mt}, v14")
        g(f"v_lshl_add_u32 v{10+mt}, v15, 5, v9")
    g("s_waitcnt lgkmcnt(0)")
    tags()
    AF = 52
    for kb in range(4):
        g(f"s_waitcnt vmcnt({12-4*kb})")
        for mt in range(4):
            r = AF + 16 * kb + 4 * mt
            g(f"ds_read_b64_tr_b16 v[{r}:{r+1}], v{10+mt} offset:{L_WQT + 4096*kb}")
            g(f"ds_read_b64_tr_b16 v[{r+2}:{r+3}], v{10+mt} offset:{L_WQT + 4096*kb + 2048}")
    for z in (1, 2, 3):
        g(f"v_cmp_eq_u32_e64 s[{50+2*z}:{51+2*z}], {z}, v7")
    g("""
    v_lshlrev_b32 v8, 14, v4
    v_lshl_add_u32 v8, v7, 7, v8
    v_lshl_add_u32 v8, v3, 5, v8
    s_lshl_b32 s8, s4, 16
    s_lshl_b32 s9, s6, 12
    s_add_u32 s8, s8, s9
    s_lshl_b32 s9, s7, 9
    s_add_u32 s8, s8, s9
    """)
    g(f"s_add_u32 s8, s8, {WS_QS:#x}")
    g("s_add_u32 s93, s93, s0")
    g("s_waitcnt lgkmcnt(0)")
    QD = 116
    for kb in range(4):
        for mt in range(4):
            r = AF + 16 * kb + 4 * mt
            c = "0" if kb == 0 else f"v[{QD+4*mt}:{QD+4*mt+3}]"
            g(f"v_mfma_f32_16x16x32_bf16 v[{QD+4*mt}:{QD+4*mt+3}], v[{r}:{r+3}], v[{36+4*kb}:{39+4*kb}], {c}")
    for z in (1, 2, 3):
        for i in range(4):
            g(f"v_cndmask_b32_e64 v{QD+i}, v{QD+i}, v{QD+4*z+i}, s[{50+2*z}:{51+2*z}]")
    spin(F_CL, 1)
    g(f"""
    v_mov_b32 v136, v{QD}
    v_mov_b32 v137, v{QD+1}
    v_xor_b32 v138, s92, v{QD+1}
    v_xor_b32 v139, s93, v{QD}
    v_mov_b32 v140, v{QD+2}
    v_mov_b32 v141, v{QD+3}
    v_xor_b32 v142, s92, v{QD+3}
    v_xor_b32 v143, s93, v{QD+2}
    s_add_u32 s9, s8, {QSL:#x}
    s_setprio 3
    buffer_store_dwordx4 v[136:139], v8, s[44:47], s9 offen
    buffer_store_dwordx4 v[140:143], v8, s[44:47], s9 offen offset:16
    buffer_store_dwordx4 v[136:139], v8, s[44:47], s8 offen sc1
    buffer_store_dwordx4 v[140:143], v8, s[44:47], s8 offen offset:16 sc1
    s_setprio 0
    """)
    TS(2)
    g("s_branch L_C")

    g("L_C123:")
    g("s_cmp_lg_u32 s3, 1\ns_cbranch_scc1 L_C23")
    g("v_lshlrev_b32 v4, 2, v2")
    g(f"ds_write_b32 v4, v{VZ} offset:{L_FL}")
    srd(48, 28, 3584)
    srd(52, 30, 3584)
    srd(56, 32, 3584)
    g("v_lshlrev_b32 v6, 4, v1")
    g("s_waitcnt lgkmcnt(0)")
    if not mwearly: g("s_setprio 3\ns_barrier")
    for a in range(3):
        g(f"s_mov_b32 m0, {L_MW + 4096*a}")
        for i in range(4):
            if not nomw: g(f"buffer_load_dwordx4 v6, s[{48+4*a}:{51+4*a}], 0 offen offset:{1024*i} lds")
    if mwearly: g("s_barrier")
    g("s_setprio 0")
    g("s_waitcnt vmcnt(0)")
    signal(F_MW)
    g("s_branch L_C")
    g("L_C23:")
    g("s_cmp_eq_u32 s3, 2\ns_cbranch_scc1 L_C2")
    g("s_barrier")
    g("s_waitcnt vmcnt(0)")
    g("s_branch L_C")
    g("L_C2:")
    g("""
    s_lshl_b32 s11, s4, 5
    s_add_u32 s11, s11, s5
    v_mov_b32 v8, -1
    v_mov_b32 v9, -1
    v_mov_b32 v10, -1
    v_mov_b32 v11, -1
    v_lshlrev_b32 v4, 4, v1
    """)
    g(f"s_lshl_b32 s11, s4, 15\ns_lshr_b32 s13, s7, 2\ns_lshl_b32 s13, s13, 10\ns_add_u32 s11, s11, s13\ns_lshl_b32 s13, s6, 8\ns_add_u32 s11, s11, s13\ns_and_b32 s13, s7, 3\ns_lshl_b32 s13, s13, 6\ns_add_u32 s11, s11, s13\ns_add_u32 s11, s11, {WS_O:#x}")
    g(f"s_lshl_b32 s62, s4, 9\ns_lshl_b32 s13, s6, 5\ns_add_u32 s62, s62, s13\ns_and_b32 s13, s7, 3\ns_lshl_b32 s13, s13, 3\ns_add_u32 s62, s62, s13\ns_lshr_b32 s13, s7, 2\ns_lshl_b32 s13, s13, 2\ns_add_u32 s62, s62, s13\ns_add_u32 s62, s62, {WS_LSE:#x}")
    g("s_mov_b32 s12, s11")
    g("v_lshrrev_b32 v12, 2, v1\nv_lshlrev_b32 v12, 11, v12\nv_and_b32 v13, 3, v1\nv_lshl_add_u32 v12, v13, 4, v12\nv_lshlrev_b32 v13, 7, v1")
    g("buffer_store_dwordx4 v[8:11], v12, s[44:47], s12 offen sc1")
    g("""
    v_lshlrev_b32 v5, 15, v3
    v_lshl_add_u32 v5, v2, 3, v5
    s_lshr_b32 s13, s5, 4
    s_lshl_b32 s14, s4, 1
    s_add_u32 s13, s13, s14
    s_lshl_b32 s13, s13, 11
    s_and_b32 s14, s5, 15
    s_lshl_b32 s14, s14, 7
    s_add_u32 s13, s13, s14
    """)
    g(f"s_add_u32 s13, s13, {WS_H2:#x}")
    g("buffer_store_dwordx2 v[8:9], v5, s[44:47], s13 offen sc1")
    g("s_mov_b64 exec, 15")
    g("buffer_store_dword v8, v13, s[44:47], s62 offen sc1")
    g(f"s_mul_i32 s14, s2, 48\ns_add_u32 s14, s14, {WS_TAB:#x}")
    g("s_mov_b64 exec, 7")
    g("buffer_store_dwordx4 v[8:11], v4, s[44:47], s14 offen sc1")
    g("s_mov_b64 exec, -1")
    g("s_barrier")
    g("s_waitcnt vmcnt(0) lgkmcnt(0)")
    tags()
    signal(F_CL)
    if pretouch:
        g("s_setprio 3")
        g("buffer_load_dwordx4 v[152:155], v12, s[44:47], s12 offen sc1")
    g("v_mov_b32 v8, s92\nv_mov_b32 v9, s93")
    g(f"s_lshl_b32 s9, s2, 3\ns_add_u32 s9, s9, {WS_T:#x}")
    g("s_mov_b64 exec, 1")
    g(f"buffer_store_dwordx2 v[8:9], v{VZ}, s[44:47], s9 offen sc1")
    g("s_mov_b64 exec, -1")
    g("s_setprio 0")
    signal(F_MW)

    MWB, EH, EA, ES = 16, 100, 102, 108
    g("L_C:")
    spin(F_MW, 2)
    TS(3)
    if dbg: g("s_memtime s[82:83]")
    g(f"v_lshlrev_b32 v4, 2, v1")
    for a in range(3):
        for k in range(14):
            g(f"ds_read_b32 v{MWB+28*a+2*k+1}, v4 offset:{L_MW + 4096*a + 256*k}")
    g(f"s_mov_b32 s8, {f2u(ALPHA):#x}\ns_mov_b32 s9, {f2u(ALPHA):#x}\ns_mov_b32 s10, {f2u(1.0/ALPHA):#x}\ns_mov_b32 s11, {f2u(1.0/ALPHA):#x}")
    g("s_waitcnt lgkmcnt(0)")
    for a in range(3):
        for k in range(14):
            r = MWB + 28 * a + 2 * k
            g(f"v_lshlrev_b32 v{r}, 16, v{r+1}")
            g(f"v_and_b32 v{r+1}, s42, v{r+1}")
    for a in range(3):
        for k in range(14):
            r = MWB + 28 * a + 2 * k
            g(f"v_pk_mul_f32 v[{r}:{r+1}], v[{r}:{r+1}], s[{8 if a < 2 else 10}:{9 if a < 2 else 11}]")
    g(f"s_mov_b32 s62, {f2u(BETA):#x}\ns_mov_b32 s63, {f2u(BETA):#x}")
    g("s_mul_i32 s95, s2, 24\ns_mul_i32 s96, s3, 6\ns_add_u32 s95, s95, s96\ns_add_u32 s96, s95, 6")
    g(f"v_lshlrev_b32 v{VB2}, 16, v{VB2}")
    g("L_tab1:")
    g(f"s_cmp_ge_u32 s95, {NBIN*128}\ns_cselect_b32 s97, {0x8000 - NBIN*128}, 0")
    g(f"s_add_u32 s97, s97, s95\ns_add_u32 s97, s97, {EXP0 << 7}\ns_lshl_b32 s97, s97, 16\nv_mov_b32 v{EH}, s97")
    if not notab: g("s_call_b64 s[100:101], L_eval")
    g(f"v_alignbit_b32 v136, v137, v136, 16\nv_alignbit_b32 v137, v138, v137, 16\nv_alignbit_b32 v138, v{EA}, v138, 16")
    g("s_add_u32 s95, s95, 1\ns_cmp_lt_u32 s95, s96\ns_cbranch_scc1 L_tab1")
    g(f"s_lshl_b32 s97, s96, 1\ns_add_u32 s97, s97, {WS_TAB - 12:#x}")
    g("s_mov_b32 exec_lo, 0\ns_mov_b32 exec_hi, 0x80000000")
    g("s_setprio 3")
    g(f"buffer_store_dwordx3 v[136:138], v{VZ}, s[44:47], s97 offen sc1")
    g("s_mov_b64 exec, -1")
    TS(4)
    if dbg: g("s_memtime s[84:85]")
    g("s_cmp_ge_u32 s26, 4\ns_cbranch_scc1 L_fin")
    if dry:
        g("s_cmp_lg_u32 s3, 0\ns_cbranch_scc1 L_dry_ret")
        g("s_mov_b64 s[98:99], 0\ns_mov_b64 exec, 0\ns_branch L_fseg")
    g("L_dry_ret:")
    g("s_mov_b64 s[98:99], -1\ns_mov_b64 exec, -1")
    srd(48, 36, 4096)
    g(f"v_lshlrev_b32 v4, 4, v1\ns_mul_i32 s12, s3, 3072\ns_add_u32 m0, s12, {L_TAB}\ns_add_u32 s12, s12, {WS_TAB:#x}")
    g("s_barrier\ns_barrier")
    g(f"s_mov_b32 s71, 0\ns_mul_i32 s13, s3, 3072\nv_add_u32 v5, s13, v4")
    g("L_tfetch:")
    for i in range(3):
        g(f"buffer_load_dwordx4 v4, s[44:47], s12 offen offset:{1024*i} sc1 lds")
    g("s_waitcnt vmcnt(0)")
    for i in range(3):
        g(f"ds_read_b128 v[{108+4*i}:{111+4*i}], v5 offset:{L_TAB + 1024*i}")
    g("s_waitcnt lgkmcnt(0)")
    g("v_max3_u32 v108, v108, v109, v110\nv_max3_u32 v111, v111, v112, v113\nv_max3_u32 v114, v114, v115, v116\nv_max3_u32 v117, v117, v118, v119")
    g("v_max3_u32 v108, v108, v111, v114\nv_max_u32 v108, v108, v117")
    g("v_cmp_eq_u32 vcc, -1, v108")
    g("s_add_u32 s71, s71, 1\ns_cmp_ge_u32 s71, 4\ns_cbranch_scc1 L_tfd")
    g("s_cmp_lg_u64 vcc, 0\ns_cbranch_scc1 L_tfetch")
    g("L_tfd:")
    g("s_barrier\ns_barrier" if aln2 else "s_barrier\ns_barrier\ns_barrier")
    g(f"ds_read_b32 v4, v{VFL} offset:{F_MISS}")
    g("s_waitcnt lgkmcnt(0)")
    g("v_readfirstlane_b32 s96, v4")
    g("s_mov_b32 s95, s3")
    g("s_lshl_b32 s43, s26, 10")
    g("L_fb:")
    g("s_cmp_ge_u32 s95, s96\ns_cbranch_scc1 L_fin")
    g("s_lshl_b32 s8, s95, 3\nv_mov_b32 v4, s8")
    g(f"ds_read_b64 v[6:7], v4 offset:{L_MISS}")
    g("s_waitcnt lgkmcnt(0)")
    g(f"v_and_b32 v{EH}, s42, v6\nv_and_b32 v6, 0xffff, v6")
    g("s_call_b64 s[100:101], L_eval")
    g(f"v_and_b32 v8, s42, v{EA}\nv_add_f32 v8, v8, v7\nv_cvt_pk_bf16_f32 v8, v8, v8")
    g("s_mov_b32 exec_lo, 0\ns_mov_b32 exec_hi, 0x80000000")
    g("buffer_store_short v8, v6, s[48:51], s43 offen")
    g("s_mov_b64 exec, -1")
    g("s_add_u32 s95, s95, 4\ns_branch L_fb")

    g("L_eval:")
    NB = 7
    for b0 in range(0, 14, NB):
        ks = list(range(b0, b0 + NB))
        S_ = lambda i: ES + 4 * i
        Z = lambda i: ES + 2 + 4 * i
        for i, k in enumerate(ks):
            w_ = MWB + 2 * k
            bb = MWB + 28 + 2 * k
            g(f"v_pk_fma_f32 v[{S_(i)}:{S_(i)+1}], v[{w_}:{w_+1}], v[{EH}:{EH+1}], v[{bb}:{bb+1}] op_sel:[0,0,0] op_sel_hi:[1,0,1]")
        for i, k in enumerate(ks):
            g(f"v_pk_fma_f32 v[{Z(i)}:{Z(i)+1}], v[{S_(i)}:{S_(i)+1}], v[{S_(i)}:{S_(i)+1}], s[62:63]")
        for i, k in enumerate(ks):
            g(f"v_pk_mul_f32 v[{Z(i)}:{Z(i)+1}], v[{Z(i)}:{Z(i)+1}], v[{S_(i)}:{S_(i)+1}]")
        for i, k in enumerate(ks):
            g(f"v_exp_f32 v{Z(i)}, v{Z(i)}\nv_exp_f32 v{Z(i)+1}, v{Z(i)+1}")
            vv = MWB + 56 + 2 * k
            g(f"v_pk_mul_f32 v[{S_(i)}:{S_(i)+1}], v[{S_(i)}:{S_(i)+1}], v[{vv}:{vv+1}]")
        for i, k in enumerate(ks):
            g(f"v_pk_add_f32 v[{Z(i)}:{Z(i)+1}], v[{Z(i)}:{Z(i)+1}], 1.0 op_sel_hi:[1,0]")
        for i, k in enumerate(ks):
            g(f"v_rcp_f32 v{Z(i)}, v{Z(i)}\nv_rcp_f32 v{Z(i)+1}, v{Z(i)+1}")
        for i, k in enumerate(ks):
            acc = EA + 2 * (i & 1)
            if b0 == 0 and i < 2:
                g(f"v_pk_mul_f32 v[{acc}:{acc+1}], v[{S_(i)}:{S_(i)+1}], v[{Z(i)}:{Z(i)+1}]")
            else:
                g(f"v_pk_fma_f32 v[{acc}:{acc+1}], v[{S_(i)}:{S_(i)+1}], v[{Z(i)}:{Z(i)+1}], v[{acc}:{acc+1}]")
    g(f"v_pk_add_f32 v[{EA}:{EA+1}], v[{EA}:{EA+1}], v[{EA+2}:{EA+3}]\nv_add_f32 v{EA}, v{EA}, v{EA+1}")
    for m in DPP6:
        g(f"v_add_f32_dpp v{EA}, v{EA}, v{EA} {m}")
    g(f"""
    v_cvt_pk_bf16_f32 v{EA}, v{EA}, v{EA}
    v_and_b32 v{EA}, s42, v{EA}
    v_add_f32 v{EA}, v{EA}, v{VB2}
    v_cvt_pk_bf16_f32 v{EA}, v{EA}, v{EA}
    s_setpc_b64 s[100:101]
    """)

    g("L_V:")
    g("s_setprio 2")
    g("s_barrier")
    g("s_call_b64 s[100:101], L_fsetup")
    srd(48, 20, 0x4000000)
    srd(52, 24, 0x400000)
    VPAY, VW0, VW1, VWT, VGW = P0, P0 + 1, P0 + 2, P0 + 3, P0 + 4
    g("""
    v_lshlrev_b32 v5, 4, v2
    v_lshl_add_u32 v5, v3, 10, v5
    v_lshlrev_b32 v14, 4, v1
    s_lshl_b32 s11, s15, 11
    v_add_u32 v14, s11, v14
    """)
    g(f"v_mul_u32_u24 v15, {OPH}, v2")
    g("v_lshl_add_u32 v15, v3, 4, v15")
    g(f"s_mul_i32 s11, s15, {OPW}\nv_add_u32 v15, s11, v15")
    g("""
    v_and_b32 v7, 1, v3
    v_lshlrev_b32 v8, 6, v7
    v_bfe_u32 v9, v1, 2, 2
    v_lshl_add_u32 v8, v9, 3, v8
    v_lshrrev_b32 v9, 5, v1
    v_add_u32 v8, v8, v9
    v_lshlrev_b32 v8, 10, v8
    v_and_b32 v9, 3, v1
    v_lshlrev_b32 v7, 1, v7
    v_xor_b32 v9, v9, v7
    v_lshl_add_u32 v8, v9, 4, v8
    s_lshl_b32 s8, s4, 19
    s_lshr_b32 s9, s5, 4
    s_lshl_b32 s9, s9, 18
    s_add_u32 s8, s8, s9
    s_and_b32 s9, s5, 15
    s_lshl_b32 s9, s9, 6
    s_add_u32 s8, s8, s9
    s_lshr_b32 s9, s15, 1
    s_lshl_b32 s9, s9, 17
    s_add_u32 s8, s8, s9
    s_and_b32 s9, s15, 1
    s_lshl_b32 s9, s9, 12
    s_add_u32 s8, s8, s9
    s_lshl_b32 s14, s15, 12
    """)
    g(f"s_add_u32 s14, s14, {L_WOT}")
    g("""
    s_lshr_b32 s9, s5, 4
    s_lshl_b32 s9, s9, 1
    s_lshr_b32 s10, s15, 1
    s_add_u32 s9, s9, s10
    """)
    g(f"s_lshl_b32 s10, s4, 15\ns_add_u32 s10, s10, {WS_O:#x}")
    g("s_lshl_b32 s11, s9, 13\ns_add_u32 s10, s10, s11\ns_and_b32 s11, s15, 1\ns_lshl_b32 s11, s11, 12\ns_add_u32 s60, s10, s11")
    g(f"s_lshl_b32 s10, s4, 9\ns_lshl_b32 s11, s9, 7\ns_add_u32 s58, s10, s11\ns_add_u32 s58, s58, {WS_LSE:#x}")
    g(f"""
    v_lshrrev_b32 v6, 2, v2
    v_and_b32 v7, 3, v2
    v_lshlrev_b32 v{VWT}, 3, v2
    v_lshlrev_b32 v{VPAY}, 6, v2
    v_lshl_add_u32 v{VPAY}, v3, 4, v{VPAY}
    v_lshrrev_b32 v7, 2, v2
    v_lshl_add_u32 v7, v3, 2, v7
    v_lshlrev_b32 v7, 6, v7
    v_and_b32 v9, 3, v2
    v_lshl_add_u32 v7, v9, 3, v7
    v_and_b32 v9, 1, v3
    v_lshl_add_u32 v{VW0}, v9, 5, v7
    v_xor_b32 v9, 1, v9
    v_lshl_add_u32 v{VW1}, v9, 5, v7
    v_add_u32 v{VW0}, s14, v{VW0}
    v_add_u32 v{VW1}, s14, v{VW1}
    v_lshlrev_b32 v{VGW}, 7, v6
    v_lshl_add_u32 v{VGW}, v3, 4, v{VGW}
    s_lshl_b32 s10, s15, 9
    v_add_u32 v{VGW}, s10, v{VGW}
    s_mov_b32 s96, 0x11111111
    s_mov_b32 s97, 0x11111111
    s_mov_b32 s12, 0x05040100
    s_mov_b32 s13, 0x07060302
    s_mov_b32 s56, 0x000f000f
    s_mov_b32 s57, 0x000f000f
    """)
    if kneed:
        spin(F_K, kneed, sl=1)
    else:
        spin(F_K, 1, vaddr=VFW, sl=slp)
    TS(4)
    VR, AO, AT, PA = 16, 80, 112, 6
    n = 0
    for T in range(4):
        for i in range(4):
            r = VR + 16 * T + 4 * i
            if n >= limv:
                g(f"s_waitcnt vmcnt({limv-1})")
            g(f"buffer_load_dwordx4 v[{r}:{r+3}], v5, s[48:51], s{64+T} offen offset:{256*i} {kvflags}")
            n += 1
    if wolast:
        signal(F_VI)
        spin(F_VI, 4)
    for i in range(4):
        dI = 32 * (i & 1) + 2 * (i >> 1)
        g(f"s_add_u32 s9, s8, {dI*1024:#x}")
        g(f"s_add_u32 m0, s14, {1024*i}")
        g(f"buffer_load_dwordx4 v8, s[52:55], s9 offen {wflags} lds")
    TS(5)
    spin(F_P, 1, vaddr=VFW)
    g(f"ds_read_b128 v[{PA}:{PA+3}], v14 offset:{L_PL}")
    g(f"ds_read_b128 v[{PA+4}:{PA+7}], v14 offset:{L_PL+1024}")
    g("s_waitcnt lgkmcnt(0)")
    tb = lambda j: AT + 4 * j
    for u_ in range(2):
        for q in range(4):
            T = 2 * u_ + (q >> 1)
            i0 = 2 * (q & 1)
            done = 4 * T + i0 + 2
            g(f"s_waitcnt vmcnt({20-done})")
            a = VR + 16 * T + 4 * i0
            b_ = a + 4
            for dw in range(4):
                g(f"v_perm_b32 v{tb(2*dw)+q}, v{b_+dw}, v{a+dw}, s12")
                g(f"v_perm_b32 v{tb(2*dw+1)+q}, v{b_+dw}, v{a+dw}, s13")
        for j in range(8):
            c = "0" if u_ == 0 else f"v[{AO+4*j}:{AO+4*j+3}]"
            g(f"v_mfma_f32_16x16x32_bf16 v[{AO+4*j}:{AO+4*j+3}], v[{tb(j)}:{tb(j)+3}], v[{PA+4*u_}:{PA+4*u_+3}], {c}")
    g("s_mov_b64 exec, s[56:57]")
    for j in range(8):
        g(f"ds_write_b128 v15, v[{AO+4*j}:{AO+4*j+3}] offset:{L_OP + 64*j}")
    g("s_mov_b64 exec, -1")
    TS(6)
    g("s_waitcnt lgkmcnt(0)")
    g("s_barrier")
    PAY, WF, DD = 16, 32, 48

    def h1loads(hf):
        for kb in range(2):
            r = PAY + 8 * hf + 4 * kb
            g(f"buffer_load_dwordx4 v[{r}:{r+3}], v{VPAY}, s[44:47], s60 offen offset:{2048*kb + 1024*hf} sc1")
        g(f"buffer_load_dword v{64+hf}, v{VWT}, s[44:47], s58 offen offset:{4*hf} sc1")
    TS(2)
    h1loads(0)
    h1loads(1)
    g("s_waitcnt vmcnt(6)")
    TS(3)
    for kb in range(2):
        for mt in range(2):
            r = WF + 8 * kb + 4 * mt
            g(f"ds_read_b64_tr_b16 v[{r}:{r+1}], v{VW0+mt} offset:{2048*kb}")
            g(f"ds_read_b64_tr_b16 v[{r+2}:{r+3}], v{VW0+mt} offset:{2048*kb+1024}")
    if dbg:
        g("s_waitcnt vmcnt(0)")
        TS(4)
    g("s_mov_b32 s71, 0")
    g("L_h1chk:")
    g("""
    s_waitcnt vmcnt(0)
    v_max3_u32 v8, v16, v17, v18
    v_max3_u32 v9, v24, v25, v26
    v_max3_u32 v8, v8, v19, v20
    v_max3_u32 v9, v9, v27, v28
    v_max3_u32 v8, v8, v21, v22
    v_max3_u32 v9, v9, v29, v30
    v_max3_u32 v8, v8, v23, v64
    v_max3_u32 v9, v9, v31, v65
    v_cmp_eq_u32_e64 s[52:53], -1, v8
    v_cmp_eq_u32_e64 s[54:55], -1, v9
    s_or_b64 s[56:57], s[52:53], s[54:55]
    s_cbranch_scc0 L_h1done
    """)
    g(f"s_add_u32 s71, s71, 1\ns_cmp_ge_u32 s71, {maxpoll}\ns_cbranch_scc1 L_h1done")
    for hf in range(2):
        g(f"s_mov_b64 exec, s[{52+2*hf}:{53+2*hf}]")
        g(f"s_cbranch_execz L_h1s{hf}")
        h1loads(hf)
        g(f"L_h1s{hf}:")
    g("s_mov_b64 exec, -1\ns_branch L_h1chk")
    g("L_h1done:")
    g("s_waitcnt lgkmcnt(0)")
    TS(7)
    if dbg:
        g("s_mov_b32 s74, s71\ns_mov_b32 s75, 0")
    wts = ["v_max_f32 v8, v64, v65",
           "v_max_f32_dpp v8, v8, v8 quad_perm:[1,0,3,2] row_mask:0xf bank_mask:0xf",
           "v_max_f32_dpp v8, v8, v8 quad_perm:[2,3,0,1] row_mask:0xf bank_mask:0xf",
           "v_sub_f32 v64, v64, v8\nv_sub_f32 v65, v65, v8",
           "v_exp_f32 v64, v64\nv_exp_f32 v65, v65",
           "v_add_f32 v8, v64, v65",
           "v_add_f32_dpp v8, v8, v8 quad_perm:[1,0,3,2] row_mask:0xf bank_mask:0xf",
           "v_add_f32_dpp v8, v8, v8 quad_perm:[2,3,0,1] row_mask:0xf bank_mask:0xf"]
    wi = 0
    for kb in range(2):
        for mt in range(2):
            for hf in range(2):
                d = DD + 8 * mt + 4 * hf
                b_ = PAY + 8 * hf + 4 * kb
                a_ = WF + 8 * kb + 4 * mt
                c = "0" if kb == 0 else f"v[{d}:{d+3}]"
                g(f"v_mfma_f32_16x16x32_bf16 v[{d}:{d+3}], v[{a_}:{a_+3}], v[{b_}:{b_+3}], {c}")
                g(wts[wi]); wi += 1
    g("v_rcp_f32 v8, v8")
    g("v_pk_mul_f32 v[64:65], v[64:65], v[8:9] op_sel:[0,0] op_sel_hi:[1,0]")
    for mt in range(2):
        for h_ in range(2):
            d = DD + 8 * mt + 2 * h_
            g(f"v_pk_mul_f32 v[{d}:{d+1}], v[{d}:{d+1}], v[64:65] op_sel:[0,0] op_sel_hi:[1,0]")
    for mt in range(2):
        for h_ in range(2):
            d = DD + 8 * mt + 2 * h_
            g(f"v_pk_fma_f32 v[{d}:{d+1}], v[{d+4}:{d+5}], v[64:65], v[{d}:{d+1}] op_sel:[0,1,0] op_sel_hi:[1,1,1]")
    for m in ("quad_perm:[1,0,3,2]", "quad_perm:[2,3,0,1]"):
        for mt in range(2):
            for i in range(4):
                d = DD + 8 * mt + i
                g(f"v_add_f32_dpp v{d}, v{d}, v{d} {m} row_mask:0xf bank_mask:0xf")
    g("s_mov_b64 exec, s[96:97]")
    g(f"ds_write_b128 v{VGW}, v[{DD}:{DD+3}] offset:{L_GP}")
    g(f"ds_write_b128 v{VGW}, v[{DD+8}:{DD+11}] offset:{L_GP+64}")
    g("s_mov_b64 exec, -1")
    g("s_waitcnt lgkmcnt(0)")

    g("L_B5:")
    g("s_barrier")
    TS(8, 'V')
    TS(7, 'K')
    g("s_cmp_lg_u32 s3, 4\ns_cbranch_scc1 L_H2")
    for w in range(4):
        g(f"ds_read_b64 v[{16+2*w}:{17+2*w}], v{VGP} offset:{L_GP + 512*w}")
    g("s_waitcnt lgkmcnt(0)")
    g("v_pk_add_f32 v[16:17], v[16:17], v[18:19]\nv_pk_add_f32 v[20:21], v[20:21], v[22:23]\nv_pk_add_f32 v[32:33], v[16:17], v[20:21]")
    g("v_min_u32 v32, -2, v32\nv_min_u32 v33, -2, v33")
    if fg is not None and local:
        g(f"s_cmp_lg_u32 s4, {fg}\ns_cbranch_scc1 L_h2g\ns_cmp_lg_u32 s1, 0\ns_cbranch_scc1 L_h2g")
        g(f"buffer_store_dwordx2 v[32:33], v{VH2S}, s[44:47], s69 offen")
        g("s_branch L_H2")
        g("L_h2g:")
    g(f"buffer_store_dwordx2 v[32:33], v{VH2S}, s[44:47], s69 offen sc1")
    g("L_H2:")
    g("s_cmp_ge_u32 s26, 4\ns_cbranch_scc1 L_fin")
    g("L_fseg:")
    g("s_lshl_b32 s8, s26, 15\ns_lshl_b32 s9, s63, 8\ns_add_u32 s8, s8, s9")
    g(f"s_add_u32 s64, s8, {WS_H2:#x}\ns_add_u32 s65, s64, 0x2000\ns_add_u32 s66, s64, 0x4000\ns_add_u32 s67, s64, 0x6000")
    g("s_cbranch_execz L_fs_a")
    for i in range(4):
        g(f"buffer_load_dwordx4 v[{16+4*i}:{19+4*i}], v{VH2}, s[44:47], s{64+i} offen sc1")
    g("L_fs_a:")
    g(f"s_mov_b32 s8, {f2u(1.0/512):#x}\ns_mov_b32 s9, {f2u(1.0/512):#x}\ns_mov_b32 s10, {f2u(1e-5):#x}")
    g("s_mov_b32 s60, 0x80000000\ns_mov_b32 s61, 0x80000000")
    srd(48, 36, 4096)
    g("s_mov_b32 s71, 0")
    g("L_h2chk:")
    g("s_waitcnt vmcnt(0)")
    for i in range(4):
        g(f"v_max3_u32 v{8+i}, v{16+4*i}, v{17+4*i}, v{18+4*i}")
    for i in range(4):
        g(f"v_max_u32 v{8+i}, v{8+i}, v{19+4*i}")
    g("v_max3_u32 v12, v8, v9, v10\nv_max_u32 v12, v12, v11")
    g("v_cmp_eq_u32 vcc, -1, v12")
    g("s_cmp_eq_u64 vcc, 0\ns_cbranch_scc1 L_h2done")
    g(f"s_add_u32 s71, s71, 1\ns_cmp_ge_u32 s71, {maxpoll}\ns_cbranch_scc1 L_h2done")
    for i in range(4):
        g(f"v_cmp_eq_u32_e64 s[{52+2*i}:{53+2*i}], -1, v{8+i}")
    for i in range(4):
        g(f"s_mov_b64 exec, s[{52+2*i}:{53+2*i}]")
        g(f"s_cbranch_execz L_h2s{i}")
        g(f"buffer_load_dwordx4 v[{16+4*i}:{19+4*i}], v{VH2}, s[44:47], s{64+i} offen sc1")
        g(f"L_h2s{i}:")
    g("s_mov_b64 exec, -1\ns_branch L_h2chk")
    g("L_h2done:")
    TS(9, 'V')
    TS(8, 'K')
    g(f"""
    v_lshlrev_b32 v{VX}, 16, v{VX}
    v_pk_add_f32 v[16:17], v[16:17], v[20:21]
    v_pk_add_f32 v[18:19], v[18:19], v[22:23]
    v_pk_add_f32 v[24:25], v[24:25], v[28:29]
    v_pk_add_f32 v[26:27], v[26:27], v[30:31]
    v_pk_add_f32 v[16:17], v[16:17], v[24:25]
    v_pk_add_f32 v[18:19], v[18:19], v[26:27]
    v_permlane32_swap_b32 v16, v17
    v_permlane32_swap_b32 v18, v19
    v_add_f32 v16, v16, v17
    v_add_f32 v18, v18, v19
    v_permlane16_swap_b32 v16, v18
    v_add_f32 v16, v16, v18
    v_cvt_pk_bf16_f32 v16, v16, v16
    v_and_b32 v16, s42, v16
    v_add_f32 v16, v16, v{VX}
    v_cvt_pk_bf16_f32 v16, v16, v16
    v_and_b32 v13, s42, v16
    """)

    def wave_stats(x, st_off, vmwait=False):
        g(f"v_mul_f32 v19, v{x}, v{x}\nv_mov_b32 v18, v{x}")
        g("v_permlane32_swap_b32 v18, v19\nv_add_f32 v18, v18, v19")
        for m in DPP6[:5]:
            g(f"v_add_f32_dpp v18, v18, v18 {m}")
        g("s_and_b64 exec, s[60:61], s[98:99]")
        g(f"ds_write_b32 v{VST}, v18 offset:{st_off}")
        g("s_mov_b64 exec, s[98:99]")
        g("s_waitcnt lgkmcnt(0)")
        g(f"s_cbranch_execz L_fs_b{st_off}")
        g("s_barrier")
        g(f"L_fs_b{st_off}:")
        for i in range(4):
            g(f"ds_read_b128 v[{20+4*i}:{23+4*i}], v{VZ} offset:{st_off + 16*i}")
        g("s_waitcnt lgkmcnt(0)")
        g("""
        v_pk_add_f32 v[20:21], v[20:21], v[22:23]
        v_pk_add_f32 v[24:25], v[24:25], v[26:27]
        v_pk_add_f32 v[28:29], v[28:29], v[30:31]
        v_pk_add_f32 v[32:33], v[32:33], v[34:35]
        v_pk_add_f32 v[20:21], v[20:21], v[24:25]
        v_pk_add_f32 v[28:29], v[28:29], v[32:33]
        v_pk_add_f32 v[20:21], v[20:21], v[28:29]
        """)
        ln_scalar(20, 21, 22, save=(24 if aln2 else None))

    wave_stats(13, L_ST2)
    g("v_sub_f32 v16, v13, v20")
    g("v_cvt_pk_bf16_f32 v16, v16, v16\nv_and_b32 v16, s42, v16")
    g("v_mul_f32 v16, v16, v21")
    g("v_cvt_pk_bf16_f32 v16, v16, v16\nv_and_b32 v16, s42, v16")
    if aln2:
        g("v_sub_f32 v24, v24, v20\nv_mul_f32 v25, v25, v21")
        g("v_mul_f32 v20, v24, v21\nv_mul_f32 v21, v25, v21")
        ln_scalar(20, 21, 22, pre=False)
    else:
        wave_stats(16, L_ST3)
    TS(9, 'K')
    g("v_sub_f32 v16, v16, v20")
    g("v_cvt_pk_bf16_f32 v16, v16, v16\nv_and_b32 v16, s42, v16")
    g("v_mul_f32 v16, v16, v21")
    g("v_cvt_pk_bf16_f32 v16, v16, v16")
    g(f"v_and_b32 v17, 0x7fff, v16\nv_subrev_u32 v17, {EXP0 << 7}, v17")
    g("v_bfe_u32 v18, v16, 15, 1")
    g(f"s_movk_i32 s11, {NBIN*128}")
    g("v_cmp_gt_u32 vcc, s11, v17")
    g("v_mad_u32_u24 v18, v18, s11, v17")
    g("v_lshlrev_b32 v18, 1, v18")
    g("v_cndmask_b32 v18, 0, v18, vcc")
    g(f"ds_read_u16 v19, v18 offset:{L_TAB}")
    g("s_mov_b32 s12, 0xffff")
    g("s_waitcnt lgkmcnt(0)")
    g("v_cmp_ne_u32_e64 s[52:53], s12, v19")
    g("v_lshlrev_b32 v19, 16, v19\nv_add_f32 v19, v19, v13\nv_cvt_pk_bf16_f32 v19, v19, v19")
    g("s_and_b64 s[52:53], s[52:53], vcc")
    if force_fb:
        g("s_and_b32 s52, s52, 0xfffffff0")
    g("s_mov_b64 exec, s[52:53]")
    g("s_cbranch_execz L_nost")
    g(f"buffer_store_short v19, v{VCOL}, s[48:51], s43 offen")
    g("L_nost:")
    g("s_andn2_b64 exec, s[98:99], s[52:53]")
    g("s_cbranch_execz L_nomiss")
    g(f"ds_add_rtn_u32 v17, v{VFL}, v{VONE} offset:{F_MISS}")
    g(f"v_and_b32 v12, s42, v16\nv_or_b32 v12, v12, v{VCOL}")
    g("s_waitcnt lgkmcnt(0)")
    g("v_lshlrev_b32 v17, 3, v17")
    g(f"ds_write_b64 v17, v[12:13] offset:{L_MISS}")
    g("s_waitcnt lgkmcnt(0)")
    g("L_nomiss:")
    g("s_mov_b64 exec, s[98:99]")
    g("s_cbranch_execz L_dry_ret")
    g("s_barrier")
    g("s_cmp_lg_u32 s26, 0\ns_cbranch_scc1 L_fin\ns_cmp_lg_u32 s3, 4\ns_cbranch_scc1 L_fin")
    if padT:
        g("L_pad:")
        g("s_memrealtime s[74:75]\ns_waitcnt lgkmcnt(0)\ns_sub_u32 s8, s74, s72")
        g(f"s_cmp_lt_u32 s8, {padT}\ns_cbranch_scc1 L_pad")
    g("s_add_u32 s94, s94, 1\nv_mov_b32 v4, s94")
    g("s_mov_b64 exec, 1")
    g(f"buffer_store_dword v4, v{VZ}, s[44:47], 0 offen offset:{WS_E}")
    g("L_fin:")
    if dbg:
        g("s_mov_b64 exec, -1")
        g("s_memrealtime s[92:93]")
        g("s_waitcnt lgkmcnt(0)")
        g(f"s_lshl_b32 s8, s2, 11\ns_lshl_b32 s9, s3, 7\ns_add_u32 s8, s8, s9\ns_add_u32 s8, s8, {WS_DBG:#x}")
        g("s_mov_b64 exec, 1")
        for i in range(0, 22, 2):
            g(f"v_mov_b32 v8, s{72+i}\nv_mov_b32 v9, s{73+i}")
            g(f"buffer_store_dwordx2 v[8:9], v{VZ}, s[44:47], s8 offen offset:{4*i}")
            g("s_nop 1")
    g("L_end:")
    g("s_endpgm")
    g('.section .rodata,"a"')
    g(".p2align 6")
    g(f".amdhsa_kernel {KN}")
    for d in ["next_free_vgpr 168", "next_free_sgpr 102", "accum_offset 168", "group_segment_fixed_size 0", "kernarg_size 104",
              "user_sgpr_count 2", "user_sgpr_kernarg_segment_ptr 1", "system_sgpr_workgroup_id_x 1", "float_denorm_mode_32 3"]:
        g(f".amdhsa_{d}")
    g(".end_amdhsa_kernel")
    open(path, "w").write(g.text())


if __name__ == "__main__":
    kw = eval("dict(%s)" % (sys.argv[2] if len(sys.argv) > 2 else ""))
    gen(sys.argv[1], **kw)
```

```python
import sys, struct, math
from asmlib import Gen

KN = "sequential_preLN__sliding_block_cached__mixer_token_mlp__decode_kernel"

def f2u(x):
    return struct.unpack("<I", struct.pack("<f", x))[0]

WS_E = 0
WS_T = 0x1000
WS_LSE = 0x2000
WS_TAB = 0x4000
WS_H2 = 0x10000
WS_O = 0x40000
OSTR = 1152
WS_QS = 0x90000
QSL = 0x80000
WS_DBG = 0x200000
L_WQT = 0
L_OP = 0
OPW = 2304
OPH = 576
L_GP = 9216
L_MISS = 11264
L_ST2 = 15360
L_ST3 = 15424
L_WOT = 16384
L_TAB = 16384
L_XN = 32768
L_QL = 33792
L_PL = 34816
L_ST = 43008
L_WT = 43200
L_FL = 43456
L_MW = 43520
L_KL = 57344
L_TOTAL = 57344 + 65536
F_NL, F_Q, F_MW, F_ST, F_K, F_P, F_MISS, F_CL, F_VI = 0, 4, 8, 12, 16, 32, 48, 52, 56
EXP0 = 108
NBIN = 24
NW = 12

LOG2E = 1.4426950408889634
K0 = -2.0 * math.sqrt(2.0 / math.pi) * LOG2E
K1 = K0 * 0.044715
ALPHA = -((-K1) ** (1.0 / 3.0))
BETA = K0 / ALPHA
HEADER = open("sequential_preLN__sliding_block_cached__mixer_token_mlp__decode.s.ref").read().split("; Override launch")[0]

names_c = ["start", "B0", "q pub", "mw rdy", "tabdone", "-", "-", "-", "-", "-", "end"]
names_k = ["start", "Kissued", "q got", "P rdy", "preB3", "B3", "O pub", "B5", "h2 done", "B6b", "end"]
names_v = ["start", "rounds", "B3", "wo in", "rnd1", "Vissued", "PVdone", "h1 done", "B5", "h2 done", "end"]

DPP6 = ["row_shr:1 row_mask:0xf bank_mask:0xf bound_ctrl:0", "row_shr:2 row_mask:0xf bank_mask:0xf bound_ctrl:0",
        "row_shr:4 row_mask:0xf bank_mask:0xf bound_ctrl:0", "row_shr:8 row_mask:0xf bank_mask:0xf bound_ctrl:0",
        "row_bcast:15 row_mask:0xa bank_mask:0xf", "row_bcast:31 row_mask:0xc bank_mask:0xf"]

VZ, VT, VONE, VFL, VFW = 160, 161, 162, 163, 164
VX, VB2, VH2, VCOL, VH2S, VGP, VST = 144, 145, 146, 147, 148, 149, 150
P0 = 152


def gen(path, dbg=False, kvflags="nt", wflags="nt", maxpoll=1 << 18, lim=4, limv=6, dry=False, fg=4, aln2=True, ksig=13, gpos=11, wolast=True, strided=True, rotm=1, kneed=0, kearly=0, nloc=8, pretouch=True, force_fb=False, local=True, mwearly=True, slp=2, notab=False, nomw=False, g1=False):
    g = Gen()
    uid = [0]

    def TS(k, cond=None):
        if dbg:
            if cond:
                uid[0] += 1
                g(f"s_cmp_{'lt' if cond == 'V' else 'ge'}_u32 s3, 8\ns_cbranch_scc1 L_ts{uid[0]}")
            g(f"s_memrealtime s[{72+2*k}:{73+2*k}]")
            if cond:
                g(f"L_ts{uid[0]}:")

    def srd(d, lo, nbytes):
        g(f"s_mov_b32 s{d}, s{lo}\ns_and_b32 s{d+1}, s{lo+1}, 0xffff\ns_mov_b32 s{d+2}, {nbytes:#x}\ns_mov_b32 s{d+3}, 0x20000")

    def signal(off, vaddr=VFL):
        g("s_mov_b64 exec, 1")
        g(f"ds_add_u32 v{vaddr}, v{VONE} offset:{off}")
        g("s_mov_b64 exec, -1")

    def spin(off, target, sl=1, vaddr=VFL):
        uid[0] += 1
        u = uid[0]
        g("s_mov_b32 s71, 0")
        g(f"L_sp{u}:")
        g(f"ds_read_b32 v{VT}, v{vaddr} offset:{off}")
        g(f"s_add_u32 s71, s71, 1\ns_cmp_ge_u32 s71, {maxpoll*4}\ns_cbranch_scc1 L_spx{u}")
        g("s_waitcnt lgkmcnt(0)")
        g(f"v_readfirstlane_b32 s70, v{VT}")
        g(f"s_cmp_ge_u32 s70, {target}\ns_cbranch_scc1 L_spx{u}")
        g(f"s_sleep {sl}")
        g(f"s_branch L_sp{u}")
        g(f"L_spx{u}:")

    def tags():
        g("s_mul_i32 s92, s94, 0x85ebca6b\ns_add_u32 s92, s92, 0x7f4a7c15\ns_mul_i32 s93, s94, 0x9e3779b1\ns_add_u32 s93, s93, 0x1b873593")

    def ln_scalar(m, v, t, pre=True, save=None):
        if pre:
            g(f"v_pk_mul_f32 v[{m}:{v}], v[{m}:{v}], s[8:9]")
            g(f"v_fma_f32 v{v}, -v{m}, v{m}, v{v}")
            g(f"v_max_f32 v{v}, 0, v{v}")
        if save is not None:
            g(f"v_mov_b32 v{save}, v{m}\nv_mov_b32 v{save+1}, v{v}")
        g(f"v_cvt_pk_bf16_f32 v{t}, v{m}, v{v}")
        g(f"v_and_b32 v{v}, s42, v{t}")
        g(f"v_lshlrev_b32 v{m}, 16, v{t}")
        g(f"v_add_f32 v{v}, s10, v{v}")
        g(f"v_cvt_pk_bf16_f32 v{t}, v{v}, v{v}")
        g(f"v_and_b32 v{v}, s42, v{t}")
        g(f"v_sqrt_f32 v{v}, v{v}")
        g(f"v_cvt_pk_bf16_f32 v{t}, v{v}, v{v}")
        g(f"v_and_b32 v{v}, s42, v{t}")
        g(f"v_rcp_f32 v{v}, v{v}")

    g(HEADER.rstrip())
    g(f"; @launch grid=(256,1,1) block=({NW*64},1,1) lds={L_TOTAL}")
    for line in """
; Design (generated by a hand-written python emitter; one persistent launch, 256 workgroups x 12 waves):
;  wg -> (g = kv head, b, split of 256 keys). Waves 0-3 (C): LN(x), one 128x64 tile of q = LN(x)@wq, slot clearing,
;  token-MLP evaluation; waves 4-7 (K): K via LDS-DMA, scores, softmax (true running max per wave, exact LSE merge);
;  waves 8-11 (V): V, P.V, one 256x32 tile of o@wo. Four workgroups finish: h, LN, LN, MLP result, output.
;  Hand-offs through d_ws are self-validating (epoch tags / pre-cleared sentinel words); L2-local stores are used only
;  after the XCC ids of all partners were checked at run time, otherwise write-through stores are used.
;  The token MLP input is a bf16 number: y = F(h') is evaluated exactly (all 1792 gelu terms) for every bf16 value with
;  2^-19 <= |h'| < 32 while K/V stream in, then looked up; any other value (or a missing entry) is evaluated directly.
""".strip().split("\n"):
        g(line)
    g('.amdgcn_target "amdgcn-amd-amdhsa--gfx950"')
    g(".text")
    g(f".globl {KN}")
    g(".p2align 8")
    g(f".type {KN},@function")
    g(f"{KN}:")
    TS(0)
    g("""
    s_cmp_ge_u32 s2, 256
    s_cbranch_scc1 L_end
    s_load_dwordx16 s[16:31], s[0:1], 0
    s_load_dwordx8 s[32:39], s[0:1], 64
    s_load_dwordx2 s[40:41], s[0:1], 96
    v_lshrrev_b32 v4, 6, v0
    v_and_b32 v1, 63, v0
    v_readfirstlane_b32 s3, v4
    v_and_b32 v2, 15, v1
    v_lshrrev_b32 v3, 4, v1
    s_and_b32 s4, s2, 7
    s_lshr_b32 s5, s2, 3
    s_lshr_b32 s6, s5, 3
    s_and_b32 s7, s5, 7
    s_mov_b32 s42, 0xffff0000
    s_mov_b64 s[98:99], -1
    """)
    g(f"v_mov_b32 v{VFL}, {L_FL}\nv_mov_b32 v{VONE}, 1\nv_mov_b32 v{VZ}, 0")
    g(f"""
    s_and_b32 s15, s3, 3
    s_lshl_b32 s8, s6, 3
    s_add_u32 s8, s8, s4
    s_lshl_b32 s8, s8, 21
    s_lshl_b32 s9, s7, {12 if strided else 16}
    s_add_u32 s8, s8, s9
    s_add_u32 s8, s8, 0x180000
    s_add_u32 s9, s2, s5
    s_mul_i32 s9, s9, {rotm}
    s_add_u32 s9, s9, s15
    s_lshl_b32 s11, s15, 2
    v_add_u32 v{VFW}, s11, v{VFL}
    """)
    for i in range(4):
        g(f"s_add_u32 s{64+i}, s9, {4*i}\ns_and_b32 s{64+i}, s{64+i}, 15\ns_lshl_b32 s{64+i}, s{64+i}, {15 if strided else 12}\ns_add_u32 s{64+i}, s{64+i}, s8")
    g("s_waitcnt lgkmcnt(0)")
    srd(44, 40, 0x10000000)
    g(f"s_load_dword s94, s[40:41], {WS_E}")
    g("s_getreg_b32 s0, hwreg(HW_REG_XCC_ID)\ns_and_b32 s0, s0, 7")
    if fg is None:
        g("s_mov_b32 s26, s2")
    else:
        g(f"s_cmp_eq_u32 s4, {fg}\ns_cselect_b32 s26, s5, 64")
    g("""
    s_cmp_ge_u32 s3, 8
    s_cbranch_scc1 L_V
    s_cmp_ge_u32 s3, 4
    s_cbranch_scc1 L_K
    """)
    srd(60, 34, 2)
    g(f"buffer_load_ushort v{VB2}, v{VZ}, s[60:63], 0 offen")
    g("s_cmp_lg_u32 s3, 0\ns_cbranch_scc1 L_C123")
    srd(48, 16, 4096)
    srd(52, 22, 0x400000)
    g("""
    v_and_b32 v4, 3, v1
    v_lshlrev_b32 v5, 10, v4
    v_lshrrev_b32 v6, 2, v1
    v_lshl_add_u32 v6, v6, 6, v5
    """)
    for i in range(4):
        g(f"buffer_load_dwordx4 v[{16+4*i}:{19+4*i}], v6, s[48:51], 0 offen offset:{16*i}")
    g("""
    v_lshrrev_b32 v7, 2, v2
    v_lshl_add_u32 v5, v7, 6, v5
    v_lshl_add_u32 v5, v3, 3, v5
    s_lshl_b32 s8, s6, 8
    buffer_load_dwordx2 v[32:33], v5, s[48:51], s8 offen
    buffer_load_dwordx2 v[34:35], v5, s[48:51], s8 offen offset:32
    v_lshrrev_b32 v6, 3, v1
    v_lshlrev_b32 v6, 13, v6
    v_and_b32 v8, 7, v1
    v_lshlrev_b32 v9, 1, v3
    v_xor_b32 v8, v8, v9
    v_lshl_add_u32 v6, v8, 4, v6
    s_lshl_b32 s8, s6, 20
    s_lshl_b32 s9, s4, 10
    s_add_u32 s8, s8, s9
    s_lshl_b32 s9, s7, 7
    s_add_u32 s8, s8, s9
    """)
    for i in range(16):
        g(f"s_mov_b32 m0, {L_WQT + 1024*i}")
        g(f"s_add_u32 s9, s8, {0x10000*i:#x}")
        g(f"buffer_load_dwordx4 v6, s[52:55], s9 offen {wflags} lds")
    g("s_barrier")
    TS(1)
    g("s_branch L_Q2")

    g("L_K:")
    srd(48, 18, 0x4000000)
    g("v_xor_b32 v4, v2, v3\nv_lshlrev_b32 v7, 8, v3\nv_lshlrev_b32 v9, 8, v2")
    g(f"s_lshl_b32 s63, s15, 14\ns_add_u32 s63, s63, {L_KL}\nv_add_u32 v9, s63, v9")
    for u in range(4):
        g(f"v_xor_b32 v8, {4*u}, v4\nv_lshl_add_u32 v{132+u}, v8, 4, v7\nv_lshl_add_u32 v{136+u}, v8, 4, v9")
    g("""
    s_lshl_b32 s8, s4, 16
    s_lshl_b32 s9, s6, 14
    s_add_u32 s8, s8, s9
    s_lshl_b32 s9, s15, 10
    s_add_u32 s8, s8, s9
    """)
    g(f"s_add_u32 s12, s8, {WS_QS:#x}\ns_add_u32 s13, s12, 0x1000\ns_add_u32 s14, s12, 0x2000\ns_add_u32 s43, s12, 0x3000")
    g(f"s_lshl_b32 s68, s15, 9\ns_add_u32 s68, s68, {WS_T:#x}")
    g(f"v_lshlrev_b32 v5, 4, v1\nv_add_u32 v5, {QSL:#x}, v5\nv_lshlrev_b32 v6, 3, v1")
    g("s_setprio 2")
    if kearly == 0: g("s_barrier")
    KR, QF, SA, PR, TM = 16, 80, 96, 112, 120
    qso = ["s12", "s13", "s14", "s43"] if not g1 else ["s12", "s12", "s12", "s12"]

    def kload(n):
        T, t = n >> 2, n & 3
        if t == 0:
            g(f"s_add_u32 m0, s63, {4096*T}")
        g(f"buffer_load_dwordx4 v{132+t}, s[48:51], s{64+T} offen offset:{1024*t} {kvflags} lds")
    for n in range(0, 16):
        if n == gpos:
            for ks in range(4):
                g(f"buffer_load_dwordx4 v[{QF+4*ks}:{QF+4*ks+3}], v5, s[44:47], {qso[ks]} offen sc1")
        if n >= lim:
            extra = 4 if (n >= gpos and n - lim < gpos) else 0
            g(f"s_waitcnt vmcnt({lim-1+extra})")
        kload(n)
        if kearly and n == kearly - 1: g("s_barrier")
        if n == ksig:
            signal(F_K, VFW if not kneed else VFL)
    if gpos >= 16:
        for ks in range(4):
            g(f"buffer_load_dwordx4 v[{QF+4*ks}:{QF+4*ks+3}], v5, s[44:47], {qso[ks]} offen sc1")
    TS(1)
    g("s_waitcnt lgkmcnt(0)")
    tags()
    g("s_mov_b32 s71, 0")
    g(f"s_waitcnt vmcnt({max(16-gpos,0)})")
    g("s_branch L_qchk")
    g("L_qpoll:")
    g(f"s_cmp_lg_u32 s71, {nloc}\ns_cbranch_scc1 L_qnl")
    g("v_lshlrev_b32 v5, 4, v1")
    g("L_qnl:")
    for ks in range(4):
        g(f"s_mov_b64 exec, s[{52+2*ks}:{53+2*ks}]")
        g(f"s_cbranch_execz L_qs{ks}")
        g(f"buffer_load_dwordx4 v[{QF+4*ks}:{QF+4*ks+3}], v5, s[44:47], {qso[ks]} offen sc1")
        g(f"L_qs{ks}:")
    g("s_mov_b64 exec, -1")
    g("s_waitcnt vmcnt(0)")
    g("L_qchk:")
    for ks in range(4):
        r = QF + 4 * ks
        g(f"v_xor_b32 v8, v{r+2}, v{r+1}")
        g(f"v_xor_b32 v9, v{r+3}, v{r}")
        g("v_xor_b32 v8, s92, v8")
        g(f"v_subrev_u32 v{128+ks}, s93, v9")
        g(f"v_lshrrev_b32 v9, 3, v{128+ks}")
        g("v_or_b32 v8, v8, v9")
        g(f"v_cmp_ne_u32_e64 s[{52+2*ks}:{53+2*ks}], 0, v8")
    g(f"s_add_u32 s71, s71, 1\ns_cmp_ge_u32 s71, {maxpoll}\ns_cbranch_scc1 L_qdone")
    g("s_or_b64 s[8:9], s[52:53], s[54:55]\ns_or_b64 s[10:11], s[56:57], s[58:59]\ns_or_b64 s[8:9], s[8:9], s[10:11]")
    g("s_cbranch_scc1 L_qpoll")
    g("L_qdone:")
    g("v_xor_b32 v128, s0, v128\nv_xor_b32 v129, s0, v129\nv_xor_b32 v130, s0, v130\nv_xor_b32 v131, s0, v131")
    g("v_or3_b32 v128, v128, v129, v130\nv_or_b32 v128, v128, v131")
    g("v_cmp_ne_u32 vcc, 0, v128")
    g("s_cmp_eq_u64 vcc, 0\ns_cbranch_scc1 L_alllocal")
    signal(F_NL)
    g("L_alllocal:")
    g(f"v_pk_add_f32 v[{QF}:{QF+1}], v[{QF}:{QF+1}], v[{QF+4}:{QF+5}]")
    g(f"v_pk_add_f32 v[{QF+8}:{QF+9}], v[{QF+8}:{QF+9}], v[{QF+12}:{QF+13}]")
    g(f"v_pk_add_f32 v[{QF}:{QF+1}], v[{QF}:{QF+1}], v[{QF+8}:{QF+9}]")
    g(f"v_cvt_pk_bf16_f32 v8, v{QF}, v{QF+1}")
    g("v_lshlrev_b32 v9, 2, v1\ns_lshl_b32 s8, s15, 8\nv_add_u32 v9, s8, v9")
    g(f"ds_write_b32 v9, v8 offset:{L_QL}")
    signal(F_Q)
    g("""
    v_and_b32 v10, 3, v2
    v_lshlrev_b32 v7, 8, v10
    v_lshl_add_u32 v7, v3, 4, v7
    v_lshlrev_b32 v12, 5, v10
    s_lshl_b32 s11, s15, 3
    v_add_u32 v13, s11, v12
    v_lshlrev_b32 v14, 4, v1
    s_lshl_b32 s11, s15, 11
    v_add_u32 v14, s11, v14
    """)
    spin(F_Q, 4)
    TS(2)
    for t in range(4):
        g(f"ds_read_b128 v[{QF+4*t}:{QF+4*t+3}], v7 offset:{L_QL + 64*t}")
    SC = 128 ** -0.5
    g(f"s_mov_b32 s8, {f2u(SC):#x}\ns_mov_b32 s9, {f2u(SC):#x}\ns_mov_b32 s10, {f2u(LOG2E):#x}")
    g("s_waitcnt lgkmcnt(0)")
    for T in range(4):
        g(f"s_waitcnt vmcnt({12-4*T})")
        for t in range(4):
            r = KR + 16 * T + 4 * t
            g(f"ds_read_b128 v[{r}:{r+3}], v{136+t} offset:{4096*T}")
    g("s_waitcnt lgkmcnt(0)")
    for T in range(4):
        for t in range(4):
            r = KR + 16 * T + 4 * t
            c = "0" if t == 0 else f"v[{SA+4*T}:{SA+4*T+3}]"
            g(f"v_mfma_f32_16x16x32_bf16 v[{SA+4*T}:{SA+4*T+3}], v[{r}:{r+3}], v[{QF+4*t}:{QF+4*t+3}], {c}")
    for rep in range(2):
        for p in range(8):
            a = SA + 2 * p
            g(f"v_cvt_pk_bf16_f32 v{TM+p}, v{a}, v{a+1}")
        for p in range(8):
            a = SA + 2 * p
            g(f"v_lshlrev_b32 v{a}, 16, v{TM+p}")
            g(f"v_and_b32 v{a+1}, s42, v{TM+p}")
        if rep == 0:
            for p in range(8):
                a = SA + 2 * p
                g(f"v_pk_mul_f32 v[{a}:{a+1}], v[{a}:{a+1}], s[8:9]")
    g(f"v_max3_f32 v8, v{SA}, v{SA+1}, v{SA+2}")
    g(f"v_max3_f32 v9, v{SA+3}, v{SA+4}, v{SA+5}")
    g(f"v_max3_f32 v10, v{SA+6}, v{SA+7}, v{SA+8}")
    g(f"v_max3_f32 v11, v{SA+9}, v{SA+10}, v{SA+11}")
    g(f"v_max3_f32 v8, v8, v{SA+12}, v{SA+13}")
    g(f"v_max3_f32 v9, v9, v{SA+14}, v{SA+15}")
    g("v_max3_f32 v8, v8, v9, v10\nv_max_f32 v8, v8, v11")
    g("v_mov_b32 v9, v8\nv_permlane32_swap_b32 v8, v9\nv_max_f32 v8, v8, v9")
    g("v_mov_b32 v9, v8\nv_permlane16_swap_b32 v8, v9\nv_max_f32 v8, v8, v9")
    g("v_mul_f32 v10, s10, v8")
    for e in range(16):
        g(f"v_fma_f32 v{SA+e}, v{SA+e}, s10, -v10")
    for e in range(16):
        g(f"v_exp_f32 v{SA+e}, v{SA+e}")
    for p in range(8):
        g(f"v_cvt_pk_bf16_f32 v{PR+p}, v{SA+2*p}, v{SA+2*p+1}")
    g(f"ds_write_b128 v14, v[{PR}:{PR+3}] offset:{L_PL}")
    g(f"ds_write_b128 v14, v[{PR+4}:{PR+7}] offset:{L_PL+1024}")
    signal(F_P, VFW)
    for p in range(4):
        g(f"v_pk_add_f32 v[{SA+2*p}:{SA+2*p+1}], v[{SA+2*p}:{SA+2*p+1}], v[{SA+8+2*p}:{SA+9+2*p}]")
    for p in range(2):
        g(f"v_pk_add_f32 v[{SA+2*p}:{SA+2*p+1}], v[{SA+2*p}:{SA+2*p+1}], v[{SA+4+2*p}:{SA+5+2*p}]")
    g(f"v_pk_add_f32 v[{SA}:{SA+1}], v[{SA}:{SA+1}], v[{SA+2}:{SA+3}]")
    g(f"v_add_f32 v9, v{SA}, v{SA+1}")
    g("v_mov_b32 v11, v9\nv_permlane32_swap_b32 v9, v11\nv_add_f32 v9, v9, v11")
    g("v_mov_b32 v11, v9\nv_permlane16_swap_b32 v9, v11\nv_add_f32 v9, v9, v11")
    g("s_mov_b64 exec, 15")
    g(f"ds_write_b64 v13, v[8:9] offset:{L_ST}")
    g("s_mov_b64 exec, -1")
    signal(F_ST)
    TS(3)
    spin(F_ST, 4)
    FA = P0
    g("s_lshl_b32 s11, s15, 5\nv_mov_b32 v12, s11")
    g(f"ds_read_b128 v[16:19], v12 offset:{L_ST}")
    g(f"ds_read_b128 v[20:23], v12 offset:{L_ST+16}")
    g(f"ds_read_b32 v27, v{VFL} offset:{F_NL}")
    g("s_waitcnt lgkmcnt(0)")
    g("v_readfirstlane_b32 s1, v27")
    g("v_max3_f32 v24, v16, v18, v20\nv_max_f32 v24, v24, v22")
    for i in range(4):
        g(f"v_sub_f32 v{FA+i}, v{16+2*i}, v24")
        g(f"v_mul_f32 v{FA+i}, s10, v{FA+i}")
        g(f"v_exp_f32 v{FA+i}, v{FA+i}")
    g(f"v_mul_f32 v25, v{FA}, v17")
    for i in range(1, 4):
        g(f"v_fmac_f32 v25, v{FA+i}, v{17+2*i}")
    g("v_rcp_f32 v26, v25\nv_log_f32 v25, v25")
    for i in range(4):
        g(f"v_mul_f32 v{FA+i}, v{FA+i}, v26")
    VOPR, VL4, VLSE = P0 + 4, P0 + 5, P0 + 6
    g(f"v_fma_f32 v25, v24, s10, v25\nv_min_u32 v{VLSE}, -2, v25")
    g(f"v_lshlrev_b32 v{VOPR}, 3, v1\ns_mul_i32 s11, s15, {OPH}\nv_add_u32 v{VOPR}, s11, v{VOPR}")
    g(f"v_lshlrev_b32 v{VL4}, 2, v2\nv_lshl_add_u32 v{VL4}, v3, 11, v{VL4}")
    g("s_cmp_ge_u32 s26, 4\ns_cbranch_scc1 L_tdone")
    g("s_mov_b32 s71, 0")
    g("L_tpoll:")
    g("buffer_load_dwordx2 v[128:129], v6, s[44:47], s68 offen sc1")
    g("s_waitcnt vmcnt(0)")
    g("v_xor_b32 v16, s92, v128\nv_xor_b32 v17, s93, v129\nv_or_b32 v16, v16, v17")
    g("v_cmp_ne_u32 vcc, 0, v16")
    g(f"s_add_u32 s71, s71, 1\ns_cmp_ge_u32 s71, {maxpoll}\ns_cbranch_scc1 L_tdone")
    g("s_cmp_lg_u64 vcc, 0\ns_cbranch_scc1 L_tpoll")
    g("L_tdone:")
    g(f"s_lshl_b32 s11, s4, 15\ns_lshr_b32 s13, s7, 2\ns_lshl_b32 s13, s13, 10\ns_add_u32 s11, s11, s13\ns_lshl_b32 s13, s6, 8\ns_add_u32 s11, s11, s13\ns_and_b32 s13, s7, 3\ns_lshl_b32 s13, s13, 6\ns_add_u32 s11, s11, s13\ns_add_u32 s11, s11, {WS_O:#x}")
    g("s_lshl_b32 s13, s15, 13\ns_add_u32 s68, s11, s13")
    g(f"s_lshl_b32 s62, s4, 9\ns_lshl_b32 s13, s6, 5\ns_add_u32 s62, s62, s13\ns_and_b32 s13, s7, 3\ns_lshl_b32 s13, s13, 3\ns_add_u32 s62, s62, s13\ns_lshr_b32 s13, s7, 2\ns_lshl_b32 s13, s13, 2\ns_add_u32 s62, s62, s13\ns_add_u32 s62, s62, {WS_LSE:#x}")
    g("s_lshl_b32 s13, s15, 7\ns_add_u32 s62, s62, s13")
    g("s_call_b64 s[100:101], L_fsetup")
    g("s_mov_b64 exec, 1")
    if local:
        g("s_cmp_lg_u32 s1, 0\ns_cbranch_scc1 L_lstg")
        g(f"buffer_store_dword v{VLSE}, v{VZ}, s[44:47], s62 offen")
        g("s_branch L_lsd")
        g("L_lstg:")
    g(f"buffer_store_dword v{VLSE}, v{VZ}, s[44:47], s62 offen sc1")
    g("L_lsd:")
    g("s_mov_b64 exec, -1")
    g("s_waitcnt lgkmcnt(0)")
    TS(4)
    g("s_barrier")
    TS(5)
    for w in range(4):
        g(f"ds_read_b64 v[{16+2*w}:{17+2*w}], v{VOPR} offset:{L_OP + OPW*w}")
    g("s_waitcnt lgkmcnt(0)")
    g(f"v_pk_mul_f32 v[16:17], v[16:17], v[{FA}:{FA+1}] op_sel:[0,0] op_sel_hi:[1,0]")
    g(f"v_pk_mul_f32 v[20:21], v[20:21], v[{FA+2}:{FA+3}] op_sel:[0,0] op_sel_hi:[1,0]")
    g(f"v_pk_fma_f32 v[16:17], v[18:19], v[{FA}:{FA+1}], v[16:17] op_sel:[0,1,0] op_sel_hi:[1,1,1]")
    g(f"v_pk_fma_f32 v[20:21], v[22:23], v[{FA+2}:{FA+3}], v[20:21] op_sel:[0,1,0] op_sel_hi:[1,1,1]")
    g("v_pk_add_f32 v[16:17], v[16:17], v[20:21]")
    g("v_cvt_pk_bf16_f32 v16, v16, v17\nv_min_u32 v16, -2, v16")
    if local:
        g("s_cmp_lg_u32 s1, 0\ns_cbranch_scc1 L_ostg")
        g(f"buffer_store_dword v16, v{VL4}, s[44:47], s68 offen")
        TS(6)
        g("s_branch L_B5")
        g("L_ostg:")
    g(f"buffer_store_dword v16, v{VL4}, s[44:47], s68 offen sc1")
    TS(6)
    g("s_branch L_B5")

    g("L_fsetup:")
    g(f"""
    s_sub_u32 s63, s3, 4
    s_lshr_b32 s13, s5, 4
    s_lshl_b32 s14, s4, 1
    s_add_u32 s13, s13, s14
    s_lshl_b32 s13, s13, 11
    s_and_b32 s14, s5, 15
    s_lshl_b32 s14, s14, 7
    s_add_u32 s13, s13, s14
    v_lshlrev_b32 v{VH2S}, 15, v3
    v_lshl_add_u32 v{VH2S}, v2, 3, v{VH2S}
    v_lshlrev_b32 v{VGP}, 3, v1
    """)
    g(f"s_add_u32 s69, s13, {WS_H2:#x}")
    srd(56, 16, 4096)
    g(f"""
    v_and_b32 v8, 1, v3
    v_lshlrev_b32 v8, 1, v8
    v_lshrrev_b32 v9, 1, v3
    v_or_b32 v8, v8, v9
    v_lshl_add_u32 v8, v2, 2, v8
    s_lshl_b32 s8, s63, 6
    v_add_u32 v8, s8, v8
    v_lshlrev_b32 v{VCOL}, 1, v8
    s_and_b32 s8, s26, 3
    s_lshl_b32 s43, s8, 10
    v_lshlrev_b32 v{VH2}, 11, v3
    v_lshl_add_u32 v{VH2}, v2, 4, v{VH2}
    s_lshl_b32 s11, s63, 3
    v_lshrrev_b32 v{VST}, 5, v1
    v_lshlrev_b32 v{VST}, 2, v{VST}
    v_add_u32 v{VST}, s11, v{VST}
    s_cmp_ge_u32 s26, 4
    s_cbranch_scc1 L_fs1
    buffer_load_ushort v{VX}, v{VCOL}, s[56:59], s43 offen
    L_fs1:
    s_setpc_b64 s[100:101]
    """)

    g("L_Q2:")
    g("s_setprio 1")
    g("s_waitcnt vmcnt(18)")
    g("s_mov_b32 s8, 0x3f803f80\nv_mov_b32 v10, 0\nv_mov_b32 v11, 0\nv_mov_b32 v12, 0\nv_mov_b32 v13, 0")
    for i in range(0, 16, 2):
        g(f"v_dot2_f32_bf16 v10, v{16+i}, s8, v10")
        g(f"v_dot2_f32_bf16 v11, v{16+i}, v{16+i}, v11")
        g(f"v_dot2_f32_bf16 v12, v{17+i}, s8, v12")
        g(f"v_dot2_f32_bf16 v13, v{17+i}, v{17+i}, v13")
    g("s_nop 2")
    g("v_pk_add_f32 v[10:11], v[10:11], v[12:13]")
    for m in ("row_ror:4", "row_ror:8"):
        g(f"v_add_f32_dpp v10, v10, v10 {m} row_mask:0xf bank_mask:0xf")
        g(f"v_add_f32_dpp v11, v11, v11 {m} row_mask:0xf bank_mask:0xf")
    for sw in ("v_permlane32_swap_b32", "v_permlane16_swap_b32"):
        g("v_mov_b32 v12, v10\nv_mov_b32 v13, v11")
        g(f"{sw} v10, v12\n{sw} v11, v13")
        g("v_pk_add_f32 v[10:11], v[10:11], v[12:13]")
    g(f"s_mov_b32 s8, {f2u(1.0/512):#x}\ns_mov_b32 s9, {f2u(1.0/512):#x}\ns_mov_b32 s10, {f2u(1e-5):#x}")
    ln_scalar(10, 11, 12)
    g("s_waitcnt vmcnt(16)")
    for d in range(4):
        a = 16 + 2 * d
        g(f"v_lshlrev_b32 v{a}, 16, v{32+d}\nv_and_b32 v{a+1}, s42, v{32+d}")
    for d in range(4):
        a = 16 + 2 * d
        g(f"v_pk_add_f32 v[{a}:{a+1}], v[{a}:{a+1}], v[10:11] op_sel:[0,0] op_sel_hi:[1,0] neg_lo:[0,1] neg_hi:[0,1]")
    for d in range(4):
        a = 16 + 2 * d
        g(f"v_cvt_pk_bf16_f32 v{32+d}, v{a}, v{a+1}")
    for d in range(4):
        a = 16 + 2 * d
        g(f"v_lshlrev_b32 v{a}, 16, v{32+d}\nv_and_b32 v{a+1}, s42, v{32+d}")
    for d in range(4):
        a = 16 + 2 * d
        g(f"v_pk_mul_f32 v[{a}:{a+1}], v[{a}:{a+1}], v[10:11] op_sel:[0,1] op_sel_hi:[1,1]")
    for d in range(4):
        a = 16 + 2 * d
        g(f"v_cvt_pk_bf16_f32 v{32+d}, v{a}, v{a+1}")
    g("""
    v_lshlrev_b32 v8, 8, v4
    v_lshl_add_u32 v8, v3, 4, v8
    v_lshl_add_u32 v9, v7, 6, v8
    """)
    g(f"ds_write_b128 v9, v[32:35] offset:{L_XN}")
    for kb in range(4):
        g(f"ds_read_b128 v[{36+4*kb}:{39+4*kb}], v8 offset:{L_XN + 64*kb}")
    g("""
    v_lshrrev_b32 v9, 2, v2
    v_lshl_add_u32 v9, v3, 2, v9
    v_bfe_u32 v14, v9, 1, 2
    v_lshlrev_b32 v9, 7, v9
    v_lshl_add_u32 v9, v4, 3, v9
    """)
    for mt in range(4):
        g(f"v_xor_b32 v15, {mt}, v14")
        g(f"v_lshl_add_u32 v{10+mt}, v15, 5, v9")
    g("s_waitcnt lgkmcnt(0)")
    tags()
    AF = 52
    for kb in range(4):
        g(f"s_waitcnt vmcnt({12-4*kb})")
        for mt in range(4):
            r = AF + 16 * kb + 4 * mt
            g(f"ds_read_b64_tr_b16 v[{r}:{r+1}], v{10+mt} offset:{L_WQT + 4096*kb}")
            g(f"ds_read_b64_tr_b16 v[{r+2}:{r+3}], v{10+mt} offset:{L_WQT + 4096*kb + 2048}")
    for z in (1, 2, 3):
        g(f"v_cmp_eq_u32_e64 s[{50+2*z}:{51+2*z}], {z}, v7")
    g("""
    v_lshlrev_b32 v8, 14, v4
    v_lshl_add_u32 v8, v7, 7, v8
    v_lshl_add_u32 v8, v3, 5, v8
    s_lshl_b32 s8, s4, 16
    s_lshl_b32 s9, s6, 12
    s_add_u32 s8, s8, s9
    s_lshl_b32 s9, s7, 9
    s_add_u32 s8, s8, s9
    """)
    g(f"s_add_u32 s8, s8, {WS_QS:#x}")
    g("s_add_u32 s93, s93, s0")
    g("s_waitcnt lgkmcnt(0)")
    QD = 116
    for kb in range(4):
        for mt in range(4):
            r = AF + 16 * kb + 4 * mt
            c = "0" if kb == 0 else f"v[{QD+4*mt}:{QD+4*mt+3}]"
            g(f"v_mfma_f32_16x16x32_bf16 v[{QD+4*mt}:{QD+4*mt+3}], v[{r}:{r+3}], v[{36+4*kb}:{39+4*kb}], {c}")
    for z in (1, 2, 3):
        for i in range(4):
            g(f"v_cndmask_b32_e64 v{QD+i}, v{QD+i}, v{QD+4*z+i}, s[{50+2*z}:{51+2*z}]")
    spin(F_CL, 1)
    g(f"""
    v_mov_b32 v136, v{QD}
    v_mov_b32 v137, v{QD+1}
    v_xor_b32 v138, s92, v{QD+1}
    v_xor_b32 v139, s93, v{QD}
    v_mov_b32 v140, v{QD+2}
    v_mov_b32 v141, v{QD+3}
    v_xor_b32 v142, s92, v{QD+3}
    v_xor_b32 v143, s93, v{QD+2}
    s_add_u32 s9, s8, {QSL:#x}
    s_setprio 3
    buffer_store_dwordx4 v[136:139], v8, s[44:47], s9 offen
    buffer_store_dwordx4 v[140:143], v8, s[44:47], s9 offen offset:16
    buffer_store_dwordx4 v[136:139], v8, s[44:47], s8 offen sc1
    buffer_store_dwordx4 v[140:143], v8, s[44:47], s8 offen offset:16 sc1
    s_setprio 0
    """)
    TS(2)
    g("s_branch L_C")

    g("L_C123:")
    g("s_cmp_lg_u32 s3, 1\ns_cbranch_scc1 L_C23")
    g("v_lshlrev_b32 v4, 2, v2")
    g(f"ds_write_b32 v4, v{VZ} offset:{L_FL}")
    srd(48, 28, 3584)
    srd(52, 30, 3584)
    srd(56, 32, 3584)
    g("v_lshlrev_b32 v6, 4, v1")
    g("s_waitcnt lgkmcnt(0)")
    if not mwearly: g("s_setprio 3\ns_barrier")
    for a in range(3):
        g(f"s_mov_b32 m0, {L_MW + 4096*a}")
        for i in range(4):
            if not nomw: g(f"buffer_load_dwordx4 v6, s[{48+4*a}:{51+4*a}], 0 offen offset:{1024*i} lds")
    if mwearly: g("s_barrier")
    g("s_setprio 0")
    g("s_waitcnt vmcnt(0)")
    signal(F_MW)
    g("s_branch L_C")
    g("L_C23:")
    g("s_cmp_eq_u32 s3, 2\ns_cbranch_scc1 L_C2")
    g("s_barrier")
    g("s_waitcnt vmcnt(0)")
    g("s_branch L_C")
    g("L_C2:")
    g("""
    s_lshl_b32 s11, s4, 5
    s_add_u32 s11, s11, s5
    v_mov_b32 v8, -1
    v_mov_b32 v9, -1
    v_mov_b32 v10, -1
    v_mov_b32 v11, -1
    v_lshlrev_b32 v4, 4, v1
    """)
    g(f"s_lshl_b32 s11, s4, 15\ns_lshr_b32 s13, s7, 2\ns_lshl_b32 s13, s13, 10\ns_add_u32 s11, s11, s13\ns_lshl_b32 s13, s6, 8\ns_add_u32 s11, s11, s13\ns_and_b32 s13, s7, 3\ns_lshl_b32 s13, s13, 6\ns_add_u32 s11, s11, s13\ns_add_u32 s11, s11, {WS_O:#x}")
    g(f"s_lshl_b32 s62, s4, 9\ns_lshl_b32 s13, s6, 5\ns_add_u32 s62, s62, s13\ns_and_b32 s13, s7, 3\ns_lshl_b32 s13, s13, 3\ns_add_u32 s62, s62, s13\ns_lshr_b32 s13, s7, 2\ns_lshl_b32 s13, s13, 2\ns_add_u32 s62, s62, s13\ns_add_u32 s62, s62, {WS_LSE:#x}")
    g("s_mov_b32 s12, s11")
    g("v_lshrrev_b32 v12, 2, v1\nv_lshlrev_b32 v12, 11, v12\nv_and_b32 v13, 3, v1\nv_lshl_add_u32 v12, v13, 4, v12\nv_lshlrev_b32 v13, 7, v1")
    g("buffer_store_dwordx4 v[8:11], v12, s[44:47], s12 offen sc1")
    g("""
    v_lshlrev_b32 v5, 15, v3
    v_lshl_add_u32 v5, v2, 3, v5
    s_lshr_b32 s13, s5, 4
    s_lshl_b32 s14, s4, 1
    s_add_u32 s13, s13, s14
    s_lshl_b32 s13, s13, 11
    s_and_b32 s14, s5, 15
    s_lshl_b32 s14, s14, 7
    s_add_u32 s13, s13, s14
    """)
    g(f"s_add_u32 s13, s13, {WS_H2:#x}")
    g("buffer_store_dwordx2 v[8:9], v5, s[44:47], s13 offen sc1")
    g("s_mov_b64 exec, 15")
    g("buffer_store_dword v8, v13, s[44:47], s62 offen sc1")
    g(f"s_mul_i32 s14, s2, 48\ns_add_u32 s14, s14, {WS_TAB:#x}")
    g("s_mov_b64 exec, 7")
    g("buffer_store_dwordx4 v[8:11], v4, s[44:47], s14 offen sc1")
    g("s_mov_b64 exec, -1")
    g("s_barrier")
    g("s_waitcnt vmcnt(0) lgkmcnt(0)")
    tags()
    signal(F_CL)
    if pretouch:
        g("s_setprio 3")
        g("buffer_load_dwordx4 v[152:155], v12, s[44:47], s12 offen sc1")
    g("v_mov_b32 v8, s92\nv_mov_b32 v9, s93")
    g(f"s_lshl_b32 s9, s2, 3\ns_add_u32 s9, s9, {WS_T:#x}")
    g("s_mov_b64 exec, 1")
    g(f"buffer_store_dwordx2 v[8:9], v{VZ}, s[44:47], s9 offen sc1")
    g("s_mov_b64 exec, -1")
    g("s_setprio 0")
    signal(F_MW)

    MWB, EH, EA, ES = 16, 100, 102, 108
    g("L_C:")
    spin(F_MW, 2)
    TS(3)
    if dbg: g("s_memtime s[82:83]")
    g(f"v_lshlrev_b32 v4, 2, v1")
    for a in range(3):
        for k in range(14):
            g(f"ds_read_b32 v{MWB+28*a+2*k+1}, v4 offset:{L_MW + 4096*a + 256*k}")
    g(f"s_mov_b32 s8, {f2u(ALPHA):#x}\ns_mov_b32 s9, {f2u(ALPHA):#x}\ns_mov_b32 s10, {f2u(1.0/ALPHA):#x}\ns_mov_b32 s11, {f2u(1.0/ALPHA):#x}")
    g("s_waitcnt lgkmcnt(0)")
    for a in range(3):
        for k in range(14):
            r = MWB + 28 * a + 2 * k
            g(f"v_lshlrev_b32 v{r}, 16, v{r+1}")
            g(f"v_and_b32 v{r+1}, s42, v{r+1}")
    for a in range(3):
        for k in range(14):
            r = MWB + 28 * a + 2 * k
            g(f"v_pk_mul_f32 v[{r}:{r+1}], v[{r}:{r+1}], s[{8 if a < 2 else 10}:{9 if a < 2 else 11}]")
    g(f"s_mov_b32 s62, {f2u(BETA):#x}\ns_mov_b32 s63, {f2u(BETA):#x}")
    g("s_mul_i32 s95, s2, 24\ns_mul_i32 s96, s3, 6\ns_add_u32 s95, s95, s96\ns_add_u32 s96, s95, 6")
    g(f"v_lshlrev_b32 v{VB2}, 16, v{VB2}")
    g("L_tab1:")
    g(f"s_cmp_ge_u32 s95, {NBIN*128}\ns_cselect_b32 s97, {0x8000 - NBIN*128}, 0")
    g(f"s_add_u32 s97, s97, s95\ns_add_u32 s97, s97, {EXP0 << 7}\ns_lshl_b32 s97, s97, 16\nv_mov_b32 v{EH}, s97")
    if not notab: g("s_call_b64 s[100:101], L_eval")
    g(f"v_alignbit_b32 v136, v137, v136, 16\nv_alignbit_b32 v137, v138, v137, 16\nv_alignbit_b32 v138, v{EA}, v138, 16")
    g("s_add_u32 s95, s95, 1\ns_cmp_lt_u32 s95, s96\ns_cbranch_scc1 L_tab1")
    g(f"s_lshl_b32 s97, s96, 1\ns_add_u32 s97, s97, {WS_TAB - 12:#x}")
    g("s_mov_b32 exec_lo, 0\ns_mov_b32 exec_hi, 0x80000000")
    g("s_setprio 3")
    g(f"buffer_store_dwordx3 v[136:138], v{VZ}, s[44:47], s97 offen sc1")
    g("s_mov_b64 exec, -1")
    TS(4)
    if dbg: g("s_memtime s[84:85]")
    g("s_cmp_ge_u32 s26, 4\ns_cbranch_scc1 L_fin")
    if dry:
        g("s_cmp_lg_u32 s3, 0\ns_cbranch_scc1 L_dry_ret")
        g("s_mov_b64 s[98:99], 0\ns_mov_b64 exec, 0\ns_branch L_fseg")
    g("L_dry_ret:")
    g("s_mov_b64 s[98:99], -1\ns_mov_b64 exec, -1")
    srd(48, 36, 4096)
    g(f"v_lshlrev_b32 v4, 4, v1\ns_mul_i32 s12, s3, 3072\ns_add_u32 m0, s12, {L_TAB}\ns_add_u32 s12, s12, {WS_TAB:#x}")
    g("s_barrier\ns_barrier")
    g(f"s_mov_b32 s71, 0\ns_mul_i32 s13, s3, 3072\nv_add_u32 v5, s13, v4")
    g("L_tfetch:")
    for i in range(3):
        g(f"buffer_load_dwordx4 v4, s[44:47], s12 offen offset:{1024*i} sc1 lds")
    g("s_waitcnt vmcnt(0)")
    for i in range(3):
        g(f"ds_read_b128 v[{108+4*i}:{111+4*i}], v5 offset:{L_TAB + 1024*i}")
    g("s_waitcnt lgkmcnt(0)")
    g("v_max3_u32 v108, v108, v109, v110\nv_max3_u32 v111, v111, v112, v113\nv_max3_u32 v114, v114, v115, v116\nv_max3_u32 v117, v117, v118, v119")
    g("v_max3_u32 v108, v108, v111, v114\nv_max_u32 v108, v108, v117")
    g("v_cmp_eq_u32 vcc, -1, v108")
    g("s_add_u32 s71, s71, 1\ns_cmp_ge_u32 s71, 4\ns_cbranch_scc1 L_tfd")
    g("s_cmp_lg_u64 vcc, 0\ns_cbranch_scc1 L_tfetch")
    g("L_tfd:")
    g("s_barrier\ns_barrier" if aln2 else "s_barrier\ns_barrier\ns_barrier")
    g(f"ds_read_b32 v4, v{VFL} offset:{F_MISS}")
    g("s_waitcnt lgkmcnt(0)")
    g("v_readfirstlane_b32 s96, v4")
    g("s_mov_b32 s95, s3")
    g("s_lshl_b32 s43, s26, 10")
    g("L_fb:")
    g("s_cmp_ge_u32 s95, s96\ns_cbranch_scc1 L_fin")
    g("s_lshl_b32 s8, s95, 3\nv_mov_b32 v4, s8")
    g(f"ds_read_b64 v[6:7], v4 offset:{L_MISS}")
    g("s_waitcnt lgkmcnt(0)")
    g(f"v_and_b32 v{EH}, s42, v6\nv_and_b32 v6, 0xffff, v6")
    g("s_call_b64 s[100:101], L_eval")
    g(f"v_and_b32 v8, s42, v{EA}\nv_add_f32 v8, v8, v7\nv_cvt_pk_bf16_f32 v8, v8, v8")
    g("s_mov_b32 exec_lo, 0\ns_mov_b32 exec_hi, 0x80000000")
    g("buffer_store_short v8, v6, s[48:51], s43 offen")
    g("s_mov_b64 exec, -1")
    g("s_add_u32 s95, s95, 4\ns_branch L_fb")

    g("L_eval:")
    NB = 7
    for b0 in range(0, 14, NB):
        ks = list(range(b0, b0 + NB))
        S_ = lambda i: ES + 4 * i
        Z = lambda i: ES + 2 + 4 * i
        for i, k in enumerate(ks):
            w_ = MWB + 2 * k
            bb = MWB + 28 + 2 * k
            g(f"v_pk_fma_f32 v[{S_(i)}:{S_(i)+1}], v[{w_}:{w_+1}], v[{EH}:{EH+1}], v[{bb}:{bb+1}] op_sel:[0,0,0] op_sel_hi:[1,0,1]")
        for i, k in enumerate(ks):
            g(f"v_pk_fma_f32 v[{Z(i)}:{Z(i)+1}], v[{S_(i)}:{S_(i)+1}], v[{S_(i)}:{S_(i)+1}], s[62:63]")
        for i, k in enumerate(ks):
            g(f"v_pk_mul_f32 v[{Z(i)}:{Z(i)+1}], v[{Z(i)}:{Z(i)+1}], v[{S_(i)}:{S_(i)+1}]")
        for i, k in enumerate(ks):
            g(f"v_exp_f32 v{Z(i)}, v{Z(i)}\nv_exp_f32 v{Z(i)+1}, v{Z(i)+1}")
            vv = MWB + 56 + 2 * k
            g(f"v_pk_mul_f32 v[{S_(i)}:{S_(i)+1}], v[{S_(i)}:{S_(i)+1}], v[{vv}:{vv+1}]")
        for i, k in enumerate(ks):
            g(f"v_pk_add_f32 v[{Z(i)}:{Z(i)+1}], v[{Z(i)}:{Z(i)+1}], 1.0 op_sel_hi:[1,0]")
        for i, k in enumerate(ks):
            g(f"v_rcp_f32 v{Z(i)}, v{Z(i)}\nv_rcp_f32 v{Z(i)+1}, v{Z(i)+1}")
        for i, k in enumerate(ks):
            acc = EA + 2 * (i & 1)
            if b0 == 0 and i < 2:
                g(f"v_pk_mul_f32 v[{acc}:{acc+1}], v[{S_(i)}:{S_(i)+1}], v[{Z(i)}:{Z(i)+1}]")
            else:
                g(f"v_pk_fma_f32 v[{acc}:{acc+1}], v[{S_(i)}:{S_(i)+1}], v[{Z(i)}:{Z(i)+1}], v[{acc}:{acc+1}]")
    g(f"v_pk_add_f32 v[{EA}:{EA+1}], v[{EA}:{EA+1}], v[{EA+2}:{EA+3}]\nv_add_f32 v{EA}, v{EA}, v{EA+1}")
    for m in DPP6:
        g(f"v_add_f32_dpp v{EA}, v{EA}, v{EA} {m}")
    g(f"""
    v_cvt_pk_bf16_f32 v{EA}, v{EA}, v{EA}
    v_and_b32 v{EA}, s42, v{EA}
    v_add_f32 v{EA}, v{EA}, v{VB2}
    v_cvt_pk_bf16_f32 v{EA}, v{EA}, v{EA}
    s_setpc_b64 s[100:101]
    """)

    g("L_V:")
    g("s_setprio 2")
    g("s_barrier")
    g("s_call_b64 s[100:101], L_fsetup")
    srd(48, 20, 0x4000000)
    srd(52, 24, 0x400000)
    VPAY, VW0, VW1, VWT, VGW = P0, P0 + 1, P0 + 2, P0 + 3, P0 + 4
    g("""
    v_lshlrev_b32 v5, 4, v2
    v_lshl_add_u32 v5, v3, 10, v5
    v_lshlrev_b32 v14, 4, v1
    s_lshl_b32 s11, s15, 11
    v_add_u32 v14, s11, v14
    """)
    g(f"v_mul_u32_u24 v15, {OPH}, v2")
    g("v_lshl_add_u32 v15, v3, 4, v15")
    g(f"s_mul_i32 s11, s15, {OPW}\nv_add_u32 v15, s11, v15")
    g("""
    v_and_b32 v7, 1, v3
    v_lshlrev_b32 v8, 6, v7
    v_bfe_u32 v9, v1, 2, 2
    v_lshl_add_u32 v8, v9, 3, v8
    v_lshrrev_b32 v9, 5, v1
    v_add_u32 v8, v8, v9
    v_lshlrev_b32 v8, 10, v8
    v_and_b32 v9, 3, v1
    v_lshlrev_b32 v7, 1, v7
    v_xor_b32 v9, v9, v7
    v_lshl_add_u32 v8, v9, 4, v8
    s_lshl_b32 s8, s4, 19
    s_lshr_b32 s9, s5, 4
    s_lshl_b32 s9, s9, 18
    s_add_u32 s8, s8, s9
    s_and_b32 s9, s5, 15
    s_lshl_b32 s9, s9, 6
    s_add_u32 s8, s8, s9
    s_lshr_b32 s9, s15, 1
    s_lshl_b32 s9, s9, 17
    s_add_u32 s8, s8, s9
    s_and_b32 s9, s15, 1
    s_lshl_b32 s9, s9, 12
    s_add_u32 s8, s8, s9
    s_lshl_b32 s14, s15, 12
    """)
    g(f"s_add_u32 s14, s14, {L_WOT}")
    g("""
    s_lshr_b32 s9, s5, 4
    s_lshl_b32 s9, s9, 1
    s_lshr_b32 s10, s15, 1
    s_add_u32 s9, s9, s10
    """)
    g(f"s_lshl_b32 s10, s4, 15\ns_add_u32 s10, s10, {WS_O:#x}")
    g("s_lshl_b32 s11, s9, 13\ns_add_u32 s10, s10, s11\ns_and_b32 s11, s15, 1\ns_lshl_b32 s11, s11, 12\ns_add_u32 s60, s10, s11")
    g(f"s_lshl_b32 s10, s4, 9\ns_lshl_b32 s11, s9, 7\ns_add_u32 s58, s10, s11\ns_add_u32 s58, s58, {WS_LSE:#x}")
    g(f"""
    v_lshrrev_b32 v6, 2, v2
    v_and_b32 v7, 3, v2
    v_lshlrev_b32 v{VWT}, 3, v2
    v_lshlrev_b32 v{VPAY}, 6, v2
    v_lshl_add_u32 v{VPAY}, v3, 4, v{VPAY}
    v_lshrrev_b32 v7, 2, v2
    v_lshl_add_u32 v7, v3, 2, v7
    v_lshlrev_b32 v7, 6, v7
    v_and_b32 v9, 3, v2
    v_lshl_add_u32 v7, v9, 3, v7
    v_and_b32 v9, 1, v3
    v_lshl_add_u32 v{VW0}, v9, 5, v7
    v_xor_b32 v9, 1, v9
    v_lshl_add_u32 v{VW1}, v9, 5, v7
    v_add_u32 v{VW0}, s14, v{VW0}
    v_add_u32 v{VW1}, s14, v{VW1}
    v_lshlrev_b32 v{VGW}, 7, v6
    v_lshl_add_u32 v{VGW}, v3, 4, v{VGW}
    s_lshl_b32 s10, s15, 9
    v_add_u32 v{VGW}, s10, v{VGW}
    s_mov_b32 s96, 0x11111111
    s_mov_b32 s97, 0x11111111
    s_mov_b32 s12, 0x05040100
    s_mov_b32 s13, 0x07060302
    s_mov_b32 s56, 0x000f000f
    s_mov_b32 s57, 0x000f000f
    """)
    if kneed:
        spin(F_K, kneed, sl=1)
    else:
        spin(F_K, 1, vaddr=VFW, sl=slp)
    TS(4)
    VR, AO, AT, PA = 16, 80, 112, 6
    n = 0
    for T in range(4):
        for i in range(4):
            r = VR + 16 * T + 4 * i
            if n >= limv:
                g(f"s_waitcnt vmcnt({limv-1})")
            g(f"buffer_load_dwordx4 v[{r}:{r+3}], v5, s[48:51], s{64+T} offen offset:{256*i} {kvflags}")
            n += 1
    if wolast:
        signal(F_VI)
        spin(F_VI, 4)
    for i in range(4):
        dI = 32 * (i & 1) + 2 * (i >> 1)
        g(f"s_add_u32 s9, s8, {dI*1024:#x}")
        g(f"s_add_u32 m0, s14, {1024*i}")
        g(f"buffer_load_dwordx4 v8, s[52:55], s9 offen {wflags} lds")
    TS(5)
    spin(F_P, 1, vaddr=VFW)
    g(f"ds_read_b128 v[{PA}:{PA+3}], v14 offset:{L_PL}")
    g(f"ds_read_b128 v[{PA+4}:{PA+7}], v14 offset:{L_PL+1024}")
    g("s_waitcnt lgkmcnt(0)")
    tb = lambda j: AT + 4 * j
    for u_ in range(2):
        for q in range(4):
            T = 2 * u_ + (q >> 1)
            i0 = 2 * (q & 1)
            done = 4 * T + i0 + 2
            g(f"s_waitcnt vmcnt({20-done})")
            a = VR + 16 * T + 4 * i0
            b_ = a + 4
            for dw in range(4):
                g(f"v_perm_b32 v{tb(2*dw)+q}, v{b_+dw}, v{a+dw}, s12")
                g(f"v_perm_b32 v{tb(2*dw+1)+q}, v{b_+dw}, v{a+dw}, s13")
        for j in range(8):
            c = "0" if u_ == 0 else f"v[{AO+4*j}:{AO+4*j+3}]"
            g(f"v_mfma_f32_16x16x32_bf16 v[{AO+4*j}:{AO+4*j+3}], v[{tb(j)}:{tb(j)+3}], v[{PA+4*u_}:{PA+4*u_+3}], {c}")
    g("s_mov_b64 exec, s[56:57]")
    for j in range(8):
        g(f"ds_write_b128 v15, v[{AO+4*j}:{AO+4*j+3}] offset:{L_OP + 64*j}")
    g("s_mov_b64 exec, -1")
    TS(6)
    g("s_waitcnt lgkmcnt(0)")
    g("s_barrier")
    PAY, WF, DD = 16, 32, 48

    def h1loads(hf):
        for kb in range(2):
            r = PAY + 8 * hf + 4 * kb
            g(f"buffer_load_dwordx4 v[{r}:{r+3}], v{VPAY}, s[44:47], s60 offen offset:{2048*kb + 1024*hf} sc1")
        g(f"buffer_load_dword v{64+hf}, v{VWT}, s[44:47], s58 offen offset:{4*hf} sc1")
    TS(2)
    h1loads(0)
    h1loads(1)
    g("s_waitcnt vmcnt(6)")
    TS(3)
    for kb in range(2):
        for mt in range(2):
            r = WF + 8 * kb + 4 * mt
            g(f"ds_read_b64_tr_b16 v[{r}:{r+1}], v{VW0+mt} offset:{2048*kb}")
            g(f"ds_read_b64_tr_b16 v[{r+2}:{r+3}], v{VW0+mt} offset:{2048*kb+1024}")
    if dbg:
        g("s_waitcnt vmcnt(0)")
        TS(4)
    g("s_mov_b32 s71, 0")
    g("L_h1chk:")
    g("""
    s_waitcnt vmcnt(0)
    v_max3_u32 v8, v16, v17, v18
    v_max3_u32 v9, v24, v25, v26
    v_max3_u32 v8, v8, v19, v20
    v_max3_u32 v9, v9, v27, v28
    v_max3_u32 v8, v8, v21, v22
    v_max3_u32 v9, v9, v29, v30
    v_max3_u32 v8, v8, v23, v64
    v_max3_u32 v9, v9, v31, v65
    v_cmp_eq_u32_e64 s[52:53], -1, v8
    v_cmp_eq_u32_e64 s[54:55], -1, v9
    s_or_b64 s[56:57], s[52:53], s[54:55]
    s_cbranch_scc0 L_h1done
    """)
    g(f"s_add_u32 s71, s71, 1\ns_cmp_ge_u32 s71, {maxpoll}\ns_cbranch_scc1 L_h1done")
    for hf in range(2):
        g(f"s_mov_b64 exec, s[{52+2*hf}:{53+2*hf}]")
        g(f"s_cbranch_execz L_h1s{hf}")
        h1loads(hf)
        g(f"L_h1s{hf}:")
    g("s_mov_b64 exec, -1\ns_branch L_h1chk")
    g("L_h1done:")
    g("s_waitcnt lgkmcnt(0)")
    TS(7)
    if dbg:
        g("s_mov_b32 s74, s71\ns_mov_b32 s75, 0")
    wts = ["v_max_f32 v8, v64, v65",
           "v_max_f32_dpp v8, v8, v8 quad_perm:[1,0,3,2] row_mask:0xf bank_mask:0xf",
           "v_max_f32_dpp v8, v8, v8 quad_perm:[2,3,0,1] row_mask:0xf bank_mask:0xf",
           "v_sub_f32 v64, v64, v8\nv_sub_f32 v65, v65, v8",
           "v_exp_f32 v64, v64\nv_exp_f32 v65, v65",
           "v_add_f32 v8, v64, v65",
           "v_add_f32_dpp v8, v8, v8 quad_perm:[1,0,3,2] row_mask:0xf bank_mask:0xf",
           "v_add_f32_dpp v8, v8, v8 quad_perm:[2,3,0,1] row_mask:0xf bank_mask:0xf"]
    wi = 0
    for kb in range(2):
        for mt in range(2):
            for hf in range(2):
                d = DD + 8 * mt + 4 * hf
                b_ = PAY + 8 * hf + 4 * kb
                a_ = WF + 8 * kb + 4 * mt
                c = "0" if kb == 0 else f"v[{d}:{d+3}]"
                g(f"v_mfma_f32_16x16x32_bf16 v[{d}:{d+3}], v[{a_}:{a_+3}], v[{b_}:{b_+3}], {c}")
                g(wts[wi]); wi += 1
    g("v_rcp_f32 v8, v8")
    g("v_pk_mul_f32 v[64:65], v[64:65], v[8:9] op_sel:[0,0] op_sel_hi:[1,0]")
    for mt in range(2):
        for h_ in range(2):
            d = DD + 8 * mt + 2 * h_
            g(f"v_pk_mul_f32 v[{d}:{d+1}], v[{d}:{d+1}], v[64:65] op_sel:[0,0] op_sel_hi:[1,0]")
    for mt in range(2):
        for h_ in range(2):
            d = DD + 8 * mt + 2 * h_
            g(f"v_pk_fma_f32 v[{d}:{d+1}], v[{d+4}:{d+5}], v[64:65], v[{d}:{d+1}] op_sel:[0,1,0] op_sel_hi:[1,1,1]")
    for m in ("quad_perm:[1,0,3,2]", "quad_perm:[2,3,0,1]"):
        for mt in range(2):
            for i in range(4):
                d = DD + 8 * mt + i
                g(f"v_add_f32_dpp v{d}, v{d}, v{d} {m} row_mask:0xf bank_mask:0xf")
    g("s_mov_b64 exec, s[96:97]")
    g(f"ds_write_b128 v{VGW}, v[{DD}:{DD+3}] offset:{L_GP}")
    g(f"ds_write_b128 v{VGW}, v[{DD+8}:{DD+11}] offset:{L_GP+64}")
    g("s_mov_b64 exec, -1")
    g("s_waitcnt lgkmcnt(0)")

    g("L_B5:")
    g("s_barrier")
    TS(8, 'V')
    TS(7, 'K')
    g("s_cmp_lg_u32 s3, 4\ns_cbranch_scc1 L_H2")
    for w in range(4):
        g(f"ds_read_b64 v[{16+2*w}:{17+2*w}], v{VGP} offset:{L_GP + 512*w}")
    g("s_waitcnt lgkmcnt(0)")
    g("v_pk_add_f32 v[16:17], v[16:17], v[18:19]\nv_pk_add_f32 v[20:21], v[20:21], v[22:23]\nv_pk_add_f32 v[32:33], v[16:17], v[20:21]")
    g("v_min_u32 v32, -2, v32\nv_min_u32 v33, -2, v33")
    if fg is not None and local:
        g(f"s_cmp_lg_u32 s4, {fg}\ns_cbranch_scc1 L_h2g\ns_cmp_lg_u32 s1, 0\ns_cbranch_scc1 L_h2g")
        g(f"buffer_store_dwordx2 v[32:33], v{VH2S}, s[44:47], s69 offen")
        g("s_branch L_H2")
        g("L_h2g:")
    g(f"buffer_store_dwordx2 v[32:33], v{VH2S}, s[44:47], s69 offen sc1")
    g("L_H2:")
    g("s_cmp_ge_u32 s26, 4\ns_cbranch_scc1 L_fin")
    g("L_fseg:")
    g("s_lshl_b32 s8, s26, 15\ns_lshl_b32 s9, s63, 8\ns_add_u32 s8, s8, s9")
    g(f"s_add_u32 s64, s8, {WS_H2:#x}\ns_add_u32 s65, s64, 0x2000\ns_add_u32 s66, s64, 0x4000\ns_add_u32 s67, s64, 0x6000")
    g("s_cbranch_execz L_fs_a")
    for i in range(4):
        g(f"buffer_load_dwordx4 v[{16+4*i}:{19+4*i}], v{VH2}, s[44:47], s{64+i} offen sc1")
    g("L_fs_a:")
    g(f"s_mov_b32 s8, {f2u(1.0/512):#x}\ns_mov_b32 s9, {f2u(1.0/512):#x}\ns_mov_b32 s10, {f2u(1e-5):#x}")
    g("s_mov_b32 s60, 0x80000000\ns_mov_b32 s61, 0x80000000")
    srd(48, 36, 4096)
    g("s_mov_b32 s71, 0")
    g("L_h2chk:")
    g("s_waitcnt vmcnt(0)")
    for i in range(4):
        g(f"v_max3_u32 v{8+i}, v{16+4*i}, v{17+4*i}, v{18+4*i}")
    for i in range(4):
        g(f"v_max_u32 v{8+i}, v{8+i}, v{19+4*i}")
    g("v_max3_u32 v12, v8, v9, v10\nv_max_u32 v12, v12, v11")
    g("v_cmp_eq_u32 vcc, -1, v12")
    g("s_cmp_eq_u64 vcc, 0\ns_cbranch_scc1 L_h2done")
    g(f"s_add_u32 s71, s71, 1\ns_cmp_ge_u32 s71, {maxpoll}\ns_cbranch_scc1 L_h2done")
    for i in range(4):
        g(f"v_cmp_eq_u32_e64 s[{52+2*i}:{53+2*i}], -1, v{8+i}")
    for i in range(4):
        g(f"s_mov_b64 exec, s[{52+2*i}:{53+2*i}]")
        g(f"s_cbranch_execz L_h2s{i}")
        g(f"buffer_load_dwordx4 v[{16+4*i}:{19+4*i}], v{VH2}, s[44:47], s{64+i} offen sc1")
        g(f"L_h2s{i}:")
    g("s_mov_b64 exec, -1\ns_branch L_h2chk")
    g("L_h2done:")
    TS(9, 'V')
    TS(8, 'K')
    g(f"""
    v_lshlrev_b32 v{VX}, 16, v{VX}
    v_pk_add_f32 v[16:17], v[16:17], v[20:21]
    v_pk_add_f32 v[18:19], v[18:19], v[22:23]
    v_pk_add_f32 v[24:25], v[24:25], v[28:29]
    v_pk_add_f32 v[26:27], v[26:27], v[30:31]
    v_pk_add_f32 v[16:17], v[16:17], v[24:25]
    v_pk_add_f32 v[18:19], v[18:19], v[26:27]
    v_permlane32_swap_b32 v16, v17
    v_permlane32_swap_b32 v18, v19
    v_add_f32 v16, v16, v17
    v_add_f32 v18, v18, v19
    v_permlane16_swap_b32 v16, v18
    v_add_f32 v16, v16, v18
    v_cvt_pk_bf16_f32 v16, v16, v16
    v_and_b32 v16, s42, v16
    v_add_f32 v16, v16, v{VX}
    v_cvt_pk_bf16_f32 v16, v16, v16
    v_and_b32 v13, s42, v16
    """)

    def wave_stats(x, st_off, vmwait=False):
        g(f"v_mul_f32 v19, v{x}, v{x}\nv_mov_b32 v18, v{x}")
        g("v_permlane32_swap_b32 v18, v19\nv_add_f32 v18, v18, v19")
        for m in DPP6[:5]:
            g(f"v_add_f32_dpp v18, v18, v18 {m}")
        g("s_and_b64 exec, s[60:61], s[98:99]")
        g(f"ds_write_b32 v{VST}, v18 offset:{st_off}")
        g("s_mov_b64 exec, s[98:99]")
        g("s_waitcnt lgkmcnt(0)")
        g(f"s_cbranch_execz L_fs_b{st_off}")
        g("s_barrier")
        g(f"L_fs_b{st_off}:")
        for i in range(4):
            g(f"ds_read_b128 v[{20+4*i}:{23+4*i}], v{VZ} offset:{st_off + 16*i}")
        g("s_waitcnt lgkmcnt(0)")
        g("""
        v_pk_add_f32 v[20:21], v[20:21], v[22:23]
        v_pk_add_f32 v[24:25], v[24:25], v[26:27]
        v_pk_add_f32 v[28:29], v[28:29], v[30:31]
        v_pk_add_f32 v[32:33], v[32:33], v[34:35]
        v_pk_add_f32 v[20:21], v[20:21], v[24:25]
        v_pk_add_f32 v[28:29], v[28:29], v[32:33]
        v_pk_add_f32 v[20:21], v[20:21], v[28:29]
        """)
        ln_scalar(20, 21, 22, save=(24 if aln2 else None))

    wave_stats(13, L_ST2)
    g("v_sub_f32 v16, v13, v20")
    g("v_cvt_pk_bf16_f32 v16, v16, v16\nv_and_b32 v16, s42, v16")
    g("v_mul_f32 v16, v16, v21")
    g("v_cvt_pk_bf16_f32 v16, v16, v16\nv_and_b32 v16, s42, v16")
    if aln2:
        g("v_sub_f32 v24, v24, v20\nv_mul_f32 v25, v25, v21")
        g("v_mul_f32 v20, v24, v21\nv_mul_f32 v21, v25, v21")
        ln_scalar(20, 21, 22, pre=False)
    else:
        wave_stats(16, L_ST3)
    TS(9, 'K')
    g("v_sub_f32 v16, v16, v20")
    g("v_cvt_pk_bf16_f32 v16, v16, v16\nv_and_b32 v16, s42, v16")
    g("v_mul_f32 v16, v16, v21")
    g("v_cvt_pk_bf16_f32 v16, v16, v16")
    g(f"v_and_b32 v17, 0x7fff, v16\nv_subrev_u32 v17, {EXP0 << 7}, v17")
    g("v_bfe_u32 v18, v16, 15, 1")
    g(f"s_movk_i32 s11, {NBIN*128}")
    g("v_cmp_gt_u32 vcc, s11, v17")
    g("v_mad_u32_u24 v18, v18, s11, v17")
    g("v_lshlrev_b32 v18, 1, v18")
    g("v_cndmask_b32 v18, 0, v18, vcc")
    g(f"ds_read_u16 v19, v18 offset:{L_TAB}")
    g("s_mov_b32 s12, 0xffff")
    g("s_waitcnt lgkmcnt(0)")
    g("v_cmp_ne_u32_e64 s[52:53], s12, v19")
    g("v_lshlrev_b32 v19, 16, v19\nv_add_f32 v19, v19, v13\nv_cvt_pk_bf16_f32 v19, v19, v19")
    g("s_and_b64 s[52:53], s[52:53], vcc")
    if force_fb:
        g("s_and_b32 s52, s52, 0xfffffff0")
    g("s_mov_b64 exec, s[52:53]")
    g("s_cbranch_execz L_nost")
    g(f"buffer_store_short v19, v{VCOL}, s[48:51], s43 offen")
    g("L_nost:")
    g("s_andn2_b64 exec, s[98:99], s[52:53]")
    g("s_cbranch_execz L_nomiss")
    g(f"ds_add_rtn_u32 v17, v{VFL}, v{VONE} offset:{F_MISS}")
    g(f"v_and_b32 v12, s42, v16\nv_or_b32 v12, v12, v{VCOL}")
    g("s_waitcnt lgkmcnt(0)")
    g("v_lshlrev_b32 v17, 3, v17")
    g(f"ds_write_b64 v17, v[12:13] offset:{L_MISS}")
    g("s_waitcnt lgkmcnt(0)")
    g("L_nomiss:")
    g("s_mov_b64 exec, s[98:99]")
    g("s_cbranch_execz L_dry_ret")
    g("s_barrier")
    g("s_cmp_lg_u32 s26, 0\ns_cbranch_scc1 L_fin\ns_cmp_lg_u32 s3, 4\ns_cbranch_scc1 L_fin")
    g("s_add_u32 s94, s94, 1\nv_mov_b32 v4, s94")
    g("s_mov_b64 exec, 1")
    g(f"buffer_store_dword v4, v{VZ}, s[44:47], 0 offen offset:{WS_E}")
    g("L_fin:")
    if dbg:
        g("s_mov_b64 exec, -1")
        g("s_memrealtime s[92:93]")
        g("s_waitcnt lgkmcnt(0)")
        g(f"s_lshl_b32 s8, s2, 11\ns_lshl_b32 s9, s3, 7\ns_add_u32 s8, s8, s9\ns_add_u32 s8, s8, {WS_DBG:#x}")
        g("s_mov_b64 exec, 1")
        for i in range(0, 22, 2):
            g(f"v_mov_b32 v8, s{72+i}\nv_mov_b32 v9, s{73+i}")
            g(f"buffer_store_dwordx2 v[8:9], v{VZ}, s[44:47], s8 offen offset:{4*i}")
            g("s_nop 1")
    g("L_end:")
    g("s_endpgm")
    g('.section .rodata,"a"')
    g(".p2align 6")
    g(f".amdhsa_kernel {KN}")
    for d in ["next_free_vgpr 168", "next_free_sgpr 102", "accum_offset 168", "group_segment_fixed_size 0", "kernarg_size 104",
              "user_sgpr_count 2", "user_sgpr_kernarg_segment_ptr 1", "system_sgpr_workgroup_id_x 1", "float_denorm_mode_32 3"]:
        g(f".amdhsa_{d}")
    g(".end_amdhsa_kernel")
    open(path, "w").write(g.text())


if __name__ == "__main__":
    kw = eval("dict(%s)" % (sys.argv[2] if len(sys.argv) > 2 else ""))
    gen(sys.argv[1], **kw)
```
